```python
import torch

def _softmax(x, axis=-1):
    return torch.softmax(x, dim=axis)
def _gelu(x):
    return torch.nn.functional.gelu(x, approximate="tanh")
def _silu(x):
    return torch.nn.functional.silu(x)
def _sigmoid(x):
    return torch.sigmoid(x)
def _layernorm(x, axis=-1, eps=1e-5):
    m = x.mean(dim=axis, keepdim=True)
    v = x.var(dim=axis, keepdim=True, unbiased=False)
    return (x - m) / torch.sqrt(v + eps)
def _scatter_add(tgt, idx, src, axis=0):
    return tgt.clone().index_add_(axis, idx, src)
def _segment_sum(src, seg, n):
    out = torch.zeros((n,) + src.shape[1:], dtype=src.dtype)
    return out.index_add_(0, seg, src)
def _pad(x, pw):
    flat = tuple(v for pair in reversed(pw) for v in pair)
    return torch.nn.functional.pad(x, flat)

kernel_name = 'interleave_layers__softmax_full_mha__dense_activation_mish__prompt'

def setup_inputs():

    _w = (lambda a: (lambda t: t.to(torch.bfloat16) if t.is_floating_point() else t)(torch.as_tensor(a)))
    def _A_setup():
        B, S, D = 1, 2048, 512
        return {
            "x": _w((lambda *s: torch.randn(*s, dtype=torch.bfloat16) * 0.05)(B, S, D)),
            "wqkv": _w((lambda *s: torch.randn(*s, dtype=torch.bfloat16) * 0.05)(D, 3 * D)),
            "wo": _w((lambda *s: torch.randn(*s, dtype=torch.bfloat16) * 0.05)(D, D)),
        }
    _A_in = _A_setup()

    def _B_setup():
        B, S, D, F = 1, 2048, 512, 1792
        return {
            "x": _w((lambda *s: torch.randn(*s, dtype=torch.bfloat16) * 0.05)(B, S, D)),
            "w1": _w((lambda *s: torch.randn(*s, dtype=torch.bfloat16) * 1.6)(D, F) * (D ** -0.5)),
            "b1": _w((lambda *s: torch.randn(*s, dtype=torch.bfloat16) * 0.4)(F)),
            "w2": _w((lambda *s: torch.randn(*s, dtype=torch.bfloat16) * 0.2)(F, D) * (F ** -0.5)),
        }
    _B_in = _B_setup()

    return {
        "A_x": _A_in["x"],
        "A_wqkv": _A_in["wqkv"],
        "A_wo": _A_in["wo"],
        "B_x": _B_in["x"],
        "B_w1": _B_in["w1"],
        "B_b1": _B_in["b1"],
        "B_w2": _B_in["w2"],
    }

def reference(A_x, A_wqkv, A_wo, B_x, B_w1, B_b1, B_w2):
    def _A_ref(x, wqkv, wo):
        B, S, D = x.shape
        H = 32; Dh = D // H
        qkv = (lambda x, *d: x.permute(*d))((x @ wqkv).reshape(B, S, 3, H, Dh), 2, 0, 3, 1, 4)
        q, k, v = qkv[0], qkv[1], qkv[2]
        scale = Dh ** -0.5
        scores = torch.einsum("bhqd,bhkd->bhqk", q, k) * scale
        p = _softmax(scores, axis=-1)
        o = torch.einsum("bhqk,bhkd->bhqd", p, v)
        return (lambda x, *d: x.permute(*d))(o, 0, 2, 1, 3).reshape(B, S, D) @ wo

    def _B_ref(x, w1, b1, w2):
        h = torch.einsum("bsd,df->bsf", x, w1) + b1
        sp = torch.log1p(torch.exp(-torch.abs(h))) + torch.where(h > 0, h, torch.zeros_like(h))
        act = h * torch.tanh(sp)
        return torch.einsum("bsf,fd->bsd", act, w2)

    x = A_x
    x = x + _A_ref(_layernorm(x, axis=-1), A_wqkv, A_wo)
    x = x + _B_ref(_layernorm(x, axis=-1), B_w1, B_b1, B_w2)
    x = x + _A_ref(_layernorm(x, axis=-1), A_wqkv, A_wo)
    x = x + _B_ref(_layernorm(x, axis=-1), B_w1, B_b1, B_w2)
    return x
```

```python
import sys, struct

NAME = "interleave_layers__softmax_full_mha__dense_activation_mish__prompt"
KB = 1024
_off = 0
def alloc(n):
    global _off
    o = _off
    _off += (n + 4095) // 4096 * 4096
    return o

WQKV_F = alloc(48 * 32 * KB)
WO_F   = alloc(16 * 32 * KB)
W1_F   = alloc(56 * 32 * KB)
W2_F   = alloc(16 * 112 * KB)
CS_QKV = alloc(48 * 128)
CS_W1  = alloc(56 * 128)
B1F    = alloc(56 * 128)
XF     = alloc(64 * 32 * KB)
STATS  = alloc(2048 * 128)
QF     = alloc(32 * 64 * KB)
KF     = alloc(32 * 64 * KB)
VF     = alloc(32 * 64 * KB)
OF     = alloc(64 * 32 * KB)
HF     = alloc(64 * 112 * KB)
WS_SIZE = 268435456

def f32(x):
    return "0x%08x" % struct.unpack("<I", struct.pack("<f", x))[0]

LOG2E = 1.4426950408889634

class Asm:
    def __init__(self):
        self.lines = []
    def __call__(self, s):
        for l in s.strip("\n").split("\n"):
            self.lines.append("    " + l.strip())
    def label(self, l):
        self.lines.append(l + ":")
    def raw(self, s):
        self.lines.append(s)
    def text(self):
        return "\n".join(self.lines) + "\n"

A = Asm()
kernels = []

def vr(b, n):
    return "v[%d:%d]" % (b, b + n - 1)

def kernel_begin(name):
    A.raw(".globl %s" % name)
    A.raw(".p2align 8")
    A.raw(".type %s,@function" % name)
    A.label(name)

def kernel_end(name, vgpr, sgpr=100):
    A.label("L_%s_end" % name)
    A("s_endpgm")
    kernels.append((name, vgpr, sgpr))

def common_prologue(name, nwg, extra_loads=""):
    A("s_cmp_ge_u32 s2, %d" % nwg)
    A("s_cbranch_scc1 L_%s_end" % name)
    A("s_load_dwordx2 s[4:5], s[0:1], 72")
    if extra_loads:
        A(extra_loads)
    A("v_and_b32 v2, 63, v0")
    A("v_lshrrev_b32 v3, 6, v0")
    A("v_lshlrev_b32 v1, 4, v2")
    A("v_readfirstlane_b32 s3, v3")
    A("s_mov_b32 s6, 0x%x" % WS_SIZE)
    A("s_mov_b32 s7, 0x00020000")
    A("s_waitcnt lgkmcnt(0)")

def cross_half_add(va, vt):
    A("v_mov_b32 v%d, v%d" % (vt, va))
    A("s_nop 1")
    A("v_permlane32_swap_b32 v%d, v%d" % (va, vt))
    A("s_nop 1")
    A("v_add_f32 v%d, v%d, v%d" % (va, va, vt))

def stats_of_packed(regs, vsum, vsq, vt0, vt1):
    first = True
    for r in regs:
        A("v_lshlrev_b32 v%d, 16, v%d" % (vt0, r))
        A("v_and_b32 v%d, 0xffff0000, v%d" % (vt1, r))
        if first:
            A("v_add_f32 v%d, v%d, v%d" % (vsum, vt0, vt1))
            A("v_mul_f32 v%d, v%d, v%d" % (vsq, vt0, vt0))
            first = False
        else:
            A("v_add_f32 v%d, v%d, v%d" % (vsum, vsum, vt0))
            A("v_add_f32 v%d, v%d, v%d" % (vsum, vsum, vt1))
            A("v_fmac_f32 v%d, v%d, v%d" % (vsq, vt0, vt0))
        A("v_fmac_f32 v%d, v%d, v%d" % (vsq, vt1, vt1))
    cross_half_add(vsum, vt0)
    cross_half_add(vsq, vt0)

def gen_prep():
    name = "prep_kernel"
    kernel_begin(name)
    common_prologue(name, 240,
        "s_load_dwordx4 s[8:11], s[0:1], 0\n"
        "s_load_dwordx2 s[12:13], s[0:1], 16\n"
        "s_load_dwordx4 s[16:19], s[0:1], 32\n"
        "s_load_dwordx2 s[20:21], s[0:1], 48")
    A("v_and_b32 v4, 31, v2")
    A("v_lshrrev_b32 v5, 5, v2")
    A("s_mov_b32 s27, 0x00020000")
    A("s_cmp_ge_u32 s2, 176")
    A("s_cbranch_scc1 L_prep_x")
    A("s_lshl_b32 s30, s3, 3")
    A("s_cmp_ge_u32 s2, 48")
    A("s_cbranch_scc1 L_prep_r1")
    A("s_mov_b32 s24, s10\ns_mov_b32 s25, s11\ns_mov_b32 s26, %d" % (512 * 1536 * 2))
    A("s_mov_b32 s28, 3072\ns_mov_b32 s29, s2")
    A("s_lshl_b32 s31, s29, 5\ns_add_u32 s31, s31, s30\ns_lshl_b32 s31, s31, 10\ns_add_u32 s31, s31, %d" % WQKV_F)
    A("s_lshl_b32 s32, s29, 7\ns_add_u32 s32, s32, %d" % CS_QKV)
    A("s_mov_b32 s33, 1")
    A("s_branch L_prep_w")
    A.label("L_prep_r1")
    A("s_cmp_ge_u32 s2, 64")
    A("s_cbranch_scc1 L_prep_r2")
    A("s_mov_b32 s24, s12\ns_mov_b32 s25, s13\ns_mov_b32 s26, %d" % (512 * 512 * 2))
    A("s_mov_b32 s28, 1024\ns_sub_u32 s29, s2, 48")
    A("s_lshl_b32 s31, s29, 5\ns_add_u32 s31, s31, s30\ns_lshl_b32 s31, s31, 10\ns_add_u32 s31, s31, %d" % WO_F)
    A("s_mov_b32 s32, 0\ns_mov_b32 s33, 0")
    A("s_branch L_prep_w")
    A.label("L_prep_r2")
    A("s_cmp_ge_u32 s2, 120")
    A("s_cbranch_scc1 L_prep_r3")
    A("s_mov_b32 s24, s16\ns_mov_b32 s25, s17\ns_mov_b32 s26, %d" % (512 * 1792 * 2))
    A("s_mov_b32 s28, 3584\ns_sub_u32 s29, s2, 64")
    A("s_lshl_b32 s31, s29, 5\ns_add_u32 s31, s31, s30\ns_lshl_b32 s31, s31, 10\ns_add_u32 s31, s31, %d" % W1_F)
    A("s_lshl_b32 s32, s29, 7\ns_add_u32 s32, s32, %d" % CS_W1)
    A("s_mov_b32 s33, 2")
    A("s_branch L_prep_w")
    A.label("L_prep_r3")
    A("s_mov_b32 s24, s20\ns_mov_b32 s25, s21\ns_mov_b32 s26, %d" % (1792 * 512 * 2))
    A("s_mov_b32 s28, 1024")
    A("s_sub_u32 s34, s2, 120\ns_lshl_b32 s34, s34, 2\ns_add_u32 s34, s34, s3")
    A("s_and_b32 s29, s34, 15\ns_lshr_b32 s30, s34, 4\ns_lshl_b32 s30, s30, 3")
    A("s_mul_i32 s31, s29, 112\ns_add_u32 s31, s31, s30\ns_lshl_b32 s31, s31, 10\ns_add_u32 s31, s31, %d" % W2_F)
    A("s_mov_b32 s32, 0\ns_mov_b32 s33, 0")
    A.label("L_prep_w")
    A("s_lshl_b32 s34, s28, 2")
    A("v_mul_lo_u32 v6, v5, s34")
    A("s_lshl_b32 s35, s29, 5")
    A("v_add_u32 v7, s35, v4")
    A("v_lshl_add_u32 v10, v7, 1, v6")
    for idx, jj in enumerate((0, 1, 2, 3, 8, 9, 10, 11)):
        if idx == 0:
            continue
        A("s_mul_i32 s34, s28, %d" % jj)
        A("v_add_u32 v%d, s34, v10" % (10 + idx))
    A("s_lshl_b32 s34, s28, 4")
    A("s_mul_i32 s35, s30, s34")
    LD = 64
    for s in range(8):
        for j in range(8):
            A("buffer_load_ushort v%d, v%d, s[24:27], s35 offen" % (LD + 8 * s + j, 10 + j))
        if s < 7:
            A("s_add_u32 s35, s35, s34")
    A("s_add_u32 s36, s31, 4096")
    PK = 32
    for s in range(8):
        A("s_waitcnt vmcnt(%d)" % (56 - 8 * s + s))
        for q in range(4):
            A("v_lshl_or_b32 v%d, v%d, 16, v%d" % (PK + 4 * s + q, LD + 8 * s + 2 * q + 1, LD + 8 * s + 2 * q))
        A("buffer_store_dwordx4 %s, v1, s[4:7], s%d offen offset:%d" % (vr(PK + 4 * s, 4), 31 if s < 4 else 36, (s % 4) * 1024))
    A("s_cmp_eq_u32 s33, 0")
    A("s_cbranch_scc1 L_%s_end" % name)
    for i in range(64):
        A("v_lshlrev_b32 v%d, 16, v%d" % (LD + i, LD + i))
    A("v_add_f32 v20, v%d, v%d" % (LD, LD + 1))
    for i in range(2, 64):
        A("v_add_f32 v20, v20, v%d" % (LD + i))
    cross_half_add(20, 21)
    A("s_lshl_b32 s34, s3, 7")
    A("v_lshlrev_b32 v22, 2, v4")
    A("v_add_u32 v22, s34, v22")
    A("ds_write_b32 v22, v20")
    A("s_waitcnt lgkmcnt(0)")
    A("s_barrier")
    A("s_cmp_lg_u32 s3, 0")
    A("s_cbranch_scc1 L_%s_end" % name)
    A("v_lshlrev_b32 v22, 2, v4")
    A("ds_read_b32 v23, v22")
    A("ds_read_b32 v24, v22 offset:128")
    A("ds_read_b32 v25, v22 offset:256")
    A("ds_read_b32 v26, v22 offset:384")
    A("v_bfe_u32 v27, v4, 2, 1")
    A("v_lshlrev_b32 v27, 4, v27")
    A("v_lshrrev_b32 v28, 3, v4")
    A("v_lshl_add_u32 v27, v28, 2, v27")
    A("v_and_b32 v28, 3, v4")
    A("v_add_u32 v27, v27, v28")
    A("v_lshlrev_b32 v27, 2, v27")
    A("s_waitcnt lgkmcnt(0)")
    A("v_add_f32 v23, v23, v24")
    A("v_add_f32 v25, v25, v26")
    A("v_add_f32 v23, v23, v25")
    A("buffer_store_dword v23, v27, s[4:7], s32 offen")
    A("s_cmp_lg_u32 s33, 2")
    A("s_cbranch_scc1 L_%s_end" % name)
    A("s_mov_b32 s40, s18\ns_mov_b32 s41, s19\ns_mov_b32 s42, %d\ns_mov_b32 s43, 0x00020000" % (1792 * 2))
    A("v_lshlrev_b32 v7, 1, v7")
    A("buffer_load_ushort v29, v7, s[40:43], 0 offen")
    A("s_lshl_b32 s34, s29, 7\ns_add_u32 s34, s34, %d" % B1F)
    A("s_waitcnt vmcnt(0)")
    A("v_lshlrev_b32 v29, 16, v29")
    A("buffer_store_dword v29, v27, s[4:7], s34 offen")
    A("s_branch L_%s_end" % name)
    A.label("L_prep_x")
    A("s_mov_b32 s24, s8\ns_mov_b32 s25, s9\ns_mov_b32 s26, %d" % (2048 * 512 * 2))
    A("s_sub_u32 s29, s2, 176")
    A("s_lshl_b32 s34, s29, 5")
    A("v_add_u32 v6, s34, v4")
    A("v_lshlrev_b32 v7, 10, v6")
    A("v_lshl_add_u32 v7, v5, 3, v7")
    A("s_lshl_b32 s35, s3, 8")
    for s in range(8):
        A("buffer_load_dwordx2 %s, v7, s[24:27], s35 offen offset:%d" % (vr(PK + 4 * s, 2), 32 * s))
        A("buffer_load_dwordx2 %s, v7, s[24:27], s35 offen offset:%d" % (vr(PK + 4 * s + 2, 2), 32 * s + 16))
    A("s_lshl_b32 s31, s29, 5\ns_lshl_b32 s34, s3, 3\ns_add_u32 s31, s31, s34\ns_lshl_b32 s31, s31, 10\ns_add_u32 s31, s31, %d" % XF)
    A("s_add_u32 s36, s31, 4096")
    A("v_lshlrev_b32 v8, 7, v6")
    A("s_lshl_b32 s37, s3, 5\ns_add_u32 s37, s37, %d" % STATS)
    A("s_waitcnt vmcnt(0)")
    for s in range(8):
        A("buffer_store_dwordx4 %s, v1, s[4:7], s%d offen offset:%d" % (vr(PK + 4 * s, 4), 31 if s < 4 else 36, (s % 4) * 1024))
    for q in range(4):
        stats_of_packed([PK + 8 * q + i for i in range(8)], 20 + 2 * q, 21 + 2 * q, 12, 13)
        A("buffer_store_dwordx2 %s, v8, s[4:7], s37 offen offset:%d" % (vr(20 + 2 * q, 2), 8 * q))
    kernel_end(name, 128)

NBUF = 4
BUFSZ = 32768

def gen_gemm(name, kind):
    if kind in ('qkv', 'w1'):
        TMB, TNB, KC, KS = 4, 4, 4, 32
        ACT = XF
        WOFF = WQKV_F if kind == 'qkv' else W1_F
        NCOL = 12 if kind == 'qkv' else 14
        NWG = 16 * NCOL
    else:
        TMB, TNB, KC = 2, 2, 8
        KS = 32 if kind == 'wo' else 112
        ACT = OF if kind == 'wo' else HF
        WOFF = WO_F if kind == 'wo' else W2_F
        NCOL = 8
        NWG = 32 * NCOL
    MT, NT = TMB // 2, TNB // 2
    NC = KS // KC
    kernel_begin(name)
    common_prologue(name, NWG, "s_load_dwordx2 s[40:41], s[0:1], 56" if kind == 'w2f' else "")
    A("v_and_b32 v4, 31, v2")
    A("v_lshrrev_b32 v5, 5, v2")
    if kind in ('qkv', 'w1'):
        A("s_and_b32 s8, s2, 7\ns_lshr_b32 s9, s2, 3\ns_lshl_b32 s8, s8, 1\ns_and_b32 s10, s9, 1\ns_add_u32 s8, s8, s10\ns_lshr_b32 s9, s9, 1")
    else:
        A("s_and_b32 s8, s2, 7\ns_lshr_b32 s9, s2, 3\ns_lshl_b32 s8, s8, 2\ns_and_b32 s10, s9, 3\ns_add_u32 s8, s8, s10\ns_lshr_b32 s9, s9, 2")
    A("s_mul_i32 s8, s8, %d" % TMB)
    A("s_mul_i32 s9, s9, %d" % TNB)
    A("s_lshr_b32 s16, s3, 1")
    A("s_and_b32 s17, s3, 1")
    A("s_mul_i32 s18, s16, %d\ns_add_u32 s18, s18, s8" % MT)
    A("s_mul_i32 s19, s17, %d\ns_add_u32 s19, s19, s9" % NT)
    ACC = 16
    FR = ACC + 16 * MT * NT
    FSET = 4 * (MT + NT)
    NSET = 3
    EX = FR + NSET * FSET
    nmisc = 0
    if kind in ('qkv', 'w1'):
        ST = EX
        CSR = EX + 32
        BR = CSR + 16 * NT
        top = BR + 16 * NT
        A("s_lshl_b32 s20, s18, 5")
        A("v_add_u32 v6, s20, v4")
        A("v_lshlrev_b32 v6, 7, v6")
        A("v_lshl_add_u32 v6, v5, 6, v6")
        A("s_mov_b32 s21, %d" % STATS)
        for tbi in range(MT):
            for q in range(4):
                A("buffer_load_dwordx4 %s, v6, s[4:7], s21 offen offset:%d" % (vr(ST + 16 * tbi + 4 * q, 4), 16 * q))
            if tbi < MT - 1:
                A("s_add_u32 s21, s21, 4096")
        nmisc += 4 * MT
        A("v_lshlrev_b32 v7, 6, v5")
        A("s_lshl_b32 s22, s19, 7\ns_add_u32 s22, s22, %d" % (CS_QKV if kind == 'qkv' else CS_W1))
        for ni in range(NT):
            for q in range(4):
                A("buffer_load_dwordx4 %s, v7, s[4:7], s22 offen offset:%d" % (vr(CSR + 16 * ni + 4 * q, 4), 128 * ni + 16 * q))
        nmisc += 4 * NT
        if kind == 'qkv':
            A("v_bfe_u32 v8, v4, 2, 1")
            A("v_lshlrev_b32 v8, 4, v8")
            A("v_lshrrev_b32 v9, 3, v4")
            A("v_lshl_add_u32 v8, v9, 2, v8")
            A("v_and_b32 v9, 3, v4")
            A("v_add_u32 v8, v8, v9")
            A("v_lshlrev_b32 v8, 2, v8")
            for ni in range(NT):
                A("buffer_load_dword v%d, v8, s[4:7], s22 offen offset:%d" % (BR + ni, 128 * ni))
            nmisc += NT
        else:
            A("s_lshl_b32 s23, s19, 7\ns_add_u32 s23, s23, %d" % B1F)
            for ni in range(NT):
                for q in range(4):
                    A("buffer_load_dwordx4 %s, v7, s[4:7], s23 offen offset:%d" % (vr(BR + 16 * ni + 4 * q, 4), 128 * ni + 16 * q))
            nmisc += 4 * NT
    else:
        XO = EX
        top = XO + 8 + 16
        A("s_lshl_b32 s20, s18, 5\ns_lshl_b32 s21, s19, 1\ns_add_u32 s20, s20, s21\ns_lshl_b32 s20, s20, 10\ns_add_u32 s20, s20, %d" % XF)
        A("buffer_load_dwordx4 %s, v1, s[4:7], s20 offen" % vr(XO, 4))
        A("buffer_load_dwordx4 %s, v1, s[4:7], s20 offen offset:1024" % vr(XO + 4, 4))
        nmisc += 2
    A("s_and_b32 s14, s3, 1")
    A("s_mov_b32 s24, %d\ns_mov_b32 s25, %d" % (ACT, WOFF))
    A("s_cmp_lt_u32 s3, 2")
    A("s_cselect_b32 s15, s8, s9")
    A("s_cselect_b32 s24, s24, s25")
    if KC == 4:
        A("s_lshl_b32 s14, s14, 1")
    A("s_add_u32 s15, s15, s14")
    A("s_mul_i32 s15, s15, %d" % (KS * 1024))
    A("s_add_u32 s10, s24, s15")
    A("s_add_u32 s11, s10, %d" % (KS * 1024 if KC == 4 else 4096))
    A("s_lshl_b32 s12, s3, 13")
    A("s_add_u32 s13, s12, 4096")
    def dma(c):
        bo = (c % NBUF) * BUFSZ
        for u in range(2):
            A("s_add_u32 m0, s%d, %d" % (12 + u, bo))
            A("s_nop 0")
            for q in range(4):
                A("buffer_load_dwordx4 v1, s[4:7], s%d offen offset:%d lds" % (10 + u, 1024 * q))
        A("s_add_u32 s10, s10, %d\ns_add_u32 s11, s11, %d" % (KC * 1024, KC * 1024))
    issued = -1
    for c in range(min(NBUF - 1, NC)):
        dma(c)
        issued = c
    A("s_mul_i32 s26, s16, %d" % (MT * KC * 1024))
    A("v_add_u32 v10, s26, v1")
    A("s_mul_i32 s26, s17, %d\ns_add_u32 s26, s26, %d" % (NT * KC * 1024, TMB * KC * 1024))
    A("v_add_u32 v11, s26, v1")
    A("v_add_u32 v12, 0x10000, v10")
    A("v_add_u32 v13, 0x10000, v11")
    for i in range(16 * MT * NT):
        A("v_mov_b32 v%d, 0" % (ACC + i))
    isV = None
    if kind in ('qkv', 'w1'):
        A("s_waitcnt vmcnt(%d)" % (8 * (issued + 1) + nmisc - 4 * MT))
        for tbi in range(MT):
            b = ST + 16 * tbi
            for p in range(1, 8):
                A("v_add_f32 v%d, v%d, v%d" % (b, b, b + 2 * p))
                A("v_add_f32 v%d, v%d, v%d" % (b + 1, b + 1, b + 2 * p + 1))
            cross_half_add(b, b + 2)
            cross_half_add(b + 1, b + 2)
            A("v_mul_f32 v%d, %s, v%d" % (b, f32(1.0 / 512), b))
            A("v_mul_f32 v%d, %s, v%d" % (b + 1, f32(1.0 / 512), b + 1))
            A("v_fma_f32 v%d, -v%d, v%d, v%d" % (b + 1, b, b, b + 1))
            A("v_max_f32 v%d, 0, v%d" % (b + 1, b + 1))
            A("v_add_f32 v%d, %s, v%d" % (b + 1, f32(1e-5), b + 1))
            A("v_rsq_f32 v%d, v%d" % (b + 1, b + 1))
            A("s_nop 0")
            A("v_mul_f32 v%d, v%d, v%d" % (b, b, b + 1))
    def mfma(acc, a, b):
        A("v_mfma_f32_32x32x16_bf16 %s, %s, %s, %s" % (vr(acc, 16), vr(a, 4), vr(b, 4), vr(acc, 16)))
    def reads(c, s, st):
        bo = (c % NBUF) * BUFSZ
        for mi in range(MT):
            o = bo + mi * KC * 1024 + s * 1024
            A("ds_read_b128 %s, v%d offset:%d" % (vr(FR + st * FSET + 4 * mi, 4), 10 if o < 65536 else 12, o % 65536))
        for ni in range(NT):
            o = bo + ni * KC * 1024 + s * 1024
            A("ds_read_b128 %s, v%d offset:%d" % (vr(FR + st * FSET + 4 * MT + 4 * ni, 4), 11 if o < 65536 else 13, o % 65536))
    def mainloop(orient):
        issued_l = issued
        nr = MT + NT
        for c in range(NC):
            A("s_waitcnt vmcnt(%d)" % (8 * (issued_l - c)))
            A("s_barrier")
            if c + NBUF - 1 < NC:
                dma(c + NBUF - 1)
                issued_l = c + NBUF - 1
            reads(c, 0, 0)
            if KC > 1:
                reads(c, 1, 1)
            for s in range(KC):
                st = s % NSET
                if s + 2 < KC:
                    reads(c, s + 2, (s + 2) % NSET)
                pend = min(KC - 1 - s, 2)
                A("s_waitcnt lgkmcnt(%d)" % (pend * nr))
                for mi in range(MT):
                    for ni in range(NT):
                        fa = FR + st * FSET + 4 * mi
                        fb = FR + st * FSET + 4 * MT + 4 * ni
                        acc = ACC + 16 * (mi * NT + ni)
                        if orient == 1:
                            mfma(acc, fb, fa)
                        else:
                            mfma(acc, fa, fb)
        A("s_nop 15")
        A("s_nop 3")
    T0, T1, T2, T3 = 6, 7, 8, 9
    if kind == 'qkv':
        A("s_cmp_ge_u32 s9, 32")
        A("s_cbranch_scc1 L_%s_v" % name)
        mainloop(1)
        A("s_cmp_lt_u32 s9, 16")
        A("s_cselect_b32 s27, %s, 1.0" % f32(0.25 * LOG2E))
        A("s_mov_b32 s28, %d\ns_mov_b32 s29, %d" % (QF, KF - 32 * 64 * 1024))
        A("s_cselect_b32 s28, s28, s29")
        for mi in range(MT):
            b = ST + 16 * mi
            A("v_mul_f32 v%d, s27, v%d" % (T0, b + 1))
            A("v_mul_f32 v%d, s27, v%d" % (T1, b))
            for ni in range(NT):
                acc = ACC + 16 * (mi * NT + ni)
                for i in range(16):
                    A("v_mul_f32 v%d, v%d, v%d" % (acc + i, acc + i, T0))
                    A("v_fma_f32 v%d, -v%d, v%d, v%d" % (acc + i, T1, CSR + 16 * ni + i, acc + i))
                for i in range(8):
                    A("v_cvt_pk_bf16_f32 v%d, v%d, v%d" % (acc + i, acc + 2 * i, acc + 2 * i + 1))
                A("s_add_u32 s30, s19, %d\ns_lshl_b32 s30, s30, 7\ns_add_u32 s30, s30, s18\ns_add_u32 s30, s30, %d\ns_lshl_b32 s30, s30, 10\ns_add_u32 s30, s30, s28" % (ni, mi))
                A("s_add_u32 s31, s30, 65536")
                A("buffer_store_dwordx4 %s, v1, s[4:7], s30 offen" % vr(acc, 4))
                A("buffer_store_dwordx4 %s, v1, s[4:7], s31 offen" % vr(acc + 4, 4))
        A("s_branch L_%s_end" % name)
        A.label("L_%s_v" % name)
        mainloop(2)
        SCR = NBUF * BUFSZ
        A("s_lshl_b32 s27, s3, 9")
        A("v_lshlrev_b32 v%d, 3, v4" % T0)
        A("v_add_u32 v%d, s27, v%d" % (T0, T0))
        A("v_add_u32 v%d, %d, v%d" % (T0, SCR, T0))
        for mi in range(MT):
            A("ds_write_b64 v%d, %s offset:%d" % (T0, vr(ST + 16 * mi, 2), 256 * mi))
        A("v_lshlrev_b32 v%d, 5, v5" % T1)
        A("v_add_u32 v%d, s27, v%d" % (T1, T1))
        A("v_add_u32 v%d, %d, v%d" % (T1, SCR, T1))
        A("s_waitcnt lgkmcnt(0)")
        A("v_lshrrev_b32 v%d, 4, v4" % T2)
        A("v_lshlrev_b32 v%d, 16, v%d" % (T2, T2))
        A("v_and_b32 v%d, 15, v4" % T3)
        A("v_lshl_add_u32 v%d, v5, 4, v%d" % (T3, T3))
        A("v_lshl_add_u32 v%d, v%d, 4, v%d" % (T2, T3, T2))
        TK = FR
        for mi in range(MT):
            for g in range(4):
                A("ds_read_b128 %s, v%d offset:%d" % (vr(TK + 8 * g, 4), T1, 256 * mi + 64 * g))
                A("ds_read_b128 %s, v%d offset:%d" % (vr(TK + 8 * g + 4, 4), T1, 256 * mi + 64 * g + 16))
            A("s_waitcnt lgkmcnt(0)")
            for ni in range(NT):
                acc = ACC + 16 * (mi * NT + ni)
                for i in range(16):
                    g, r = i >> 2, i & 3
                    mr = TK + 8 * g + 2 * r
                    A("v_mul_f32 v%d, v%d, v%d" % (acc + i, acc + i, mr + 1))
                    A("v_fma_f32 v%d, -v%d, v%d, v%d" % (acc + i, mr, BR + ni, acc + i))
                for i in range(8):
                    A("v_cvt_pk_bf16_f32 v%d, v%d, v%d" % (acc + i, acc + 2 * i, acc + 2 * i + 1))
                A("s_add_u32 s30, s19, %d\ns_sub_u32 s30, s30, 32\ns_lshl_b32 s30, s30, 7\ns_add_u32 s30, s30, s18\ns_add_u32 s30, s30, %d\ns_lshl_b32 s30, s30, 10\ns_add_u32 s30, s30, %d" % (ni, mi, VF))
                A("buffer_store_dwordx4 %s, v%d, s[4:7], s30 offen" % (vr(acc, 4), T2))
                A("buffer_store_dwordx4 %s, v%d, s[4:7], s30 offen offset:512" % (vr(acc + 4, 4), T2))
    elif kind == 'w1':
        mainloop(1)
        for mi in range(MT):
            b = ST + 16 * mi
            for ni in range(NT):
                acc = ACC + 16 * (mi * NT + ni)
                for i0 in range(0, 16, 4):
                    tt = [FR + 3 * k for k in range(4)]
                    for k in range(4):
                        i = i0 + k
                        A("v_fma_f32 v%d, -v%d, v%d, v%d" % (tt[k], b, CSR + 16 * ni + i, BR + 16 * ni + i))
                        A("v_fma_f32 v%d, v%d, v%d, v%d" % (acc + i, acc + i, b + 1, tt[k]))
                        A("v_mul_f32 v%d, %s, v%d" % (tt[k], f32(LOG2E), acc + i))
                        A("v_min_f32 v%d, %s, v%d" % (tt[k], f32(40.0), tt[k]))
                    for k in range(4):
                        A("v_exp_f32 v%d, v%d" % (tt[k], tt[k]))
                    for k in range(4):
                        A("v_add_f32 v%d, 2.0, v%d" % (tt[k] + 1, tt[k]))
                        A("v_mul_f32 v%d, v%d, v%d" % (tt[k], tt[k], tt[k] + 1))
                        A("v_add_f32 v%d, 2.0, v%d" % (tt[k] + 1, tt[k]))
                    for k in range(4):
                        A("v_rcp_f32 v%d, v%d" % (tt[k] + 1, tt[k] + 1))
                    for k in range(4):
                        i = i0 + k
                        A("v_mul_f32 v%d, v%d, v%d" % (acc + i, acc + i, tt[k]))
                        A("v_mul_f32 v%d, v%d, v%d" % (acc + i, acc + i, tt[k] + 1))
                for i in range(8):
                    A("v_cvt_pk_bf16_f32 v%d, v%d, v%d" % (acc + i, acc + 2 * i, acc + 2 * i + 1))
                A("s_add_u32 s30, s18, %d\ns_mul_i32 s30, s30, 112\ns_add_u32 s31, s19, %d\ns_lshl_b32 s31, s31, 1\ns_add_u32 s30, s30, s31\ns_lshl_b32 s30, s30, 10\ns_add_u32 s30, s30, %d" % (mi, ni, HF))
                A("buffer_store_dwordx4 %s, v1, s[4:7], s30 offen" % vr(acc, 4))
                A("buffer_store_dwordx4 %s, v1, s[4:7], s30 offen offset:1024" % vr(acc + 4, 4))
    else:
        mainloop(1)
        acc = ACC
        for i in range(8):
            A("v_lshlrev_b32 v%d, 16, v%d" % (T0, XO + i))
            A("v_and_b32 v%d, 0xffff0000, v%d" % (T1, XO + i))
            A("v_add_f32 v%d, v%d, v%d" % (acc + 2 * i, acc + 2 * i, T0))
            A("v_add_f32 v%d, v%d, v%d" % (acc + 2 * i + 1, acc + 2 * i + 1, T1))
        for i in range(8):
            A("v_cvt_pk_bf16_f32 v%d, v%d, v%d" % (acc + i, acc + 2 * i, acc + 2 * i + 1))
        if kind == 'w2f':
            A("s_mov_b32 s42, %d\ns_mov_b32 s43, 0x00020000" % (2048 * 512 * 2))
            A("s_lshl_b32 s30, s18, 5")
            A("v_add_u32 v%d, s30, v4" % T0)
            A("v_lshlrev_b32 v%d, 10, v%d" % (T0, T0))
            A("v_lshl_add_u32 v%d, v5, 3, v%d" % (T0, T0))
            A("s_lshl_b32 s31, s19, 6")
            for g in range(4):
                A("buffer_store_dwordx2 %s, v%d, s[40:43], s31 offen offset:%d" % (vr(acc + 2 * g, 2), T0, 16 * g))
        else:
            A("buffer_store_dwordx4 %s, v1, s[4:7], s20 offen" % vr(acc, 4))
            A("buffer_store_dwordx4 %s, v1, s[4:7], s20 offen offset:1024" % vr(acc + 4, 4))
            stats_of_packed([acc + i for i in range(8)], XO + 8, XO + 9, T0, T1)
            A("s_lshl_b32 s30, s18, 5")
            A("v_add_u32 v%d, s30, v4" % T0)
            A("v_lshlrev_b32 v%d, 7, v%d" % (T0, T0))
            A("s_lshl_b32 s31, s19, 3\ns_add_u32 s31, s31, %d" % STATS)
            A("buffer_store_dwordx2 %s, v%d, s[4:7], s31 offen" % (vr(XO + 8, 2), T0))
    kernel_end(name, max(top, 64))
    lds = NBUF * BUFSZ + (2048 if kind == 'qkv' else 0)
    return NWG, lds

def gen_attn():
    name = "attn_kernel"
    kernel_begin(name)
    common_prologue(name, 256)
    A("v_and_b32 v4, 31, v2")
    A("v_lshrrev_b32 v5, 5, v2")
    A("s_and_b32 s8, s2, 7\ns_lshr_b32 s9, s2, 3\ns_lshl_b32 s8, s8, 2\ns_and_b32 s10, s9, 3\ns_add_u32 s8, s8, s10\ns_lshr_b32 s9, s9, 2")
    A("s_lshl_b32 s9, s9, 3\ns_add_u32 s9, s9, s3")
    Q = 8; NEG = 12; S0 = 28; S1 = 44; P = 60; K0 = 68; K1 = 72; V0 = 76; V1 = 84; O = 92
    SS = (S0, S1); KK = (K0, K1); VV = (V0, V1)
    A("s_lshl_b32 s10, s8, 6\ns_add_u32 s11, s10, s9\ns_lshl_b32 s11, s11, 10\ns_add_u32 s11, s11, %d" % QF)
    A("buffer_load_dwordx4 %s, v1, s[4:7], s11 offen" % vr(Q, 4))
    A("s_lshl_b32 s10, s10, 10")
    A("s_add_u32 s12, s10, %d" % KF)
    A("s_add_u32 s13, s10, %d" % VF)
    A("s_lshl_b32 s14, s3, 11")
    A("s_add_u32 s15, s12, s14")
    A("s_add_u32 s16, s13, s14")
    A("s_mov_b32 m0, s14")
    A("s_nop 0")
    A("buffer_load_dwordx4 v1, s[4:7], s15 offen lds")
    A("buffer_load_dwordx4 v1, s[4:7], s15 offen offset:1024 lds")
    A("s_add_u32 m0, s14, 0x10000")
    A("s_nop 0")
    A("buffer_load_dwordx4 v1, s[4:7], s16 offen lds")
    A("buffer_load_dwordx4 v1, s[4:7], s16 offen offset:1024 lds")
    A("s_mul_i32 s14, s3, 6144\ns_add_u32 s14, s14, 16384")
    A("s_add_u32 s15, s12, s14")
    A("s_add_u32 s16, s13, s14")
    A("s_add_u32 s17, s15, 4096")
    A("s_add_u32 s18, s16, 4096")
    A("s_mov_b32 m0, s14")
    A("s_nop 0")
    for q in range(4):
        A("buffer_load_dwordx4 v1, s[4:7], s15 offen offset:%d lds" % (1024 * q))
    A("s_add_u32 m0, s14, 4096")
    A("s_nop 0")
    for q in range(2):
        A("buffer_load_dwordx4 v1, s[4:7], s17 offen offset:%d lds" % (1024 * q))
    A("s_add_u32 m0, s14, 0x10000")
    A("s_nop 0")
    for q in range(4):
        A("buffer_load_dwordx4 v1, s[4:7], s16 offen offset:%d lds" % (1024 * q))
    A("s_add_u32 m0, s14, 0x11000")
    A("s_nop 0")
    for q in range(2):
        A("buffer_load_dwordx4 v1, s[4:7], s18 offen offset:%d lds" % (1024 * q))
    A("v_and_b32 v6, 27, v4")
    A("v_cmp_eq_u32 vcc, 16, v6")
    A("v_mov_b32 v7, 0x3f803f80")
    A("s_nop 1")
    A("v_cndmask_b32 v6, 0, v7, vcc")
    for i in range(16):
        A("v_mov_b32 v%d, v6" % (V0 + i))
    A("s_mov_b32 s20, 0xffff\ns_mov_b32 s21, 0xffff")
    A("s_mov_b32 s22, 0")
    A("s_waitcnt vmcnt(12)")
    A("s_barrier")
    A("ds_read_b128 %s, v1" % vr(K0, 4))
    A("s_waitcnt lgkmcnt(0)")
    A("v_mfma_f32_32x32x16_bf16 %s, %s, %s, 0" % (vr(S0, 16), vr(K0, 4), vr(Q, 4)))
    A("s_nop 15")
    A("s_nop 3")
    def max16(dst, S, init=False):
        if init:
            A("v_max3_f32 v%d, v%d, v%d, v%d" % (dst, S, S + 1, S + 2))
            A("v_max_f32 v%d, v%d, v%d" % (dst, dst, S + 3))
            rest = list(range(4, 16))
        else:
            rest = list(range(0, 16))
        for i in range(0, len(rest), 2):
            A("v_max3_f32 v%d, v%d, v%d, v%d" % (dst, dst, S + rest[i], S + rest[i + 1]))
    max16(6, S0, True)
    A.label("L_attn_setneg")
    A("v_mov_b32 v7, v6")
    A("s_nop 1")
    A("v_permlane32_swap_b32 v6, v7")
    A("s_nop 1")
    A("v_max_f32 v6, v6, v7")
    A("v_sub_f32 v%d, 0, v6" % NEG)
    for i in range(1, 16):
        A("v_mov_b32 v%d, v%d" % (NEG + i, NEG))
    A("v_mov_b32 v2, v1")
    A("v_lshl_add_u32 v3, v5, 4, v4")
    A("v_lshlrev_b32 v3, 4, v3")
    A("v_add_u32 v3, 0x10000, v3")
    for i in range(16):
        A("v_mov_b32 v%d, 0" % (O + i))
    def vread(p, off):
        A("s_mov_b64 exec, s[20:21]")
        A("ds_read_b128 %s, v3 offset:%d" % (vr(VV[p], 4), off))
        A("ds_read_b128 %s, v3 offset:%d" % (vr(VV[p] + 4, 4), off + 512))
        A("s_mov_b64 exec, -1")
    A("ds_read_b128 %s, v2" % vr(K0, 4))
    vread(0, 0)
    A("s_waitcnt lgkmcnt(0)")
    A("v_mfma_f32_32x32x16_bf16 %s, %s, %s, %s" % (vr(S0, 16), vr(K0, 4), vr(Q, 4), vr(NEG, 16)))
    A("ds_read_b128 %s, v2 offset:1024" % vr(K1, 4))
    vread(1, 1024)
    A("s_nop 7")
    def body():
        for p in range(2):
            S = SS[p]
            A("s_waitcnt lgkmcnt(2)")
            A("v_mfma_f32_32x32x16_bf16 %s, %s, %s, %s" % (vr(SS[1 - p], 16), vr(KK[1 - p], 4), vr(Q, 4), vr(NEG, 16)))
            A("ds_read_b128 %s, v2 offset:%d" % (vr(KK[p], 4), 2048 + 1024 * p))
            for hf in range(2):
                for i in range(8):
                    A("v_exp_f32 v%d, v%d" % (S + 8 * hf + i, S + 8 * hf + i))
                for i in range(4):
                    A("v_cvt_pk_bf16_f32 v%d, v%d, v%d" % (P + 4 * hf + i, S + 8 * hf + 2 * i, S + 8 * hf + 2 * i + 1))
                A("s_nop 1")
                A("v_mfma_f32_32x32x16_bf16 %s, %s, %s, %s" % (vr(O, 16), vr(VV[p] + 4 * hf, 4), vr(P + 4 * hf, 4), vr(O, 16)))
            vread(p, 2048 + 1024 * p)
        A("v_add_u32 v2, 2048, v2")
        A("v_add_u32 v3, 2048, v3")
    A("s_cmp_lg_u32 s22, 0")
    A("s_cbranch_scc0 L_attn_phA")
    A("s_mov_b32 s23, 32")
    A("s_branch L_attn_loopB")
    A.label("L_attn_phA")
    A("s_mov_b32 s23, 4")
    A.label("L_attn_loopA")
    body()
    A("s_sub_u32 s23, s23, 1")
    A("s_cmp_lg_u32 s23, 0")
    A("s_cbranch_scc1 L_attn_loopA")
    A("s_waitcnt vmcnt(0)")
    A("s_barrier")
    A("s_mov_b32 s23, 28")
    A.label("L_attn_loopB")
    body()
    A("s_sub_u32 s23, s23, 1")
    A("s_cmp_lg_u32 s23, 0")
    A("s_cbranch_scc1 L_attn_loopB")
    A("s_waitcnt lgkmcnt(0)")
    A("s_nop 15")
    A("s_nop 3")
    A("v_cmp_gt_f32 vcc, 0x5f800000, v%d" % (O + 8))
    A("s_cmp_lg_u32 s22, 0")
    A("s_cbranch_scc1 L_attn_fin")
    A("s_nop 3")
    A("s_cmp_eq_u64 vcc, exec")
    A("s_cbranch_scc1 L_attn_fin")
    A("s_mov_b32 s22, 1")
    A("v_mov_b32 v2, v1")
    A("v_mov_b32 v6, 0xff800000")
    A("s_mov_b32 s23, 64")
    A.label("L_attn_maxp")
    A("ds_read_b128 %s, v2" % vr(K0, 4))
    A("s_waitcnt lgkmcnt(0)")
    A("v_mfma_f32_32x32x16_bf16 %s, %s, %s, 0" % (vr(S0, 16), vr(K0, 4), vr(Q, 4)))
    A("s_nop 15")
    A("s_nop 3")
    max16(6, S0, False)
    A("v_add_u32 v2, 1024, v2")
    A("s_sub_u32 s23, s23, 1")
    A("s_cmp_lg_u32 s23, 0")
    A("s_cbranch_scc1 L_attn_maxp")
    A("s_branch L_attn_setneg")
    A.label("L_attn_fin")
    A("v_rcp_f32 v6, v%d" % (O + 8))
    A("s_nop 0")
    for i in range(8):
        A("v_mul_f32 v%d, v%d, v6" % (O + i, O + i))
    for i in range(4):
        A("v_cvt_pk_bf16_f32 v%d, v%d, v%d" % (O + i, O + 2 * i, O + 2 * i + 1))
    A("s_lshl_b32 s10, s9, 5\ns_add_u32 s10, s10, s8\ns_lshl_b32 s10, s10, 10\ns_add_u32 s10, s10, %d" % OF)
    A("buffer_store_dwordx4 %s, v1, s[4:7], s10 offen" % vr(O, 4))
    kernel_end(name, 112)
    return 256, 131072 + 4096

def main():
    A.raw(".amdgcn_target \"amdgcn-amd-amdhsa--gfx950\"")
    A.raw(".text")
    gen_prep()
    g = {}
    g['qkv'] = gen_gemm("qkv_kernel", 'qkv')
    g['attn'] = gen_attn()
    g['wo'] = gen_gemm("wo_kernel", 'wo')
    g['w1'] = gen_gemm("w1_kernel", 'w1')
    g['w2'] = gen_gemm("w2_kernel", 'w2')
    g['w2f'] = gen_gemm("w2f_kernel", 'w2f')
    hdr = []
    hdr.append("; @launch kernel=prep_kernel grid=(240,1,1) block=(256,1,1) lds=512")
    seq = ['qkv', 'attn', 'wo', 'w1', 'w2', 'qkv', 'attn', 'wo', 'w1', 'w2f']
    nl = int(sys.argv[2]) if len(sys.argv) > 2 else len(seq)
    for k in seq[:nl]:
        nwg, lds = g[k]
        hdr.append("; @launch kernel=%s_kernel grid=(%d,1,1) block=(%d,1,1) lds=%d" % (k, nwg, 512 if k == 'attn' else 256, lds))
    out = "\n".join(hdr) + "\n" + A.text()
    out += ".section .rodata,\"a\"\n"
    for (name, vgpr, sgpr) in kernels:
        v = (vgpr + 3) // 4 * 4
        out += ".p2align 6\n.amdhsa_kernel %s\n" % name
        out += "  .amdhsa_next_free_vgpr %d\n  .amdhsa_next_free_sgpr %d\n  .amdhsa_accum_offset %d\n" % (v, sgpr, v)
        out += "  .amdhsa_group_segment_fixed_size 0\n  .amdhsa_kernarg_size 80\n  .amdhsa_user_sgpr_count 2\n"
        out += "  .amdhsa_user_sgpr_kernarg_segment_ptr 1\n  .amdhsa_system_sgpr_workgroup_id_x 1\n.end_amdhsa_kernel\n"
    path = sys.argv[1] if len(sys.argv) > 1 else "cdna_kernels/%s.s" % NAME
    open(path, "w").write(out)
    print("wrote", path, len(out), "bytes")

if __name__ == "__main__":
    main()
```

```python
import sys, struct

NAME = "interleave_layers__softmax_full_mha__dense_activation_mish__prompt"
KB = 1024
_off = 0
def alloc(n):
    global _off
    o = _off
    _off += (n + 4095) // 4096 * 4096
    return o

WQKV_F = alloc(48 * 32 * KB)
WO_F   = alloc(16 * 32 * KB)
W1_F   = alloc(56 * 32 * KB)
W2_F   = alloc(16 * 112 * KB)
CS_QKV = alloc(48 * 128)
CS_W1  = alloc(56 * 128)
B1F    = alloc(56 * 128)
XF     = alloc(64 * 32 * KB)
STATS  = alloc(2048 * 128)
QF     = alloc(32 * 64 * KB)
KF     = alloc(32 * 64 * KB)
VF     = alloc(32 * 64 * KB)
OF     = alloc(64 * 32 * KB)
HF     = alloc(64 * 112 * KB)
WS_SIZE = 268435456

def f32(x):
    return "0x%08x" % struct.unpack("<I", struct.pack("<f", x))[0]

LOG2E = 1.4426950408889634

class Asm:
    def __init__(self):
        self.lines = []
    def __call__(self, s):
        for l in s.strip("\n").split("\n"):
            self.lines.append("    " + l.strip())
    def label(self, l):
        self.lines.append(l + ":")
    def raw(self, s):
        self.lines.append(s)
    def text(self):
        return "\n".join(self.lines) + "\n"

A = Asm()
kernels = []

def vr(b, n):
    return "v[%d:%d]" % (b, b + n - 1)

import os
PROF = int(os.environ.get("PROF", "0"))
PROF_OFF = 128 * 1024 * 1024
_kid = [0]
def stamp(i):
    if PROF:
        A("s_memtime s[%d:%d]" % (80 + 2 * i, 81 + 2 * i))
        if i == 0:
            A("s_memrealtime s[92:93]")
def stamp_flush():
    if not PROF:
        return
    A("s_memtime s[88:89]")
    A("s_memrealtime s[94:95]")
    A("s_waitcnt vmcnt(0) lgkmcnt(0)")
    A("s_mov_b64 exec, 1")
    for i in range(16):
        A("v_mov_b32 v%d, s%d" % (8 + i, 80 + i))
    A("s_lshl_b32 s96, s2, 4\ns_add_u32 s96, s96, s3\ns_lshl_b32 s96, s96, 6\ns_add_u32 s96, s96, %d" % (PROF_OFF + _kid[0] * 1024 * 1024))
    A("v_mov_b32 v24, 0")
    for q in range(4):
        A("buffer_store_dwordx4 v[%d:%d], v24, s[4:7], s96 offen offset:%d" % (8 + 4 * q, 11 + 4 * q, 16 * q))
    _kid[0] += 1

def kernel_begin(name):
    A.raw(".globl %s" % name)
    A.raw(".p2align 8")
    A.raw(".type %s,@function" % name)
    A.label(name)

def kernel_end(name, vgpr, sgpr=100, agpr=0):
    A.label("L_%s_fin" % name)
    stamp_flush()
    A.label("L_%s_end" % name)
    A("s_endpgm")
    kernels.append((name, vgpr, sgpr, agpr))

def common_prologue(name, nwg, extra_loads=""):
    A("s_cmp_ge_u32 s2, %d" % nwg)
    A("s_cbranch_scc1 L_%s_end" % name)
    A("s_load_dwordx2 s[4:5], s[0:1], 72")
    if extra_loads:
        A(extra_loads)
    A("v_and_b32 v2, 63, v0")
    A("v_lshrrev_b32 v3, 6, v0")
    A("v_lshlrev_b32 v1, 4, v2")
    A("v_readfirstlane_b32 s3, v3")
    A("s_mov_b32 s6, 0x%x" % WS_SIZE)
    A("s_mov_b32 s7, 0x00020000")
    A("s_waitcnt lgkmcnt(0)")
    stamp(0)

def cross_half_add(va, vt):
    A("v_mov_b32 v%d, v%d" % (vt, va))
    A("s_nop 1")
    A("v_permlane32_swap_b32 v%d, v%d" % (va, vt))
    A("s_nop 1")
    A("v_add_f32 v%d, v%d, v%d" % (va, va, vt))

def stats_of_packed(regs, vsum, vsq, vt0, vt1):
    first = True
    for r in regs:
        A("v_lshlrev_b32 v%d, 16, v%d" % (vt0, r))
        A("v_and_b32 v%d, 0xffff0000, v%d" % (vt1, r))
        if first:
            A("v_add_f32 v%d, v%d, v%d" % (vsum, vt0, vt1))
            A("v_mul_f32 v%d, v%d, v%d" % (vsq, vt0, vt0))
            first = False
        else:
            A("v_add_f32 v%d, v%d, v%d" % (vsum, vsum, vt0))
            A("v_add_f32 v%d, v%d, v%d" % (vsum, vsum, vt1))
            A("v_fmac_f32 v%d, v%d, v%d" % (vsq, vt0, vt0))
        A("v_fmac_f32 v%d, v%d, v%d" % (vsq, vt1, vt1))
    cross_half_add(vsum, vt0)
    cross_half_add(vsq, vt0)

def gen_prep():
    name = "prep_kernel"
    kernel_begin(name)
    common_prologue(name, 240,
        "s_load_dwordx4 s[8:11], s[0:1], 0\n"
        "s_load_dwordx2 s[12:13], s[0:1], 16\n"
        "s_load_dwordx4 s[16:19], s[0:1], 32\n"
        "s_load_dwordx2 s[20:21], s[0:1], 48")
    A("v_and_b32 v4, 31, v2")
    A("v_lshrrev_b32 v5, 5, v2")
    A("s_mov_b32 s27, 0x00020000")
    A("s_cmp_ge_u32 s2, 176")
    A("s_cbranch_scc1 L_prep_x")
    A("s_lshl_b32 s30, s3, 3")
    A("s_cmp_ge_u32 s2, 48")
    A("s_cbranch_scc1 L_prep_r1")
    A("s_mov_b32 s24, s10\ns_mov_b32 s25, s11\ns_mov_b32 s26, %d" % (512 * 1536 * 2))
    A("s_mov_b32 s28, 3072\ns_mov_b32 s29, s2")
    A("s_lshl_b32 s31, s29, 5\ns_add_u32 s31, s31, s30\ns_lshl_b32 s31, s31, 10\ns_add_u32 s31, s31, %d" % WQKV_F)
    A("s_lshl_b32 s32, s29, 7\ns_add_u32 s32, s32, %d" % CS_QKV)
    A("s_mov_b32 s33, 1")
    A("s_branch L_prep_w")
    A.label("L_prep_r1")
    A("s_cmp_ge_u32 s2, 64")
    A("s_cbranch_scc1 L_prep_r2")
    A("s_mov_b32 s24, s12\ns_mov_b32 s25, s13\ns_mov_b32 s26, %d" % (512 * 512 * 2))
    A("s_mov_b32 s28, 1024\ns_sub_u32 s29, s2, 48")
    A("s_lshl_b32 s31, s29, 5\ns_add_u32 s31, s31, s30\ns_lshl_b32 s31, s31, 10\ns_add_u32 s31, s31, %d" % WO_F)
    A("s_mov_b32 s32, 0\ns_mov_b32 s33, 0")
    A("s_branch L_prep_w")
    A.label("L_prep_r2")
    A("s_cmp_ge_u32 s2, 120")
    A("s_cbranch_scc1 L_prep_r3")
    A("s_mov_b32 s24, s16\ns_mov_b32 s25, s17\ns_mov_b32 s26, %d" % (512 * 1792 * 2))
    A("s_mov_b32 s28, 3584\ns_sub_u32 s29, s2, 64")
    A("s_lshl_b32 s31, s29, 5\ns_add_u32 s31, s31, s30\ns_lshl_b32 s31, s31, 10\ns_add_u32 s31, s31, %d" % W1_F)
    A("s_lshl_b32 s32, s29, 7\ns_add_u32 s32, s32, %d" % CS_W1)
    A("s_mov_b32 s33, 2")
    A("s_branch L_prep_w")
    A.label("L_prep_r3")
    A("s_mov_b32 s24, s20\ns_mov_b32 s25, s21\ns_mov_b32 s26, %d" % (1792 * 512 * 2))
    A("s_mov_b32 s28, 1024")
    A("s_sub_u32 s34, s2, 120\ns_lshl_b32 s34, s34, 2\ns_add_u32 s34, s34, s3")
    A("s_and_b32 s29, s34, 15\ns_lshr_b32 s30, s34, 4\ns_lshl_b32 s30, s30, 3")
    A("s_mul_i32 s31, s29, 112\ns_add_u32 s31, s31, s30\ns_lshl_b32 s31, s31, 10\ns_add_u32 s31, s31, %d" % W2_F)
    A("s_mov_b32 s32, 0\ns_mov_b32 s33, 0")
    A.label("L_prep_w")
    A("s_lshl_b32 s34, s28, 2")
    A("v_mul_lo_u32 v6, v5, s34")
    A("s_lshl_b32 s35, s29, 5")
    A("v_add_u32 v7, s35, v4")
    A("v_lshl_add_u32 v10, v7, 1, v6")
    for idx, jj in enumerate((0, 1, 2, 3, 8, 9, 10, 11)):
        if idx == 0:
            continue
        A("s_mul_i32 s34, s28, %d" % jj)
        A("v_add_u32 v%d, s34, v10" % (10 + idx))
    A("s_lshl_b32 s34, s28, 4")
    A("s_mul_i32 s35, s30, s34")
    LD = 64
    for s in range(8):
        for j in range(8):
            A("buffer_load_ushort v%d, v%d, s[24:27], s35 offen" % (LD + 8 * s + j, 10 + j))
        if s < 7:
            A("s_add_u32 s35, s35, s34")
    A("s_add_u32 s36, s31, 4096")
    PK = 32
    for s in range(8):
        A("s_waitcnt vmcnt(%d)" % (56 - 8 * s + s))
        for q in range(4):
            A("v_lshl_or_b32 v%d, v%d, 16, v%d" % (PK + 4 * s + q, LD + 8 * s + 2 * q + 1, LD + 8 * s + 2 * q))
        A("buffer_store_dwordx4 %s, v1, s[4:7], s%d offen offset:%d" % (vr(PK + 4 * s, 4), 31 if s < 4 else 36, (s % 4) * 1024))
    A("s_cmp_eq_u32 s33, 0")
    A("s_cbranch_scc1 L_%s_end" % name)
    for i in range(64):
        A("v_lshlrev_b32 v%d, 16, v%d" % (LD + i, LD + i))
    A("v_add_f32 v20, v%d, v%d" % (LD, LD + 1))
    for i in range(2, 64):
        A("v_add_f32 v20, v20, v%d" % (LD + i))
    cross_half_add(20, 21)
    A("s_lshl_b32 s34, s3, 7")
    A("v_lshlrev_b32 v22, 2, v4")
    A("v_add_u32 v22, s34, v22")
    A("ds_write_b32 v22, v20")
    A("s_waitcnt lgkmcnt(0)")
    A("s_barrier")
    A("s_cmp_lg_u32 s3, 0")
    A("s_cbranch_scc1 L_%s_end" % name)
    A("v_lshlrev_b32 v22, 2, v4")
    A("ds_read_b32 v23, v22")
    A("ds_read_b32 v24, v22 offset:128")
    A("ds_read_b32 v25, v22 offset:256")
    A("ds_read_b32 v26, v22 offset:384")
    A("v_bfe_u32 v27, v4, 2, 1")
    A("v_lshlrev_b32 v27, 4, v27")
    A("v_lshrrev_b32 v28, 3, v4")
    A("v_lshl_add_u32 v27, v28, 2, v27")
    A("v_and_b32 v28, 3, v4")
    A("v_add_u32 v27, v27, v28")
    A("v_lshlrev_b32 v27, 2, v27")
    A("s_waitcnt lgkmcnt(0)")
    A("v_add_f32 v23, v23, v24")
    A("v_add_f32 v25, v25, v26")
    A("v_add_f32 v23, v23, v25")
    A("buffer_store_dword v23, v27, s[4:7], s32 offen")
    A("s_cmp_lg_u32 s33, 2")
    A("s_cbranch_scc1 L_%s_end" % name)
    A("s_mov_b32 s40, s18\ns_mov_b32 s41, s19\ns_mov_b32 s42, %d\ns_mov_b32 s43, 0x00020000" % (1792 * 2))
    A("v_lshlrev_b32 v7, 1, v7")
    A("buffer_load_ushort v29, v7, s[40:43], 0 offen")
    A("s_lshl_b32 s34, s29, 7\ns_add_u32 s34, s34, %d" % B1F)
    A("s_waitcnt vmcnt(0)")
    A("v_lshlrev_b32 v29, 16, v29")
    A("buffer_store_dword v29, v27, s[4:7], s34 offen")
    A("s_branch L_%s_end" % name)
    A.label("L_prep_x")
    A("s_mov_b32 s24, s8\ns_mov_b32 s25, s9\ns_mov_b32 s26, %d" % (2048 * 512 * 2))
    A("s_sub_u32 s29, s2, 176")
    A("s_lshl_b32 s34, s29, 5")
    A("v_add_u32 v6, s34, v4")
    A("v_lshlrev_b32 v7, 10, v6")
    A("v_lshl_add_u32 v7, v5, 3, v7")
    A("s_lshl_b32 s35, s3, 8")
    for s in range(8):
        A("buffer_load_dwordx2 %s, v7, s[24:27], s35 offen offset:%d" % (vr(PK + 4 * s, 2), 32 * s))
        A("buffer_load_dwordx2 %s, v7, s[24:27], s35 offen offset:%d" % (vr(PK + 4 * s + 2, 2), 32 * s + 16))
    A("s_lshl_b32 s31, s29, 5\ns_lshl_b32 s34, s3, 3\ns_add_u32 s31, s31, s34\ns_lshl_b32 s31, s31, 10\ns_add_u32 s31, s31, %d" % XF)
    A("s_add_u32 s36, s31, 4096")
    A("v_lshlrev_b32 v8, 4, v4")
    A("s_lshl_b32 s37, s29, 3\ns_lshl_b32 s38, s3, 1\ns_add_u32 s37, s37, s38\ns_lshl_b32 s37, s37, 9\ns_add_u32 s37, s37, %d" % STATS)
    A("s_waitcnt vmcnt(0)")
    for s in range(8):
        A("buffer_store_dwordx4 %s, v1, s[4:7], s%d offen offset:%d" % (vr(PK + 4 * s, 4), 31 if s < 4 else 36, (s % 4) * 1024))
    for q in range(4):
        stats_of_packed([PK + 8 * q + i for i in range(8)], 20 + 2 * q, 21 + 2 * q, 12, 13)
        A("buffer_store_dwordx2 %s, v8, s[4:7], s37 offen offset:%d" % (vr(20 + 2 * q, 2), 512 * (q >> 1) + 8 * (q & 1)))
    kernel_end(name, 128)

NBUF = 4
BUFSZ = 32768

def gen_gemm(name, kind):
    if kind in ('qkv', 'w1'):
        TMB, TNB, KC, KS = 4, 4, 4, 32
        ACT = XF
        WOFF = WQKV_F if kind == 'qkv' else W1_F
        NCOL = 12 if kind == 'qkv' else 14
        NWG = 16 * NCOL
    else:
        TMB, TNB, KC = 2, 2, 8
        KS = 32 if kind == 'wo' else 112
        ACT = OF if kind == 'wo' else HF
        WOFF = WO_F if kind == 'wo' else W2_F
        NCOL = 8
        NWG = 32 * NCOL
    MT, NT = TMB // 2, TNB // 2
    NC = KS // KC
    kernel_begin(name)
    common_prologue(name, NWG, "s_load_dwordx2 s[40:41], s[0:1], 56" if kind == 'w2f' else "")
    A("v_and_b32 v4, 31, v2")
    A("v_lshrrev_b32 v5, 5, v2")
    if kind in ('qkv', 'w1'):
        A("s_and_b32 s8, s2, 7\ns_lshr_b32 s9, s2, 3\ns_lshl_b32 s8, s8, 1\ns_and_b32 s10, s9, 1\ns_add_u32 s8, s8, s10\ns_lshr_b32 s9, s9, 1")
    else:
        A("s_and_b32 s8, s2, 7\ns_lshr_b32 s9, s2, 3\ns_lshl_b32 s8, s8, 2\ns_and_b32 s10, s9, 3\ns_add_u32 s8, s8, s10\ns_lshr_b32 s9, s9, 2")
    A("s_mul_i32 s8, s8, %d" % TMB)
    A("s_mul_i32 s9, s9, %d" % TNB)
    A("s_lshr_b32 s16, s3, 1")
    A("s_and_b32 s17, s3, 1")
    A("s_mul_i32 s18, s16, %d\ns_add_u32 s18, s18, s8" % MT)
    A("s_mul_i32 s19, s17, %d\ns_add_u32 s19, s19, s9" % NT)
    ACC = 16
    FR = ACC + 16 * MT * NT
    FSET = 4 * (MT + NT)
    NSET = 3
    EX = FR + NSET * FSET
    nmisc = 0
    if kind in ('qkv', 'w1'):
        ST = EX
        CSR = EX + 32
        BR = CSR + 16 * NT
        top = BR + 16 * NT
        A("s_lshl_b32 s20, s18, 5")
        A("v_add_u32 v6, s20, v4")
        A("v_lshlrev_b32 v6, 7, v6")
        A("v_lshl_add_u32 v6, v5, 6, v6")
        A("s_mov_b32 s21, %d" % STATS)
        for tbi in range(MT):
            for q in range(4):
                A("buffer_load_dwordx4 %s, v6, s[4:7], s21 offen offset:%d" % (vr(ST + 16 * tbi + 4 * q, 4), 16 * q))
            if tbi < MT - 1:
                A("s_add_u32 s21, s21, 4096")
        nmisc += 4 * MT
        A("v_lshlrev_b32 v7, 6, v5")
        A("s_lshl_b32 s22, s19, 7\ns_add_u32 s22, s22, %d" % (CS_QKV if kind == 'qkv' else CS_W1))
        for ni in range(NT):
            for q in range(4):
                A("buffer_load_dwordx4 %s, v7, s[4:7], s22 offen offset:%d" % (vr(CSR + 16 * ni + 4 * q, 4), 128 * ni + 16 * q))
        nmisc += 4 * NT
        if kind == 'qkv':
            A("v_bfe_u32 v8, v4, 2, 1")
            A("v_lshlrev_b32 v8, 4, v8")
            A("v_lshrrev_b32 v9, 3, v4")
            A("v_lshl_add_u32 v8, v9, 2, v8")
            A("v_and_b32 v9, 3, v4")
            A("v_add_u32 v8, v8, v9")
            A("v_lshlrev_b32 v8, 2, v8")
            for ni in range(NT):
                A("buffer_load_dword v%d, v8, s[4:7], s22 offen offset:%d" % (BR + ni, 128 * ni))
            nmisc += NT
        else:
            A("s_lshl_b32 s23, s19, 7\ns_add_u32 s23, s23, %d" % B1F)
            for ni in range(NT):
                for q in range(4):
                    A("buffer_load_dwordx4 %s, v7, s[4:7], s23 offen offset:%d" % (vr(BR + 16 * ni + 4 * q, 4), 128 * ni + 16 * q))
            nmisc += 4 * NT
    else:
        XO = EX
        top = XO + 8 + 16
        A("s_lshl_b32 s20, s18, 5\ns_lshl_b32 s21, s19, 1\ns_add_u32 s20, s20, s21\ns_lshl_b32 s20, s20, 10\ns_add_u32 s20, s20, %d" % XF)
        A("buffer_load_dwordx4 %s, v1, s[4:7], s20 offen" % vr(XO, 4))
        A("buffer_load_dwordx4 %s, v1, s[4:7], s20 offen offset:1024" % vr(XO + 4, 4))
        nmisc += 2
    A("s_and_b32 s14, s3, 1")
    A("s_mov_b32 s24, %d\ns_mov_b32 s25, %d" % (ACT, WOFF))
    A("s_cmp_lt_u32 s3, 2")
    A("s_cselect_b32 s15, s8, s9")
    A("s_cselect_b32 s24, s24, s25")
    if KC == 4:
        A("s_lshl_b32 s14, s14, 1")
    A("s_add_u32 s15, s15, s14")
    A("s_mul_i32 s15, s15, %d" % (KS * 1024))
    A("s_add_u32 s10, s24, s15")
    A("s_add_u32 s11, s10, %d" % (KS * 1024 if KC == 4 else 4096))
    A("s_lshl_b32 s12, s3, 13")
    A("s_add_u32 s13, s12, 4096")
    def dma(c):
        bo = (c % NBUF) * BUFSZ
        for u in range(2):
            A("s_add_u32 m0, s%d, %d" % (12 + u, bo))
            A("s_nop 0")
            for q in range(4):
                A("buffer_load_dwordx4 v1, s[4:7], s%d offen offset:%d lds" % (10 + u, 1024 * q))
        A("s_add_u32 s10, s10, %d\ns_add_u32 s11, s11, %d" % (KC * 1024, KC * 1024))
    issued = -1
    for c in range(min(NBUF - 1, NC)):
        dma(c)
        issued = c
    A("s_mul_i32 s26, s16, %d" % (MT * KC * 1024))
    A("v_add_u32 v10, s26, v1")
    A("s_mul_i32 s26, s17, %d\ns_add_u32 s26, s26, %d" % (NT * KC * 1024, TMB * KC * 1024))
    A("v_add_u32 v11, s26, v1")
    A("v_add_u32 v12, 0x10000, v10")
    A("v_add_u32 v13, 0x10000, v11")
    for i in range(16 * MT * NT):
        A("v_mov_b32 v%d, 0" % (ACC + i))
    isV = None
    if kind in ('qkv', 'w1'):
        A("s_waitcnt vmcnt(%d)" % (8 * (issued + 1) + nmisc - 4 * MT))
        for tbi in range(MT):
            b = ST + 16 * tbi
            for p in range(1, 8):
                A("v_add_f32 v%d, v%d, v%d" % (b, b, b + 2 * p))
                A("v_add_f32 v%d, v%d, v%d" % (b + 1, b + 1, b + 2 * p + 1))
            cross_half_add(b, b + 2)
            cross_half_add(b + 1, b + 2)
            A("v_mul_f32 v%d, %s, v%d" % (b, f32(1.0 / 512), b))
            A("v_mul_f32 v%d, %s, v%d" % (b + 1, f32(1.0 / 512), b + 1))
            A("v_fma_f32 v%d, -v%d, v%d, v%d" % (b + 1, b, b, b + 1))
            A("v_max_f32 v%d, 0, v%d" % (b + 1, b + 1))
            A("v_add_f32 v%d, %s, v%d" % (b + 1, f32(1e-5), b + 1))
            A("v_rsq_f32 v%d, v%d" % (b + 1, b + 1))
            A("s_nop 0")
            A("v_mul_f32 v%d, v%d, v%d" % (b, b, b + 1))
    def mfma(acc, a, b):
        A("v_mfma_f32_32x32x16_bf16 %s, %s, %s, %s" % (vr(acc, 16), vr(a, 4), vr(b, 4), vr(acc, 16)))
    def reads(c, s, st):
        bo = (c % NBUF) * BUFSZ
        for mi in range(MT):
            o = bo + mi * KC * 1024 + s * 1024
            A("ds_read_b128 %s, v%d offset:%d" % (vr(FR + st * FSET + 4 * mi, 4), 10 if o < 65536 else 12, o % 65536))
        for ni in range(NT):
            o = bo + ni * KC * 1024 + s * 1024
            A("ds_read_b128 %s, v%d offset:%d" % (vr(FR + st * FSET + 4 * MT + 4 * ni, 4), 11 if o < 65536 else 13, o % 65536))
    def mainloop(orient):
        issued_l = issued
        nr = MT + NT
        for c in range(NC):
            A("s_waitcnt vmcnt(%d)" % (8 * (issued_l - c)))
            A("s_barrier")
            if c == 0:
                stamp(1)
            if c + NBUF - 1 < NC:
                dma(c + NBUF - 1)
                issued_l = c + NBUF - 1
            reads(c, 0, 0)
            if KC > 1:
                reads(c, 1, 1)
            for s in range(KC):
                st = s % NSET
                if s + 2 < KC:
                    reads(c, s + 2, (s + 2) % NSET)
                pend = min(KC - 1 - s, 2)
                A("s_waitcnt lgkmcnt(%d)" % (pend * nr))
                for mi in range(MT):
                    for ni in range(NT):
                        fa = FR + st * FSET + 4 * mi
                        fb = FR + st * FSET + 4 * MT + 4 * ni
                        acc = ACC + 16 * (mi * NT + ni)
                        if orient == 1:
                            mfma(acc, fb, fa)
                        else:
                            mfma(acc, fa, fb)
        A("s_nop 15")
        A("s_nop 3")
        stamp(2)
    T0, T1, T2, T3 = 6, 7, 8, 9
    if kind == 'qkv':
        A("s_cmp_ge_u32 s9, 32")
        A("s_cbranch_scc1 L_%s_v" % name)
        mainloop(1)
        A("s_cmp_lt_u32 s9, 16")
        A("s_cselect_b32 s27, %s, 1.0" % f32(0.25 * LOG2E))
        A("s_mov_b32 s28, %d\ns_mov_b32 s29, %d" % (QF, KF - 32 * 64 * 1024))
        A("s_cselect_b32 s28, s28, s29")
        for mi in range(MT):
            b = ST + 16 * mi
            A("v_mul_f32 v%d, s27, v%d" % (T0, b + 1))
            A("v_mul_f32 v%d, s27, v%d" % (T1, b))
            for ni in range(NT):
                acc = ACC + 16 * (mi * NT + ni)
                for i in range(16):
                    A("v_mul_f32 v%d, v%d, v%d" % (acc + i, acc + i, T0))
                    A("v_fma_f32 v%d, -v%d, v%d, v%d" % (acc + i, T1, CSR + 16 * ni + i, acc + i))
                for i in range(8):
                    A("v_cvt_pk_bf16_f32 v%d, v%d, v%d" % (acc + i, acc + 2 * i, acc + 2 * i + 1))
                A("s_add_u32 s30, s19, %d\ns_lshl_b32 s30, s30, 7\ns_add_u32 s30, s30, s18\ns_add_u32 s30, s30, %d\ns_lshl_b32 s30, s30, 10\ns_add_u32 s30, s30, s28" % (ni, mi))
                A("s_add_u32 s31, s30, 65536")
                A("buffer_store_dwordx4 %s, v1, s[4:7], s30 offen" % vr(acc, 4))
                A("buffer_store_dwordx4 %s, v1, s[4:7], s31 offen" % vr(acc + 4, 4))
        A("s_branch L_%s_fin" % name)
        A.label("L_%s_v" % name)
        mainloop(2)
        SCR = NBUF * BUFSZ
        A("s_lshl_b32 s27, s3, 9")
        A("v_lshlrev_b32 v%d, 3, v4" % T0)
        A("v_add_u32 v%d, s27, v%d" % (T0, T0))
        A("v_add_u32 v%d, %d, v%d" % (T0, SCR, T0))
        for mi in range(MT):
            A("ds_write_b64 v%d, %s offset:%d" % (T0, vr(ST + 16 * mi, 2), 256 * mi))
        A("v_lshlrev_b32 v%d, 5, v5" % T1)
        A("v_add_u32 v%d, s27, v%d" % (T1, T1))
        A("v_add_u32 v%d, %d, v%d" % (T1, SCR, T1))
        A("s_waitcnt lgkmcnt(0)")
        A("v_lshrrev_b32 v%d, 4, v4" % T2)
        A("v_lshlrev_b32 v%d, 16, v%d" % (T2, T2))
        A("v_and_b32 v%d, 15, v4" % T3)
        A("v_lshl_add_u32 v%d, v5, 4, v%d" % (T3, T3))
        A("v_lshl_add_u32 v%d, v%d, 4, v%d" % (T2, T3, T2))
        TK = FR
        for mi in range(MT):
            for g in range(4):
                A("ds_read_b128 %s, v%d offset:%d" % (vr(TK + 8 * g, 4), T1, 256 * mi + 64 * g))
                A("ds_read_b128 %s, v%d offset:%d" % (vr(TK + 8 * g + 4, 4), T1, 256 * mi + 64 * g + 16))
            A("s_waitcnt lgkmcnt(0)")
            for ni in range(NT):
                acc = ACC + 16 * (mi * NT + ni)
                for i in range(16):
                    g, r = i >> 2, i & 3
                    mr = TK + 8 * g + 2 * r
                    A("v_mul_f32 v%d, v%d, v%d" % (acc + i, acc + i, mr + 1))
                    A("v_fma_f32 v%d, -v%d, v%d, v%d" % (acc + i, mr, BR + ni, acc + i))
                for i in range(8):
                    A("v_cvt_pk_bf16_f32 v%d, v%d, v%d" % (acc + i, acc + 2 * i, acc + 2 * i + 1))
                A("s_add_u32 s30, s19, %d\ns_sub_u32 s30, s30, 32\ns_lshl_b32 s30, s30, 7\ns_add_u32 s30, s30, s18\ns_add_u32 s30, s30, %d\ns_lshl_b32 s30, s30, 10\ns_add_u32 s30, s30, %d" % (ni, mi, VF))
                A("buffer_store_dwordx4 %s, v%d, s[4:7], s30 offen" % (vr(acc, 4), T2))
                A("buffer_store_dwordx4 %s, v%d, s[4:7], s30 offen offset:512" % (vr(acc + 4, 4), T2))
    elif kind == 'w1':
        mainloop(1)
        for mi in range(MT):
            b = ST + 16 * mi
            for ni in range(NT):
                acc = ACC + 16 * (mi * NT + ni)
                for i0 in range(0, 16, 4):
                    tt = [FR + 3 * k for k in range(4)]
                    for k in range(4):
                        i = i0 + k
                        A("v_fma_f32 v%d, -v%d, v%d, v%d" % (tt[k], b, CSR + 16 * ni + i, BR + 16 * ni + i))
                        A("v_fma_f32 v%d, v%d, v%d, v%d" % (acc + i, acc + i, b + 1, tt[k]))
                        A("v_mul_f32 v%d, %s, v%d" % (tt[k], f32(LOG2E), acc + i))
                        A("v_min_f32 v%d, %s, v%d" % (tt[k], f32(40.0), tt[k]))
                    for k in range(4):
                        A("v_exp_f32 v%d, v%d" % (tt[k], tt[k]))
                    for k in range(4):
                        A("v_add_f32 v%d, 2.0, v%d" % (tt[k] + 1, tt[k]))
                        A("v_mul_f32 v%d, v%d, v%d" % (tt[k], tt[k], tt[k] + 1))
                        A("v_add_f32 v%d, 2.0, v%d" % (tt[k] + 1, tt[k]))
                    for k in range(4):
                        A("v_rcp_f32 v%d, v%d" % (tt[k] + 1, tt[k] + 1))
                    for k in range(4):
                        i = i0 + k
                        A("v_mul_f32 v%d, v%d, v%d" % (acc + i, acc + i, tt[k]))
                        A("v_mul_f32 v%d, v%d, v%d" % (acc + i, acc + i, tt[k] + 1))
                for i in range(8):
                    A("v_cvt_pk_bf16_f32 v%d, v%d, v%d" % (acc + i, acc + 2 * i, acc + 2 * i + 1))
                A("s_add_u32 s30, s18, %d\ns_mul_i32 s30, s30, 112\ns_add_u32 s31, s19, %d\ns_lshl_b32 s31, s31, 1\ns_add_u32 s30, s30, s31\ns_lshl_b32 s30, s30, 10\ns_add_u32 s30, s30, %d" % (mi, ni, HF))
                A("buffer_store_dwordx4 %s, v1, s[4:7], s30 offen" % vr(acc, 4))
                A("buffer_store_dwordx4 %s, v1, s[4:7], s30 offen offset:1024" % vr(acc + 4, 4))
    else:
        mainloop(1)
        acc = ACC
        for i in range(8):
            A("v_lshlrev_b32 v%d, 16, v%d" % (T0, XO + i))
            A("v_and_b32 v%d, 0xffff0000, v%d" % (T1, XO + i))
            A("v_add_f32 v%d, v%d, v%d" % (acc + 2 * i, acc + 2 * i, T0))
            A("v_add_f32 v%d, v%d, v%d" % (acc + 2 * i + 1, acc + 2 * i + 1, T1))
        for i in range(8):
            A("v_cvt_pk_bf16_f32 v%d, v%d, v%d" % (acc + i, acc + 2 * i, acc + 2 * i + 1))
        if kind == 'w2f':
            A("s_mov_b32 s42, %d\ns_mov_b32 s43, 0x00020000" % (2048 * 512 * 2))
            A("s_lshl_b32 s30, s18, 5")
            A("v_add_u32 v%d, s30, v4" % T0)
            A("v_lshlrev_b32 v%d, 10, v%d" % (T0, T0))
            A("v_lshl_add_u32 v%d, v5, 3, v%d" % (T0, T0))
            A("s_lshl_b32 s31, s19, 6")
            for g in range(4):
                A("buffer_store_dwordx2 %s, v%d, s[40:43], s31 offen offset:%d" % (vr(acc + 2 * g, 2), T0, 16 * g))
        else:
            A("buffer_store_dwordx4 %s, v1, s[4:7], s20 offen" % vr(acc, 4))
            A("buffer_store_dwordx4 %s, v1, s[4:7], s20 offen offset:1024" % vr(acc + 4, 4))
            stats_of_packed([acc + i for i in range(8)], XO + 8, XO + 9, T0, T1)
            A("v_lshlrev_b32 v%d, 4, v4" % T0)
            A("s_lshl_b32 s30, s18, 3\ns_lshr_b32 s31, s19, 1\ns_add_u32 s30, s30, s31\ns_lshl_b32 s30, s30, 9\ns_and_b32 s31, s19, 1\ns_lshl_b32 s31, s31, 3\ns_add_u32 s31, s31, s30\ns_add_u32 s31, s31, %d" % STATS)
            A("buffer_store_dwordx2 %s, v%d, s[4:7], s31 offen" % (vr(XO + 8, 2), T0))
    kernel_end(name, max(top, 64))
    lds = NBUF * BUFSZ + (2048 if kind == 'qkv' else 0)
    return NWG, lds

class St:
    def __init__(self):
        self.n = {'vm': 0, 'lg': 0}
        self.tag = {}
    def copy(self):
        o = St(); o.n = dict(self.n); o.tag = dict(self.tag); return o

def I(text, cls=None, tag=None):
    return ('i', text, cls, tag)
def W(cls, tag):
    return ('w', cls, tag)

def emit(seq, st):
    for it in seq:
        if it[0] == 'i':
            _, text, cls, tag = it
            A(text)
            if cls:
                if tag is not None:
                    st.tag[tag] = st.n[cls]
                st.n[cls] += 1
        else:
            _, cls, tag = it
            n = st.n[cls] - st.tag[tag] - 1
            if cls == 'vm':
                A("s_waitcnt vmcnt(%d)" % min(n, 63))
            else:
                A("s_waitcnt lgkmcnt(%d)" % min(n, 15))

def L(txt):
    return [I(t.strip()) for t in txt.strip().split("\n")]

def s_cross_half_add(va, vt):
    return L("v_mov_b32 v%d, v%d\ns_nop 1\nv_permlane32_swap_b32 v%d, v%d\ns_nop 1\nv_add_f32 v%d, v%d, v%d" % (vt, va, va, vt, va, va, vt))

def gen_gemm2(name, kind):
    WOFF = WQKV_F if kind == 'qkv' else W1_F
    NCOL = 12 if kind == 'qkv' else 14
    NWG = 16 * NCOL
    kernel_begin(name)
    common_prologue(name, NWG)
    A("v_and_b32 v4, 31, v2")
    A("v_lshrrev_b32 v5, 5, v2")
    A("s_and_b32 s10, s2, 7\ns_lshr_b32 s9, s2, 3\ns_lshr_b32 s8, s10, 1\ns_lshl_b32 s8, s8, 2\ns_and_b32 s11, s9, 3\ns_add_u32 s8, s8, s11\ns_lshr_b32 s9, s9, 2\ns_and_b32 s10, s10, 1\ns_mul_i32 s10, s10, %d\ns_add_u32 s9, s9, s10" % (NCOL // 2))
    A("s_lshl_b32 s8, s8, 2")
    A("s_lshl_b32 s9, s9, 2")
    A("s_add_u32 s19, s9, s3")
    ACC = 16; AF = 80; CSR = 112; BR = 128; STF = 144; TMP = 152; STL = 168; TK = 184
    NV = 216
    st = St()
    A("s_add_u32 s10, s8, s3\ns_lshl_b32 s10, s10, 15\ns_add_u32 s10, s10, %d" % XF)
    A("s_lshl_b32 s12, s3, 15")
    A("s_lshl_b32 s13, s19, 15\ns_add_u32 s13, s13, %d" % WOFF)
    def chunk_loads(c):
        seq = [I("s_add_u32 m0, s12, %d" % (c * 4096)), I("s_nop 0")]
        for q in range(4):
            seq.append(I("buffer_load_dwordx4 v1, s[4:7], s10 offen offset:%d lds" % (1024 * q), 'vm', ('A', c)))
        for q in range(4):
            s_ = 4 * c + q
            seq.append(I("buffer_load_dwordx4 a[%d:%d], v1, s[4:7], s13 offen offset:%d" % (4 * s_, 4 * s_ + 3, 1024 * q), 'vm', ('B', c)))
        seq += L("s_add_u32 s10, s10, 4096\ns_add_u32 s13, s13, 4096")
        return seq
    PD = int(os.environ.get("PD", "2"))
    for c in range(PD):
        emit(chunk_loads(c), st)
    misc = []
    misc += L("s_add_u32 s21, s8, s3\ns_lshl_b32 s21, s21, 12\ns_add_u32 s21, s21, %d" % STATS)
    for q in range(4):
        misc.append(I("buffer_load_dwordx4 %s, v1, s[4:7], s21 offen offset:%d" % (vr(STL + 4 * q, 4), 1024 * q), 'vm', 'misc'))
    misc += L("v_lshlrev_b32 v14, 6, v5\ns_lshl_b32 s22, s19, 7\ns_add_u32 s22, s22, %d" % (CS_QKV if kind == 'qkv' else CS_W1))
    for q in range(4):
        misc.append(I("buffer_load_dwordx4 %s, v14, s[4:7], s22 offen offset:%d" % (vr(CSR + 4 * q, 4), 16 * q), 'vm', 'misc'))
    if kind == 'qkv':
        misc += L("v_bfe_u32 v15, v4, 2, 1\nv_lshlrev_b32 v15, 4, v15\nv_lshrrev_b32 v3, 3, v4\nv_lshl_add_u32 v15, v3, 2, v15\nv_and_b32 v3, 3, v4\nv_add_u32 v15, v15, v3\nv_lshlrev_b32 v15, 2, v15")
        misc.append(I("buffer_load_dword v%d, v15, s[4:7], s22 offen" % BR, 'vm', 'misc'))
    else:
        misc += L("s_lshl_b32 s23, s19, 7\ns_add_u32 s23, s23, %d" % B1F)
        for q in range(4):
            misc.append(I("buffer_load_dwordx4 %s, v14, s[4:7], s23 offen offset:%d" % (vr(BR + 4 * q, 4), 16 * q), 'vm', 'misc'))
    A("v_add_u32 v11, 0x10000, v1")
    SCR = 131072
    A("s_lshl_b32 s26, s3, 8")
    A("v_lshlrev_b32 v12, 3, v4")
    A("v_add_u32 v13, %d, v12" % SCR)
    A("v_add_u32 v12, s26, v13")
    def stats_stream():
        seq = [W('vm', 'misc')]
        b = STL
        for p in range(1, 8):
            seq.append(I("v_add_f32 v%d, v%d, v%d" % (b, b, b + 2 * p)))
            seq.append(I("v_add_f32 v%d, v%d, v%d" % (b + 1, b + 1, b + 2 * p + 1)))
        seq += s_cross_half_add(b, b + 2)
        seq += s_cross_half_add(b + 1, b + 2)
        seq += L("v_mul_f32 v%d, %s, v%d" % (b, f32(1.0 / 512), b))
        seq += L("v_mul_f32 v%d, %s, v%d" % (b + 1, f32(1.0 / 512), b + 1))
        seq += L("v_fma_f32 v%d, -v%d, v%d, v%d" % (b + 1, b, b, b + 1))
        seq += L("v_max_f32 v%d, 0, v%d" % (b + 1, b + 1))
        seq += L("v_add_f32 v%d, %s, v%d" % (b + 1, f32(1e-5), b + 1))
        seq += L("v_rsq_f32 v%d, v%d\ns_nop 0" % (b + 1, b + 1))
        seq += L("v_mul_f32 v%d, v%d, v%d" % (b, b, b + 1))
        seq.append(I("ds_write_b64 v12, %s" % vr(b, 2), 'lg', 'sw'))
        return seq
    def run(orient, epi, st):
        def rd(g):
            seq = []
            c = g >> 2
            if g % 4 == 0:
                seq.append(W('vm', ('A', c)))
                if c == 7:
                    seq.append(W('lg', 'sw'))
                seq.append(I("s_barrier"))
                if c == 7 and orient == 1:
                    for t in range(4):
                        seq.append(I("ds_read_b64 %s, v13 offset:%d" % (vr(STF + 2 * t, 2), 256 * t), 'lg', 'sr'))
            for mi in range(4):
                o = mi * 32768 + g * 1024
                seq.append(I("ds_read_b128 %s, v%d offset:%d" % (vr(AF + 16 * (g & 1) + 4 * mi, 4), 1 if o < 65536 else 11, o % 65536), 'lg', ('R', g, mi)))
            return seq
        side = {}
        for c in range(8):
            side[c] = chunk_loads(c + PD) if c + PD < 8 else []
        side[1] = side[1] + misc
        side[5] = side[5] + stats_stream()
        emit(rd(0), st)
        stamp(1)
        for g in range(32):
            c = g >> 2
            seq = []
            if g + 1 < 32:
                seq += rd(g + 1)
            if g % 4 == 0:
                seq.append(W('vm', ('B', c)))
            sd = side.get(c, [])
            for mi in range(4):
                seq.append(W('lg', ('R', g, mi)))
                acc = ACC + 16 * mi
                a_, b_ = "a[%d:%d]" % (4 * g, 4 * g + 3), vr(AF + 16 * (g & 1) + 4 * mi, 4)
                if orient == 2:
                    a_, b_ = b_, a_
                seq.append(I("v_mfma_f32_32x32x16_bf16 %s, %s, %s, %s" % (vr(acc, 16), a_, b_, "0" if g == 0 else vr(acc, 16))))
                slot = (g % 4) * 4 + mi
                take = -(-len(sd) // (14 - slot)) if slot < 14 else len(sd)
                seq += sd[:take]
                del sd[:take]
            emit(seq, st)
            if g == 15:
                stamp(2)
        A("s_nop 15")
        A("s_nop 3")
        stamp(3)
        for mi in range(4):
            emit(epi(mi), st)
    T0, T1, T2, T3 = 6, 7, 8, 9
    if kind == 'qkv':
        A("s_cmp_ge_u32 s9, 32")
        A("s_cbranch_scc1 L_%s_v" % name)
        A("s_cmp_lt_u32 s9, 16")
        A("s_cselect_b32 s27, %s, 1.0" % f32(0.25 * LOG2E))
        A("s_mov_b32 s28, %d\ns_mov_b32 s29, %d" % (QF, KF - 32 * 64 * 1024))
        A("s_cselect_b32 s28, s28, s29")
        A("s_lshl_b32 s30, s19, 7\ns_add_u32 s30, s30, s8\ns_lshl_b32 s30, s30, 10\ns_add_u32 s30, s30, s28\ns_add_u32 s31, s30, 65536")
        def epi_qk(mi):
            acc = ACC + 16 * mi
            seq = [W('lg', 'sr')] + L("v_mul_f32 v%d, s27, v%d\nv_mul_f32 v%d, s27, v%d" % (T0, STF + 2 * mi + 1, T1, STF + 2 * mi))
            for i in range(16):
                seq += L("v_mul_f32 v%d, v%d, v%d" % (acc + i, acc + i, T0))
                seq += L("v_fma_f32 v%d, -v%d, v%d, v%d" % (acc + i, T1, CSR + i, acc + i))
            for i in range(8):
                seq += L("v_cvt_pk_bf16_f32 v%d, v%d, v%d" % (acc + i, acc + 2 * i, acc + 2 * i + 1))
            seq.append(I("buffer_store_dwordx4 %s, v1, s[4:7], s30 offen offset:%d" % (vr(acc, 4), 1024 * mi), 'vm'))
            seq.append(I("buffer_store_dwordx4 %s, v1, s[4:7], s31 offen offset:%d" % (vr(acc + 4, 4), 1024 * mi), 'vm'))
            return seq
        misc_save = list(misc)
        run(1, epi_qk, st.copy())
        misc[:] = misc_save
        A("s_branch L_%s_fin" % name)
        A.label("L_%s_v" % name)
        A("v_lshlrev_b32 v%d, 5, v5" % T1)
        A("v_add_u32 v%d, %d, v%d" % (T1, SCR, T1))
        A("v_lshrrev_b32 v%d, 4, v4" % T2)
        A("v_lshlrev_b32 v%d, 16, v%d" % (T2, T2))
        A("v_and_b32 v%d, 15, v4" % T3)
        A("v_lshl_add_u32 v%d, v5, 4, v%d" % (T3, T3))
        A("v_lshl_add_u32 v%d, v%d, 4, v%d" % (T2, T3, T2))
        A("s_sub_u32 s30, s19, 32\ns_lshl_b32 s30, s30, 7\ns_add_u32 s30, s30, s8\ns_lshl_b32 s30, s30, 10\ns_add_u32 s30, s30, %d" % VF)
        def epi_v(mi):
            acc = ACC + 16 * mi
            seq = []
            for g in range(4):
                seq.append(I("ds_read_b128 %s, v%d offset:%d" % (vr(TK + 8 * g, 4), T1, 256 * mi + 64 * g), 'lg'))
                seq.append(I("ds_read_b128 %s, v%d offset:%d" % (vr(TK + 8 * g + 4, 4), T1, 256 * mi + 64 * g + 16), 'lg', ('tk', mi)))
            seq.append(W('lg', ('tk', mi)))
            for i in range(16):
                g, r = i >> 2, i & 3
                mr = TK + 8 * g + 2 * r
                seq += L("v_mul_f32 v%d, v%d, v%d" % (acc + i, acc + i, mr + 1))
                seq += L("v_fma_f32 v%d, -v%d, v%d, v%d" % (acc + i, mr, BR, acc + i))
            for i in range(8):
                seq += L("v_cvt_pk_bf16_f32 v%d, v%d, v%d" % (acc + i, acc + 2 * i, acc + 2 * i + 1))
            seq.append(I("buffer_store_dwordx4 %s, v%d, s[4:7], s30 offen offset:%d" % (vr(acc, 4), T2, 1024 * mi), 'vm'))
            seq.append(I("buffer_store_dwordx4 %s, v%d, s[4:7], s30 offen offset:%d" % (vr(acc + 4, 4), T2, 1024 * mi + 512), 'vm'))
            return seq
        run(2, epi_v, st.copy())
    else:
        A("s_mul_i32 s30, s8, 112\ns_lshl_b32 s31, s19, 1\ns_add_u32 s30, s30, s31\ns_lshl_b32 s30, s30, 10\ns_add_u32 s30, s30, %d" % HF)
        def epi_w1(mi):
            acc = ACC + 16 * mi
            b = STF + 2 * mi
            seq = [W('lg', 'sr')]
            for i0 in range(0, 16, 4):
                tt = [TMP + 2 * k for k in range(4)]
                for k in range(4):
                    i = i0 + k
                    seq += L("v_fma_f32 v%d, -v%d, v%d, v%d" % (tt[k], b, CSR + i, BR + i))
                    seq += L("v_fma_f32 v%d, v%d, v%d, v%d" % (acc + i, acc + i, b + 1, tt[k]))
                    seq += L("v_mul_f32 v%d, %s, v%d" % (tt[k], f32(LOG2E), acc + i))
                for k in range(4):
                    seq += L("v_exp_f32 v%d, v%d" % (tt[k], tt[k]))
                for k in range(4):
                    seq += L("v_add_f32 v%d, 2.0, v%d" % (tt[k] + 1, tt[k]))
                    seq += L("v_fma_f32 v%d, v%d, v%d, 2.0" % (tt[k], tt[k], tt[k] + 1))
                for k in range(4):
                    seq += L("v_rcp_f32 v%d, v%d" % (tt[k], tt[k]))
                for k in range(4):
                    i = i0 + k
                    seq += L("v_mul_f32 v%d, v%d, v%d" % (tt[k], acc + i, tt[k]))
                for k in range(4):
                    i = i0 + k
                    seq += L("v_fma_f32 v%d, v%d, -2.0, v%d" % (acc + i, tt[k], acc + i))
            for i in range(8):
                seq += L("v_cvt_pk_bf16_f32 v%d, v%d, v%d" % (acc + i, acc + 2 * i, acc + 2 * i + 1))
            seq.append(I("buffer_store_dwordx4 %s, v1, s[4:7], s30 offen" % vr(acc, 4), 'vm'))
            seq.append(I("buffer_store_dwordx4 %s, v1, s[4:7], s30 offen offset:1024" % vr(acc + 4, 4), 'vm'))
            seq.append(I("s_add_u32 s30, s30, %d" % (112 * 1024)))
            return seq
        run(1, epi_w1, st)
    kernel_end(name, NV, agpr=128)
    return NWG, 131072 + 1024

def gen_attn():
    name = "attn_kernel"
    kernel_begin(name)
    common_prologue(name, 256)
    A("v_and_b32 v4, 31, v2")
    A("v_lshrrev_b32 v5, 5, v2")
    A("s_and_b32 s8, s2, 7\ns_lshr_b32 s9, s2, 3\ns_lshl_b32 s8, s8, 2\ns_and_b32 s10, s9, 3\ns_add_u32 s8, s8, s10\ns_lshr_b32 s9, s9, 2")
    A("s_lshl_b32 s9, s9, 3\ns_add_u32 s9, s9, s3")
    Q = 8; NEG = 12; S0 = 28; S1 = 44; P = 60; K0 = 68; K1 = 72; V0 = 76; V1 = 84; O = 92
    SS = (S0, S1); KK = (K0, K1); VV = (V0, V1)
    A("s_lshl_b32 s10, s8, 6\ns_add_u32 s11, s10, s9\ns_lshl_b32 s11, s11, 10\ns_add_u32 s11, s11, %d" % QF)
    A("buffer_load_dwordx4 %s, v1, s[4:7], s11 offen" % vr(Q, 4))
    A("s_lshl_b32 s10, s10, 10")
    A("s_add_u32 s12, s10, %d" % KF)
    A("s_add_u32 s13, s10, %d" % VF)
    A("s_lshl_b32 s14, s3, 11")
    A("s_add_u32 s15, s12, s14")
    A("s_add_u32 s16, s13, s14")
    A("s_mov_b32 m0, s14")
    A("s_nop 0")
    A("buffer_load_dwordx4 v1, s[4:7], s15 offen lds")
    A("buffer_load_dwordx4 v1, s[4:7], s15 offen offset:1024 lds")
    A("s_add_u32 m0, s14, 0x10000")
    A("s_nop 0")
    A("buffer_load_dwordx4 v1, s[4:7], s16 offen lds")
    A("buffer_load_dwordx4 v1, s[4:7], s16 offen offset:1024 lds")
    A("s_mul_i32 s14, s3, 6144\ns_add_u32 s14, s14, 16384")
    A("s_add_u32 s15, s12, s14")
    A("s_add_u32 s16, s13, s14")
    A("s_add_u32 s17, s15, 4096")
    A("s_add_u32 s18, s16, 4096")
    A("s_mov_b32 m0, s14")
    A("s_nop 0")
    for q in range(4):
        A("buffer_load_dwordx4 v1, s[4:7], s15 offen offset:%d lds" % (1024 * q))
    A("s_add_u32 m0, s14, 4096")
    A("s_nop 0")
    for q in range(2):
        A("buffer_load_dwordx4 v1, s[4:7], s17 offen offset:%d lds" % (1024 * q))
    A("s_add_u32 m0, s14, 0x10000")
    A("s_nop 0")
    for q in range(4):
        A("buffer_load_dwordx4 v1, s[4:7], s16 offen offset:%d lds" % (1024 * q))
    A("s_add_u32 m0, s14, 0x11000")
    A("s_nop 0")
    for q in range(2):
        A("buffer_load_dwordx4 v1, s[4:7], s18 offen offset:%d lds" % (1024 * q))
    A("v_and_b32 v6, 27, v4")
    A("v_cmp_eq_u32 vcc, 16, v6")
    A("v_mov_b32 v7, 0x3f803f80")
    A("s_nop 1")
    A("v_cndmask_b32 v6, 0, v7, vcc")
    for i in range(16):
        A("v_mov_b32 v%d, v6" % (V0 + i))
    A("s_mov_b32 s20, 0xffff\ns_mov_b32 s21, 0xffff")
    A("s_mov_b32 s22, 0")
    A("s_waitcnt vmcnt(12)")
    A("s_barrier")
    stamp(1)
    A("ds_read_b128 %s, v1" % vr(K0, 4))
    A("s_waitcnt lgkmcnt(0)")
    A("v_mfma_f32_32x32x16_bf16 %s, %s, %s, 0" % (vr(S0, 16), vr(K0, 4), vr(Q, 4)))
    A("s_nop 15")
    A("s_nop 3")
    def max16(dst, S, init=False):
        if init:
            A("v_max3_f32 v%d, v%d, v%d, v%d" % (dst, S, S + 1, S + 2))
            A("v_max_f32 v%d, v%d, v%d" % (dst, dst, S + 3))
            rest = list(range(4, 16))
        else:
            rest = list(range(0, 16))
        for i in range(0, len(rest), 2):
            A("v_max3_f32 v%d, v%d, v%d, v%d" % (dst, dst, S + rest[i], S + rest[i + 1]))
    max16(6, S0, True)
    A.label("L_attn_setneg")
    A("v_mov_b32 v7, v6")
    A("s_nop 1")
    A("v_permlane32_swap_b32 v6, v7")
    A("s_nop 1")
    A("v_max_f32 v6, v6, v7")
    A("v_sub_f32 v%d, 0, v6" % NEG)
    for i in range(1, 16):
        A("v_mov_b32 v%d, v%d" % (NEG + i, NEG))
    A("v_mov_b32 v2, v1")
    A("v_lshl_add_u32 v3, v5, 4, v4")
    A("v_lshlrev_b32 v3, 4, v3")
    A("v_add_u32 v3, 0x10000, v3")
    for i in range(16):
        A("v_mov_b32 v%d, 0" % (O + i))
    def vread(p, off):
        A("s_mov_b64 exec, s[20:21]")
        A("ds_read_b128 %s, v3 offset:%d" % (vr(VV[p], 4), off))
        A("ds_read_b128 %s, v3 offset:%d" % (vr(VV[p] + 4, 4), off + 512))
        A("s_mov_b64 exec, -1")
    A("ds_read_b128 %s, v2" % vr(K0, 4))
    vread(0, 0)
    A("s_waitcnt lgkmcnt(0)")
    A("v_mfma_f32_32x32x16_bf16 %s, %s, %s, %s" % (vr(S0, 16), vr(K0, 4), vr(Q, 4), vr(NEG, 16)))
    A("ds_read_b128 %s, v2 offset:1024" % vr(K1, 4))
    vread(1, 1024)
    A("s_nop 7")
    def body():
        for p in range(2):
            S = SS[p]
            A("s_waitcnt lgkmcnt(2)")
            A("v_mfma_f32_32x32x16_bf16 %s, %s, %s, %s" % (vr(SS[1 - p], 16), vr(KK[1 - p], 4), vr(Q, 4), vr(NEG, 16)))
            A("ds_read_b128 %s, v2 offset:%d" % (vr(KK[p], 4), 2048 + 1024 * p))
            for hf in range(2):
                for i in range(8):
                    A("v_exp_f32 v%d, v%d" % (S + 8 * hf + i, S + 8 * hf + i))
                for i in range(4):
                    A("v_cvt_pk_bf16_f32 v%d, v%d, v%d" % (P + 4 * hf + i, S + 8 * hf + 2 * i, S + 8 * hf + 2 * i + 1))
                A("s_nop 1")
                A("v_mfma_f32_32x32x16_bf16 %s, %s, %s, %s" % (vr(O, 16), vr(VV[p] + 4 * hf, 4), vr(P + 4 * hf, 4), vr(O, 16)))
            vread(p, 2048 + 1024 * p)
        A("v_add_u32 v2, 2048, v2")
        A("v_add_u32 v3, 2048, v3")
    A("s_cmp_lg_u32 s22, 0")
    A("s_cbranch_scc0 L_attn_phA")
    A("s_mov_b32 s23, 32")
    A("s_branch L_attn_loopB")
    A.label("L_attn_phA")
    A("s_mov_b32 s23, 4")
    A.label("L_attn_loopA")
    body()
    A("s_sub_u32 s23, s23, 1")
    A("s_cmp_lg_u32 s23, 0")
    A("s_cbranch_scc1 L_attn_loopA")
    stamp(2)
    A("s_waitcnt vmcnt(0)")
    A("s_barrier")
    stamp(3)
    A("s_mov_b32 s23, 28")
    A.label("L_attn_loopB")
    body()
    A("s_sub_u32 s23, s23, 1")
    A("s_cmp_lg_u32 s23, 0")
    A("s_cbranch_scc1 L_attn_loopB")
    A("s_waitcnt lgkmcnt(0)")
    A("s_nop 15")
    A("s_nop 3")
    A("v_cmp_gt_f32 vcc, 0x5f800000, v%d" % (O + 8))
    A("s_cmp_lg_u32 s22, 0")
    A("s_cbranch_scc1 L_attn_fin")
    A("s_nop 3")
    A("s_cmp_eq_u64 vcc, exec")
    A("s_cbranch_scc1 L_attn_fin")
    A("s_mov_b32 s22, 1")
    A("v_mov_b32 v2, v1")
    A("v_mov_b32 v6, 0xff800000")
    A("s_mov_b32 s23, 64")
    A.label("L_attn_maxp")
    A("ds_read_b128 %s, v2" % vr(K0, 4))
    A("s_waitcnt lgkmcnt(0)")
    A("v_mfma_f32_32x32x16_bf16 %s, %s, %s, 0" % (vr(S0, 16), vr(K0, 4), vr(Q, 4)))
    A("s_nop 15")
    A("s_nop 3")
    max16(6, S0, False)
    A("v_add_u32 v2, 1024, v2")
    A("s_sub_u32 s23, s23, 1")
    A("s_cmp_lg_u32 s23, 0")
    A("s_cbranch_scc1 L_attn_maxp")
    A("s_branch L_attn_setneg")
    A.label("L_attn_fin")
    A("v_rcp_f32 v6, v%d" % (O + 8))
    A("s_nop 0")
    for i in range(8):
        A("v_mul_f32 v%d, v%d, v6" % (O + i, O + i))
    for i in range(4):
        A("v_cvt_pk_bf16_f32 v%d, v%d, v%d" % (O + i, O + 2 * i, O + 2 * i + 1))
    A("s_lshl_b32 s10, s9, 5\ns_add_u32 s10, s10, s8\ns_lshl_b32 s10, s10, 10\ns_add_u32 s10, s10, %d" % OF)
    A("buffer_store_dwordx4 %s, v1, s[4:7], s10 offen" % vr(O, 4))
    kernel_end(name, 112)
    return 256, 131072 + 4096

def main():
    A.raw(".amdgcn_target \"amdgcn-amd-amdhsa--gfx950\"")
    A.raw(".text")
    gen_prep()
    g = {}
    g['qkv'] = gen_gemm2("qkv_kernel", 'qkv')
    g['attn'] = gen_attn()
    g['wo'] = gen_gemm("wo_kernel", 'wo')
    g['w1'] = gen_gemm2("w1_kernel", 'w1')
    g['w2'] = gen_gemm("w2_kernel", 'w2')
    g['w2f'] = gen_gemm("w2f_kernel", 'w2f')
    hdr = []
    hdr.append("; @launch kernel=prep_kernel grid=(240,1,1) block=(256,1,1) lds=512")
    seq = ['qkv', 'attn', 'wo', 'w1', 'w2', 'qkv', 'attn', 'wo', 'w1', 'w2f']
    nl = int(sys.argv[2]) if len(sys.argv) > 2 else len(seq)
    for k in seq[:nl]:
        nwg, lds = g[k]
        hdr.append("; @launch kernel=%s_kernel grid=(%d,1,1) block=(%d,1,1) lds=%d" % (k, nwg, 512 if k == 'attn' else 256, lds))
    out = "\n".join(hdr) + "\n" + A.text()
    out += ".section .rodata,\"a\"\n"
    for (name, vgpr, sgpr, agpr) in kernels:
        v = (vgpr + 3) // 4 * 4
        out += ".p2align 6\n.amdhsa_kernel %s\n" % name
        out += "  .amdhsa_next_free_vgpr %d\n  .amdhsa_next_free_sgpr %d\n  .amdhsa_accum_offset %d\n" % (v + agpr, sgpr, v)
        out += "  .amdhsa_group_segment_fixed_size 0\n  .amdhsa_kernarg_size 80\n  .amdhsa_user_sgpr_count 2\n"
        out += "  .amdhsa_user_sgpr_kernarg_segment_ptr 1\n  .amdhsa_system_sgpr_workgroup_id_x 1\n.end_amdhsa_kernel\n"
    path = sys.argv[1] if len(sys.argv) > 1 else "cdna_kernels/%s.s" % NAME
    open(path, "w").write(out)
    print("wrote", path, len(out), "bytes")

if __name__ == "__main__":
    main()
```

```python
import sys, struct

NAME = "interleave_layers__softmax_full_mha__dense_activation_mish__prompt"
KB = 1024
_off = 0
def alloc(n):
    global _off
    o = _off
    _off += (n + 4095) // 4096 * 4096
    return o

WQKV_F = alloc(48 * 32 * KB)
WO_F   = alloc(16 * 32 * KB)
W1_F   = alloc(56 * 32 * KB)
W2_F   = alloc(16 * 112 * KB)
CS_QKV = alloc(48 * 128)
CS_W1  = alloc(56 * 128)
B1F    = alloc(56 * 128)
XF     = alloc(64 * 32 * KB)
STATS  = alloc(2048 * 128)
QF     = alloc(32 * 64 * KB)
KF     = alloc(32 * 64 * KB)
VF     = alloc(32 * 64 * KB)
OF     = alloc(64 * 32 * KB)
HF     = alloc(64 * 112 * KB)
WS_SIZE = 268435456

def f32(x):
    return "0x%08x" % struct.unpack("<I", struct.pack("<f", x))[0]

LOG2E = 1.4426950408889634

class Asm:
    def __init__(self):
        self.lines = []
    def __call__(self, s):
        for l in s.strip("\n").split("\n"):
            self.lines.append("    " + l.strip())
    def label(self, l):
        self.lines.append(l + ":")
    def raw(self, s):
        self.lines.append(s)
    def text(self):
        return "\n".join(self.lines) + "\n"

A = Asm()
kernels = []

def vr(b, n):
    return "v[%d:%d]" % (b, b + n - 1)

import os
PROF = int(os.environ.get("PROF", "0"))
PROF_OFF = 128 * 1024 * 1024
_kid = [0]
def stamp(i):
    if PROF:
        A("s_memtime s[%d:%d]" % (80 + 2 * i, 81 + 2 * i))
        if i == 0:
            A("s_memrealtime s[92:93]")
def stamp_flush():
    if not PROF:
        return
    A("s_memtime s[88:89]")
    A("s_memrealtime s[94:95]")
    A("s_waitcnt vmcnt(0) lgkmcnt(0)")
    A("s_mov_b64 exec, 1")
    for i in range(16):
        A("v_mov_b32 v%d, s%d" % (8 + i, 80 + i))
    A("s_lshl_b32 s96, s2, 4\ns_add_u32 s96, s96, s3\ns_lshl_b32 s96, s96, 6\ns_add_u32 s96, s96, %d" % (PROF_OFF + _kid[0] * 1024 * 1024))
    A("v_mov_b32 v24, 0")
    for q in range(4):
        A("buffer_store_dwordx4 v[%d:%d], v24, s[4:7], s96 offen offset:%d" % (8 + 4 * q, 11 + 4 * q, 16 * q))
    _kid[0] += 1

def kernel_begin(name):
    A.raw(".globl %s" % name)
    A.raw(".p2align 8")
    A.raw(".type %s,@function" % name)
    A.label(name)

def kernel_end(name, vgpr, sgpr=100, agpr=0):
    A.label("L_%s_fin" % name)
    stamp_flush()
    A.label("L_%s_end" % name)
    A("s_endpgm")
    kernels.append((name, vgpr, sgpr, agpr))

def common_prologue(name, nwg, extra_loads=""):
    A("s_cmp_ge_u32 s2, %d" % nwg)
    A("s_cbranch_scc1 L_%s_end" % name)
    A("s_load_dwordx2 s[4:5], s[0:1], 72")
    if extra_loads:
        A(extra_loads)
    A("v_and_b32 v2, 63, v0")
    A("v_lshrrev_b32 v3, 6, v0")
    A("v_lshlrev_b32 v1, 4, v2")
    A("v_readfirstlane_b32 s3, v3")
    A("s_mov_b32 s6, 0x%x" % WS_SIZE)
    A("s_mov_b32 s7, 0x00020000")
    A("s_waitcnt lgkmcnt(0)")
    stamp(0)

def cross_half_add(va, vt):
    A("v_mov_b32 v%d, v%d" % (vt, va))
    A("s_nop 1")
    A("v_permlane32_swap_b32 v%d, v%d" % (va, vt))
    A("s_nop 1")
    A("v_add_f32 v%d, v%d, v%d" % (va, va, vt))

def stats_of_packed(regs, vsum, vsq, vt0, vt1):
    first = True
    for r in regs:
        A("v_lshlrev_b32 v%d, 16, v%d" % (vt0, r))
        A("v_and_b32 v%d, 0xffff0000, v%d" % (vt1, r))
        if first:
            A("v_add_f32 v%d, v%d, v%d" % (vsum, vt0, vt1))
            A("v_mul_f32 v%d, v%d, v%d" % (vsq, vt0, vt0))
            first = False
        else:
            A("v_add_f32 v%d, v%d, v%d" % (vsum, vsum, vt0))
            A("v_add_f32 v%d, v%d, v%d" % (vsum, vsum, vt1))
            A("v_fmac_f32 v%d, v%d, v%d" % (vsq, vt0, vt0))
        A("v_fmac_f32 v%d, v%d, v%d" % (vsq, vt1, vt1))
    cross_half_add(vsum, vt0)
    cross_half_add(vsq, vt0)

def gen_prep():
    name = "prep_kernel"
    kernel_begin(name)
    common_prologue(name, 240,
        "s_load_dwordx4 s[8:11], s[0:1], 0\n"
        "s_load_dwordx2 s[12:13], s[0:1], 16\n"
        "s_load_dwordx4 s[16:19], s[0:1], 32\n"
        "s_load_dwordx2 s[20:21], s[0:1], 48")
    A("v_and_b32 v4, 31, v2")
    A("v_lshrrev_b32 v5, 5, v2")
    A("s_mov_b32 s27, 0x00020000")
    A("s_cmp_ge_u32 s2, 176")
    A("s_cbranch_scc1 L_prep_x")
    A("s_lshl_b32 s30, s3, 3")
    A("s_cmp_ge_u32 s2, 48")
    A("s_cbranch_scc1 L_prep_r1")
    A("s_mov_b32 s24, s10\ns_mov_b32 s25, s11\ns_mov_b32 s26, %d" % (512 * 1536 * 2))
    A("s_mov_b32 s28, 3072\ns_mov_b32 s29, s2")
    A("s_lshl_b32 s31, s29, 5\ns_add_u32 s31, s31, s30\ns_lshl_b32 s31, s31, 10\ns_add_u32 s31, s31, %d" % WQKV_F)
    A("s_lshl_b32 s32, s29, 7\ns_add_u32 s32, s32, %d" % CS_QKV)
    A("s_mov_b32 s33, 1")
    A("s_branch L_prep_w")
    A.label("L_prep_r1")
    A("s_cmp_ge_u32 s2, 64")
    A("s_cbranch_scc1 L_prep_r2")
    A("s_mov_b32 s24, s12\ns_mov_b32 s25, s13\ns_mov_b32 s26, %d" % (512 * 512 * 2))
    A("s_mov_b32 s28, 1024\ns_sub_u32 s29, s2, 48")
    A("s_lshl_b32 s31, s29, 5\ns_add_u32 s31, s31, s30\ns_lshl_b32 s31, s31, 10\ns_add_u32 s31, s31, %d" % WO_F)
    A("s_mov_b32 s32, 0\ns_mov_b32 s33, 0")
    A("s_branch L_prep_w")
    A.label("L_prep_r2")
    A("s_cmp_ge_u32 s2, 120")
    A("s_cbranch_scc1 L_prep_r3")
    A("s_mov_b32 s24, s16\ns_mov_b32 s25, s17\ns_mov_b32 s26, %d" % (512 * 1792 * 2))
    A("s_mov_b32 s28, 3584\ns_sub_u32 s29, s2, 64")
    A("s_lshl_b32 s31, s29, 5\ns_add_u32 s31, s31, s30\ns_lshl_b32 s31, s31, 10\ns_add_u32 s31, s31, %d" % W1_F)
    A("s_lshl_b32 s32, s29, 7\ns_add_u32 s32, s32, %d" % CS_W1)
    A("s_mov_b32 s33, 2")
    A("s_branch L_prep_w")
    A.label("L_prep_r3")
    A("s_mov_b32 s24, s20\ns_mov_b32 s25, s21\ns_mov_b32 s26, %d" % (1792 * 512 * 2))
    A("s_mov_b32 s28, 1024")
    A("s_sub_u32 s34, s2, 120\ns_lshl_b32 s34, s34, 2\ns_add_u32 s34, s34, s3")
    A("s_and_b32 s29, s34, 15\ns_lshr_b32 s30, s34, 4\ns_lshl_b32 s30, s30, 3")
    A("s_mul_i32 s31, s29, 112\ns_add_u32 s31, s31, s30\ns_lshl_b32 s31, s31, 10\ns_add_u32 s31, s31, %d" % W2_F)
    A("s_mov_b32 s32, 0\ns_mov_b32 s33, 0")
    A.label("L_prep_w")
    A("s_lshl_b32 s34, s28, 2")
    A("v_mul_lo_u32 v6, v5, s34")
    A("s_lshl_b32 s35, s29, 5")
    A("v_add_u32 v7, s35, v4")
    A("v_lshl_add_u32 v10, v7, 1, v6")
    for idx, jj in enumerate((0, 1, 2, 3, 8, 9, 10, 11)):
        if idx == 0:
            continue
        A("s_mul_i32 s34, s28, %d" % jj)
        A("v_add_u32 v%d, s34, v10" % (10 + idx))
    A("s_lshl_b32 s34, s28, 4")
    A("s_mul_i32 s35, s30, s34")
    LD = 64
    for s in range(8):
        for j in range(8):
            A("buffer_load_ushort v%d, v%d, s[24:27], s35 offen" % (LD + 8 * s + j, 10 + j))
        if s < 7:
            A("s_add_u32 s35, s35, s34")
    A("s_add_u32 s36, s31, 4096")
    PK = 32
    for s in range(8):
        A("s_waitcnt vmcnt(%d)" % (56 - 8 * s + s))
        for q in range(4):
            A("v_lshl_or_b32 v%d, v%d, 16, v%d" % (PK + 4 * s + q, LD + 8 * s + 2 * q + 1, LD + 8 * s + 2 * q))
        A("buffer_store_dwordx4 %s, v1, s[4:7], s%d offen offset:%d" % (vr(PK + 4 * s, 4), 31 if s < 4 else 36, (s % 4) * 1024))
    A("s_cmp_eq_u32 s33, 0")
    A("s_cbranch_scc1 L_%s_end" % name)
    for i in range(64):
        A("v_lshlrev_b32 v%d, 16, v%d" % (LD + i, LD + i))
    A("v_add_f32 v20, v%d, v%d" % (LD, LD + 1))
    for i in range(2, 64):
        A("v_add_f32 v20, v20, v%d" % (LD + i))
    cross_half_add(20, 21)
    A("s_lshl_b32 s34, s3, 7")
    A("v_lshlrev_b32 v22, 2, v4")
    A("v_add_u32 v22, s34, v22")
    A("ds_write_b32 v22, v20")
    A("s_waitcnt lgkmcnt(0)")
    A("s_barrier")
    A("s_cmp_lg_u32 s3, 0")
    A("s_cbranch_scc1 L_%s_end" % name)
    A("v_lshlrev_b32 v22, 2, v4")
    A("ds_read_b32 v23, v22")
    A("ds_read_b32 v24, v22 offset:128")
    A("ds_read_b32 v25, v22 offset:256")
    A("ds_read_b32 v26, v22 offset:384")
    A("v_bfe_u32 v27, v4, 2, 1")
    A("v_lshlrev_b32 v27, 4, v27")
    A("v_lshrrev_b32 v28, 3, v4")
    A("v_lshl_add_u32 v27, v28, 2, v27")
    A("v_and_b32 v28, 3, v4")
    A("v_add_u32 v27, v27, v28")
    A("v_lshlrev_b32 v27, 2, v27")
    A("s_waitcnt lgkmcnt(0)")
    A("v_add_f32 v23, v23, v24")
    A("v_add_f32 v25, v25, v26")
    A("v_add_f32 v23, v23, v25")
    A("buffer_store_dword v23, v27, s[4:7], s32 offen")
    A("s_cmp_lg_u32 s33, 2")
    A("s_cbranch_scc1 L_%s_end" % name)
    A("s_mov_b32 s40, s18\ns_mov_b32 s41, s19\ns_mov_b32 s42, %d\ns_mov_b32 s43, 0x00020000" % (1792 * 2))
    A("v_lshlrev_b32 v7, 1, v7")
    A("buffer_load_ushort v29, v7, s[40:43], 0 offen")
    A("s_lshl_b32 s34, s29, 7\ns_add_u32 s34, s34, %d" % B1F)
    A("s_waitcnt vmcnt(0)")
    A("v_lshlrev_b32 v29, 16, v29")
    A("buffer_store_dword v29, v27, s[4:7], s34 offen")
    A("s_branch L_%s_end" % name)
    A.label("L_prep_x")
    A("s_mov_b32 s24, s8\ns_mov_b32 s25, s9\ns_mov_b32 s26, %d" % (2048 * 512 * 2))
    A("s_sub_u32 s29, s2, 176")
    A("s_lshl_b32 s34, s29, 5")
    A("v_add_u32 v6, s34, v4")
    A("v_lshlrev_b32 v7, 10, v6")
    A("v_lshl_add_u32 v7, v5, 3, v7")
    A("s_lshl_b32 s35, s3, 8")
    for s in range(8):
        A("buffer_load_dwordx2 %s, v7, s[24:27], s35 offen offset:%d" % (vr(PK + 4 * s, 2), 32 * s))
        A("buffer_load_dwordx2 %s, v7, s[24:27], s35 offen offset:%d" % (vr(PK + 4 * s + 2, 2), 32 * s + 16))
    A("s_lshl_b32 s31, s29, 5\ns_lshl_b32 s34, s3, 3\ns_add_u32 s31, s31, s34\ns_lshl_b32 s31, s31, 10\ns_add_u32 s31, s31, %d" % XF)
    A("s_add_u32 s36, s31, 4096")
    A("v_lshlrev_b32 v8, 4, v4")
    A("s_lshl_b32 s37, s29, 3\ns_lshl_b32 s38, s3, 1\ns_add_u32 s37, s37, s38\ns_lshl_b32 s37, s37, 9\ns_add_u32 s37, s37, %d" % STATS)
    A("s_waitcnt vmcnt(0)")
    for s in range(8):
        A("buffer_store_dwordx4 %s, v1, s[4:7], s%d offen offset:%d" % (vr(PK + 4 * s, 4), 31 if s < 4 else 36, (s % 4) * 1024))
    for q in range(4):
        stats_of_packed([PK + 8 * q + i for i in range(8)], 20 + 2 * q, 21 + 2 * q, 12, 13)
        A("buffer_store_dwordx2 %s, v8, s[4:7], s37 offen offset:%d" % (vr(20 + 2 * q, 2), 512 * (q >> 1) + 8 * (q & 1)))
    kernel_end(name, 128)

NBUF = 4
BUFSZ = 32768

def gen_gemm(name, kind):
    if kind in ('qkv', 'w1'):
        TMB, TNB, KC, KS = 4, 4, 4, 32
        ACT = XF
        WOFF = WQKV_F if kind == 'qkv' else W1_F
        NCOL = 12 if kind == 'qkv' else 14
        NWG = 16 * NCOL
    else:
        TMB, TNB, KC = 2, 2, 8
        KS = 32 if kind == 'wo' else 112
        ACT = OF if kind == 'wo' else HF
        WOFF = WO_F if kind == 'wo' else W2_F
        NCOL = 8
        NWG = 32 * NCOL
    MT, NT = TMB // 2, TNB // 2
    NC = KS // KC
    kernel_begin(name)
    common_prologue(name, NWG, "s_load_dwordx2 s[40:41], s[0:1], 56" if kind == 'w2f' else "")
    A("v_and_b32 v4, 31, v2")
    A("v_lshrrev_b32 v5, 5, v2")
    if kind in ('qkv', 'w1'):
        A("s_and_b32 s8, s2, 7\ns_lshr_b32 s9, s2, 3\ns_lshl_b32 s8, s8, 1\ns_and_b32 s10, s9, 1\ns_add_u32 s8, s8, s10\ns_lshr_b32 s9, s9, 1")
    else:
        A("s_and_b32 s8, s2, 7\ns_lshr_b32 s9, s2, 3\ns_lshl_b32 s8, s8, 2\ns_and_b32 s10, s9, 3\ns_add_u32 s8, s8, s10\ns_lshr_b32 s9, s9, 2")
    A("s_mul_i32 s8, s8, %d" % TMB)
    A("s_mul_i32 s9, s9, %d" % TNB)
    A("s_lshr_b32 s16, s3, 1")
    A("s_and_b32 s17, s3, 1")
    A("s_mul_i32 s18, s16, %d\ns_add_u32 s18, s18, s8" % MT)
    A("s_mul_i32 s19, s17, %d\ns_add_u32 s19, s19, s9" % NT)
    ACC = 16
    FR = ACC + 16 * MT * NT
    FSET = 4 * (MT + NT)
    NSET = 3
    EX = FR + NSET * FSET
    nmisc = 0
    if kind in ('qkv', 'w1'):
        ST = EX
        CSR = EX + 32
        BR = CSR + 16 * NT
        top = BR + 16 * NT
        A("s_lshl_b32 s20, s18, 5")
        A("v_add_u32 v6, s20, v4")
        A("v_lshlrev_b32 v6, 7, v6")
        A("v_lshl_add_u32 v6, v5, 6, v6")
        A("s_mov_b32 s21, %d" % STATS)
        for tbi in range(MT):
            for q in range(4):
                A("buffer_load_dwordx4 %s, v6, s[4:7], s21 offen offset:%d" % (vr(ST + 16 * tbi + 4 * q, 4), 16 * q))
            if tbi < MT - 1:
                A("s_add_u32 s21, s21, 4096")
        nmisc += 4 * MT
        A("v_lshlrev_b32 v7, 6, v5")
        A("s_lshl_b32 s22, s19, 7\ns_add_u32 s22, s22, %d" % (CS_QKV if kind == 'qkv' else CS_W1))
        for ni in range(NT):
            for q in range(4):
                A("buffer_load_dwordx4 %s, v7, s[4:7], s22 offen offset:%d" % (vr(CSR + 16 * ni + 4 * q, 4), 128 * ni + 16 * q))
        nmisc += 4 * NT
        if kind == 'qkv':
            A("v_bfe_u32 v8, v4, 2, 1")
            A("v_lshlrev_b32 v8, 4, v8")
            A("v_lshrrev_b32 v9, 3, v4")
            A("v_lshl_add_u32 v8, v9, 2, v8")
            A("v_and_b32 v9, 3, v4")
            A("v_add_u32 v8, v8, v9")
            A("v_lshlrev_b32 v8, 2, v8")
            for ni in range(NT):
                A("buffer_load_dword v%d, v8, s[4:7], s22 offen offset:%d" % (BR + ni, 128 * ni))
            nmisc += NT
        else:
            A("s_lshl_b32 s23, s19, 7\ns_add_u32 s23, s23, %d" % B1F)
            for ni in range(NT):
                for q in range(4):
                    A("buffer_load_dwordx4 %s, v7, s[4:7], s23 offen offset:%d" % (vr(BR + 16 * ni + 4 * q, 4), 128 * ni + 16 * q))
            nmisc += 4 * NT
    else:
        XO = EX
        top = XO + 8 + 16
        A("s_lshl_b32 s20, s18, 5\ns_lshl_b32 s21, s19, 1\ns_add_u32 s20, s20, s21\ns_lshl_b32 s20, s20, 10\ns_add_u32 s20, s20, %d" % XF)
        A("buffer_load_dwordx4 %s, v1, s[4:7], s20 offen" % vr(XO, 4))
        A("buffer_load_dwordx4 %s, v1, s[4:7], s20 offen offset:1024" % vr(XO + 4, 4))
        nmisc += 2
    A("s_and_b32 s14, s3, 1")
    A("s_mov_b32 s24, %d\ns_mov_b32 s25, %d" % (ACT, WOFF))
    A("s_cmp_lt_u32 s3, 2")
    A("s_cselect_b32 s15, s8, s9")
    A("s_cselect_b32 s24, s24, s25")
    if KC == 4:
        A("s_lshl_b32 s14, s14, 1")
    A("s_add_u32 s15, s15, s14")
    A("s_mul_i32 s15, s15, %d" % (KS * 1024))
    A("s_add_u32 s10, s24, s15")
    A("s_add_u32 s11, s10, %d" % (KS * 1024 if KC == 4 else 4096))
    A("s_lshl_b32 s12, s3, 13")
    A("s_add_u32 s13, s12, 4096")
    def dma(c):
        bo = (c % NBUF) * BUFSZ
        for u in range(2):
            A("s_add_u32 m0, s%d, %d" % (12 + u, bo))
            A("s_nop 0")
            for q in range(4):
                A("buffer_load_dwordx4 v1, s[4:7], s%d offen offset:%d lds" % (10 + u, 1024 * q))
        A("s_add_u32 s10, s10, %d\ns_add_u32 s11, s11, %d" % (KC * 1024, KC * 1024))
    issued = -1
    for c in range(min(NBUF - 1, NC)):
        dma(c)
        issued = c
    A("s_mul_i32 s26, s16, %d" % (MT * KC * 1024))
    A("v_add_u32 v10, s26, v1")
    A("s_mul_i32 s26, s17, %d\ns_add_u32 s26, s26, %d" % (NT * KC * 1024, TMB * KC * 1024))
    A("v_add_u32 v11, s26, v1")
    A("v_add_u32 v12, 0x10000, v10")
    A("v_add_u32 v13, 0x10000, v11")
    for i in range(16 * MT * NT):
        A("v_mov_b32 v%d, 0" % (ACC + i))
    isV = None
    if kind in ('qkv', 'w1'):
        A("s_waitcnt vmcnt(%d)" % (8 * (issued + 1) + nmisc - 4 * MT))
        for tbi in range(MT):
            b = ST + 16 * tbi
            for p in range(1, 8):
                A("v_add_f32 v%d, v%d, v%d" % (b, b, b + 2 * p))
                A("v_add_f32 v%d, v%d, v%d" % (b + 1, b + 1, b + 2 * p + 1))
            cross_half_add(b, b + 2)
            cross_half_add(b + 1, b + 2)
            A("v_mul_f32 v%d, %s, v%d" % (b, f32(1.0 / 512), b))
            A("v_mul_f32 v%d, %s, v%d" % (b + 1, f32(1.0 / 512), b + 1))
            A("v_fma_f32 v%d, -v%d, v%d, v%d" % (b + 1, b, b, b + 1))
            A("v_max_f32 v%d, 0, v%d" % (b + 1, b + 1))
            A("v_add_f32 v%d, %s, v%d" % (b + 1, f32(1e-5), b + 1))
            A("v_rsq_f32 v%d, v%d" % (b + 1, b + 1))
            A("s_nop 0")
            A("v_mul_f32 v%d, v%d, v%d" % (b, b, b + 1))
    def mfma(acc, a, b):
        A("v_mfma_f32_32x32x16_bf16 %s, %s, %s, %s" % (vr(acc, 16), vr(a, 4), vr(b, 4), vr(acc, 16)))
    def reads(c, s, st):
        bo = (c % NBUF) * BUFSZ
        for mi in range(MT):
            o = bo + mi * KC * 1024 + s * 1024
            A("ds_read_b128 %s, v%d offset:%d" % (vr(FR + st * FSET + 4 * mi, 4), 10 if o < 65536 else 12, o % 65536))
        for ni in range(NT):
            o = bo + ni * KC * 1024 + s * 1024
            A("ds_read_b128 %s, v%d offset:%d" % (vr(FR + st * FSET + 4 * MT + 4 * ni, 4), 11 if o < 65536 else 13, o % 65536))
    def mainloop(orient):
        issued_l = issued
        nr = MT + NT
        for c in range(NC):
            A("s_waitcnt vmcnt(%d)" % (8 * (issued_l - c)))
            A("s_barrier")
            if c == 0:
                stamp(1)
            if c + NBUF - 1 < NC:
                dma(c + NBUF - 1)
                issued_l = c + NBUF - 1
            reads(c, 0, 0)
            if KC > 1:
                reads(c, 1, 1)
            for s in range(KC):
                st = s % NSET
                if s + 2 < KC:
                    reads(c, s + 2, (s + 2) % NSET)
                pend = min(KC - 1 - s, 2)
                A("s_waitcnt lgkmcnt(%d)" % (pend * nr))
                for mi in range(MT):
                    for ni in range(NT):
                        fa = FR + st * FSET + 4 * mi
                        fb = FR + st * FSET + 4 * MT + 4 * ni
                        acc = ACC + 16 * (mi * NT + ni)
                        if orient == 1:
                            mfma(acc, fb, fa)
                        else:
                            mfma(acc, fa, fb)
        A("s_nop 15")
        A("s_nop 3")
        stamp(2)
    T0, T1, T2, T3 = 6, 7, 8, 9
    if kind == 'qkv':
        A("s_cmp_ge_u32 s9, 32")
        A("s_cbranch_scc1 L_%s_v" % name)
        mainloop(1)
        A("s_cmp_lt_u32 s9, 16")
        A("s_cselect_b32 s27, %s, 1.0" % f32(0.25 * LOG2E))
        A("s_mov_b32 s28, %d\ns_mov_b32 s29, %d" % (QF, KF - 32 * 64 * 1024))
        A("s_cselect_b32 s28, s28, s29")
        for mi in range(MT):
            b = ST + 16 * mi
            A("v_mul_f32 v%d, s27, v%d" % (T0, b + 1))
            A("v_mul_f32 v%d, s27, v%d" % (T1, b))
            for ni in range(NT):
                acc = ACC + 16 * (mi * NT + ni)
                for i in range(16):
                    A("v_mul_f32 v%d, v%d, v%d" % (acc + i, acc + i, T0))
                    A("v_fma_f32 v%d, -v%d, v%d, v%d" % (acc + i, T1, CSR + 16 * ni + i, acc + i))
                for i in range(8):
                    A("v_cvt_pk_bf16_f32 v%d, v%d, v%d" % (acc + i, acc + 2 * i, acc + 2 * i + 1))
                A("s_add_u32 s30, s19, %d\ns_lshl_b32 s30, s30, 7\ns_add_u32 s30, s30, s18\ns_add_u32 s30, s30, %d\ns_lshl_b32 s30, s30, 10\ns_add_u32 s30, s30, s28" % (ni, mi))
                A("s_add_u32 s31, s30, 65536")
                A("buffer_store_dwordx4 %s, v1, s[4:7], s30 offen" % vr(acc, 4))
                A("buffer_store_dwordx4 %s, v1, s[4:7], s31 offen" % vr(acc + 4, 4))
        A("s_branch L_%s_fin" % name)
        A.label("L_%s_v" % name)
        mainloop(2)
        SCR = NBUF * BUFSZ
        A("s_lshl_b32 s27, s3, 9")
        A("v_lshlrev_b32 v%d, 3, v4" % T0)
        A("v_add_u32 v%d, s27, v%d" % (T0, T0))
        A("v_add_u32 v%d, %d, v%d" % (T0, SCR, T0))
        for mi in range(MT):
            A("ds_write_b64 v%d, %s offset:%d" % (T0, vr(ST + 16 * mi, 2), 256 * mi))
        A("v_lshlrev_b32 v%d, 5, v5" % T1)
        A("v_add_u32 v%d, s27, v%d" % (T1, T1))
        A("v_add_u32 v%d, %d, v%d" % (T1, SCR, T1))
        A("s_waitcnt lgkmcnt(0)")
        A("v_lshrrev_b32 v%d, 4, v4" % T2)
        A("v_lshlrev_b32 v%d, 16, v%d" % (T2, T2))
        A("v_and_b32 v%d, 15, v4" % T3)
        A("v_lshl_add_u32 v%d, v5, 4, v%d" % (T3, T3))
        A("v_lshl_add_u32 v%d, v%d, 4, v%d" % (T2, T3, T2))
        TK = FR
        for mi in range(MT):
            for g in range(4):
                A("ds_read_b128 %s, v%d offset:%d" % (vr(TK + 8 * g, 4), T1, 256 * mi + 64 * g))
                A("ds_read_b128 %s, v%d offset:%d" % (vr(TK + 8 * g + 4, 4), T1, 256 * mi + 64 * g + 16))
            A("s_waitcnt lgkmcnt(0)")
            for ni in range(NT):
                acc = ACC + 16 * (mi * NT + ni)
                for i in range(16):
                    g, r = i >> 2, i & 3
                    mr = TK + 8 * g + 2 * r
                    A("v_mul_f32 v%d, v%d, v%d" % (acc + i, acc + i, mr + 1))
                    A("v_fma_f32 v%d, -v%d, v%d, v%d" % (acc + i, mr, BR + ni, acc + i))
                for i in range(8):
                    A("v_cvt_pk_bf16_f32 v%d, v%d, v%d" % (acc + i, acc + 2 * i, acc + 2 * i + 1))
                A("s_add_u32 s30, s19, %d\ns_sub_u32 s30, s30, 32\ns_lshl_b32 s30, s30, 7\ns_add_u32 s30, s30, s18\ns_add_u32 s30, s30, %d\ns_lshl_b32 s30, s30, 10\ns_add_u32 s30, s30, %d" % (ni, mi, VF))
                A("buffer_store_dwordx4 %s, v%d, s[4:7], s30 offen" % (vr(acc, 4), T2))
                A("buffer_store_dwordx4 %s, v%d, s[4:7], s30 offen offset:512" % (vr(acc + 4, 4), T2))
    elif kind == 'w1':
        mainloop(1)
        for mi in range(MT):
            b = ST + 16 * mi
            for ni in range(NT):
                acc = ACC + 16 * (mi * NT + ni)
                for i0 in range(0, 16, 4):
                    tt = [FR + 3 * k for k in range(4)]
                    for k in range(4):
                        i = i0 + k
                        A("v_fma_f32 v%d, -v%d, v%d, v%d" % (tt[k], b, CSR + 16 * ni + i, BR + 16 * ni + i))
                        A("v_fma_f32 v%d, v%d, v%d, v%d" % (acc + i, acc + i, b + 1, tt[k]))
                        A("v_mul_f32 v%d, %s, v%d" % (tt[k], f32(LOG2E), acc + i))
                        A("v_min_f32 v%d, %s, v%d" % (tt[k], f32(40.0), tt[k]))
                    for k in range(4):
                        A("v_exp_f32 v%d, v%d" % (tt[k], tt[k]))
                    for k in range(4):
                        A("v_add_f32 v%d, 2.0, v%d" % (tt[k] + 1, tt[k]))
                        A("v_mul_f32 v%d, v%d, v%d" % (tt[k], tt[k], tt[k] + 1))
                        A("v_add_f32 v%d, 2.0, v%d" % (tt[k] + 1, tt[k]))
                    for k in range(4):
                        A("v_rcp_f32 v%d, v%d" % (tt[k] + 1, tt[k] + 1))
                    for k in range(4):
                        i = i0 + k
                        A("v_mul_f32 v%d, v%d, v%d" % (acc + i, acc + i, tt[k]))
                        A("v_mul_f32 v%d, v%d, v%d" % (acc + i, acc + i, tt[k] + 1))
                for i in range(8):
                    A("v_cvt_pk_bf16_f32 v%d, v%d, v%d" % (acc + i, acc + 2 * i, acc + 2 * i + 1))
                A("s_add_u32 s30, s18, %d\ns_mul_i32 s30, s30, 112\ns_add_u32 s31, s19, %d\ns_lshl_b32 s31, s31, 1\ns_add_u32 s30, s30, s31\ns_lshl_b32 s30, s30, 10\ns_add_u32 s30, s30, %d" % (mi, ni, HF))
                A("buffer_store_dwordx4 %s, v1, s[4:7], s30 offen" % vr(acc, 4))
                A("buffer_store_dwordx4 %s, v1, s[4:7], s30 offen offset:1024" % vr(acc + 4, 4))
    else:
        mainloop(1)
        acc = ACC
        for i in range(8):
            A("v_lshlrev_b32 v%d, 16, v%d" % (T0, XO + i))
            A("v_and_b32 v%d, 0xffff0000, v%d" % (T1, XO + i))
            A("v_add_f32 v%d, v%d, v%d" % (acc + 2 * i, acc + 2 * i, T0))
            A("v_add_f32 v%d, v%d, v%d" % (acc + 2 * i + 1, acc + 2 * i + 1, T1))
        for i in range(8):
            A("v_cvt_pk_bf16_f32 v%d, v%d, v%d" % (acc + i, acc + 2 * i, acc + 2 * i + 1))
        if kind == 'w2f':
            A("s_mov_b32 s42, %d\ns_mov_b32 s43, 0x00020000" % (2048 * 512 * 2))
            A("s_lshl_b32 s30, s18, 5")
            A("v_add_u32 v%d, s30, v4" % T0)
            A("v_lshlrev_b32 v%d, 10, v%d" % (T0, T0))
            A("v_lshl_add_u32 v%d, v5, 3, v%d" % (T0, T0))
            A("s_lshl_b32 s31, s19, 6")
            for g in range(4):
                A("buffer_store_dwordx2 %s, v%d, s[40:43], s31 offen offset:%d" % (vr(acc + 2 * g, 2), T0, 16 * g))
        else:
            A("buffer_store_dwordx4 %s, v1, s[4:7], s20 offen" % vr(acc, 4))
            A("buffer_store_dwordx4 %s, v1, s[4:7], s20 offen offset:1024" % vr(acc + 4, 4))
            stats_of_packed([acc + i for i in range(8)], XO + 8, XO + 9, T0, T1)
            A("v_lshlrev_b32 v%d, 4, v4" % T0)
            A("s_lshl_b32 s30, s18, 3\ns_lshr_b32 s31, s19, 1\ns_add_u32 s30, s30, s31\ns_lshl_b32 s30, s30, 9\ns_and_b32 s31, s19, 1\ns_lshl_b32 s31, s31, 3\ns_add_u32 s31, s31, s30\ns_add_u32 s31, s31, %d" % STATS)
            A("buffer_store_dwordx2 %s, v%d, s[4:7], s31 offen" % (vr(XO + 8, 2), T0))
    kernel_end(name, max(top, 64))
    lds = NBUF * BUFSZ + (2048 if kind == 'qkv' else 0)
    return NWG, lds

class St:
    def __init__(self):
        self.n = {'vm': 0, 'lg': 0}
        self.tag = {}
    def copy(self):
        o = St(); o.n = dict(self.n); o.tag = dict(self.tag); return o

def I(text, cls=None, tag=None):
    return ('i', text, cls, tag)
def W(cls, tag):
    return ('w', cls, tag)

def emit(seq, st):
    for it in seq:
        if it[0] == 'i':
            _, text, cls, tag = it
            A(text)
            if cls:
                if tag is not None:
                    st.tag[tag] = st.n[cls]
                st.n[cls] += 1
        else:
            _, cls, tag = it
            n = st.n[cls] - st.tag[tag] - 1
            if cls == 'vm':
                A("s_waitcnt vmcnt(%d)" % min(n, 63))
            else:
                A("s_waitcnt lgkmcnt(%d)" % min(n, 15))

def L(txt):
    return [I(t.strip()) for t in txt.strip().split("\n")]

def s_cross_half_add(va, vt):
    return L("v_mov_b32 v%d, v%d\ns_nop 1\nv_permlane32_swap_b32 v%d, v%d\ns_nop 1\nv_add_f32 v%d, v%d, v%d" % (vt, va, va, vt, va, va, vt))

def gen_gemm2(name, kind):
    WOFF = WQKV_F if kind == 'qkv' else W1_F
    NCOL = 12 if kind == 'qkv' else 14
    NWG = 16 * NCOL
    kernel_begin(name)
    common_prologue(name, NWG)
    A("v_and_b32 v4, 31, v2")
    A("v_lshrrev_b32 v5, 5, v2")
    A("s_and_b32 s10, s2, 7\ns_lshr_b32 s9, s2, 3\ns_lshr_b32 s8, s10, 1\ns_lshl_b32 s8, s8, 2\ns_and_b32 s11, s9, 3\ns_add_u32 s8, s8, s11\ns_lshr_b32 s9, s9, 2\ns_and_b32 s10, s10, 1\ns_mul_i32 s10, s10, %d\ns_add_u32 s9, s9, s10" % (NCOL // 2))
    A("s_lshl_b32 s8, s8, 2")
    A("s_lshl_b32 s9, s9, 2")
    A("s_add_u32 s19, s9, s3")
    ACC = 16; AF = 80; CSR = 112; BR = 128; STF = 144; TMP = 152; STL = 168; TK = 184
    NV = 216
    st = St()
    A("s_add_u32 s10, s8, s3\ns_lshl_b32 s10, s10, 15\ns_add_u32 s10, s10, %d" % XF)
    A("s_lshl_b32 s12, s3, 15")
    A("s_lshl_b32 s13, s19, 15\ns_add_u32 s13, s13, %d" % WOFF)
    def chunk_loads(c):
        seq = [I("s_add_u32 m0, s12, %d" % (c * 4096)), I("s_nop 0")]
        for q in range(4):
            seq.append(I("buffer_load_dwordx4 v1, s[4:7], s10 offen offset:%d lds" % (1024 * q), 'vm', ('A', c)))
        for q in range(4):
            s_ = 4 * c + q
            seq.append(I("buffer_load_dwordx4 a[%d:%d], v1, s[4:7], s13 offen offset:%d" % (4 * s_, 4 * s_ + 3, 1024 * q), 'vm', ('B', c)))
        seq += L("s_add_u32 s10, s10, 4096\ns_add_u32 s13, s13, 4096")
        return seq
    PD = int(os.environ.get("PD", "2"))
    for c in range(PD):
        emit(chunk_loads(c), st)
    misc = []
    misc += L("s_add_u32 s21, s8, s3\ns_lshl_b32 s21, s21, 12\ns_add_u32 s21, s21, %d" % STATS)
    for q in range(4):
        misc.append(I("buffer_load_dwordx4 %s, v1, s[4:7], s21 offen offset:%d" % (vr(STL + 4 * q, 4), 1024 * q), 'vm', 'misc'))
    misc += L("v_lshlrev_b32 v14, 6, v5\ns_lshl_b32 s22, s19, 7\ns_add_u32 s22, s22, %d" % (CS_QKV if kind == 'qkv' else CS_W1))
    for q in range(4):
        misc.append(I("buffer_load_dwordx4 %s, v14, s[4:7], s22 offen offset:%d" % (vr(CSR + 4 * q, 4), 16 * q), 'vm', 'misc'))
    if kind == 'qkv':
        misc += L("v_bfe_u32 v15, v4, 2, 1\nv_lshlrev_b32 v15, 4, v15\nv_lshrrev_b32 v3, 3, v4\nv_lshl_add_u32 v15, v3, 2, v15\nv_and_b32 v3, 3, v4\nv_add_u32 v15, v15, v3\nv_lshlrev_b32 v15, 2, v15")
        misc.append(I("buffer_load_dword v%d, v15, s[4:7], s22 offen" % BR, 'vm', 'misc'))
    else:
        misc += L("s_lshl_b32 s23, s19, 7\ns_add_u32 s23, s23, %d" % B1F)
        for q in range(4):
            misc.append(I("buffer_load_dwordx4 %s, v14, s[4:7], s23 offen offset:%d" % (vr(BR + 4 * q, 4), 16 * q), 'vm', 'misc'))
    A("v_add_u32 v11, 0x10000, v1")
    SCR = 131072
    A("s_lshl_b32 s26, s3, 8")
    A("v_lshlrev_b32 v12, 3, v4")
    A("v_add_u32 v13, %d, v12" % SCR)
    A("v_add_u32 v12, s26, v13")
    def stats_stream():
        seq = [W('vm', 'misc')]
        b = STL
        for p in range(1, 8):
            seq.append(I("v_add_f32 v%d, v%d, v%d" % (b, b, b + 2 * p)))
            seq.append(I("v_add_f32 v%d, v%d, v%d" % (b + 1, b + 1, b + 2 * p + 1)))
        seq += s_cross_half_add(b, b + 2)
        seq += s_cross_half_add(b + 1, b + 2)
        seq += L("v_mul_f32 v%d, %s, v%d" % (b, f32(1.0 / 512), b))
        seq += L("v_mul_f32 v%d, %s, v%d" % (b + 1, f32(1.0 / 512), b + 1))
        seq += L("v_fma_f32 v%d, -v%d, v%d, v%d" % (b + 1, b, b, b + 1))
        seq += L("v_max_f32 v%d, 0, v%d" % (b + 1, b + 1))
        seq += L("v_add_f32 v%d, %s, v%d" % (b + 1, f32(1e-5), b + 1))
        seq += L("v_rsq_f32 v%d, v%d\ns_nop 0" % (b + 1, b + 1))
        seq += L("v_mul_f32 v%d, v%d, v%d" % (b, b, b + 1))
        seq.append(I("ds_write_b64 v12, %s" % vr(b, 2), 'lg', 'sw'))
        return seq
    def run(orient, epi, st):
        def rd(g):
            seq = []
            c = g >> 2
            if g % 4 == 0:
                seq.append(W('vm', ('A', c)))
                if c == 7:
                    seq.append(W('lg', 'sw'))
                seq.append(I("s_barrier"))
                if c == 7 and orient == 1:
                    for t in range(4):
                        seq.append(I("ds_read_b64 %s, v13 offset:%d" % (vr(STF + 2 * t, 2), 256 * t), 'lg', 'sr'))
            for mi in range(4):
                o = mi * 32768 + g * 1024
                seq.append(I("ds_read_b128 %s, v%d offset:%d" % (vr(AF + 16 * (g & 1) + 4 * mi, 4), 1 if o < 65536 else 11, o % 65536), 'lg', ('R', g, mi)))
            return seq
        side = {}
        for c in range(8):
            side[c] = chunk_loads(c + PD) if c + PD < 8 else []
        side[1] = side[1] + misc
        side[5] = side[5] + stats_stream()
        emit(rd(0), st)
        stamp(1)
        for g in range(32):
            c = g >> 2
            seq = []
            if g + 1 < 32:
                seq += rd(g + 1)
            if g % 4 == 0:
                seq.append(W('vm', ('B', c)))
            sd = side.get(c, [])
            for mi in range(4):
                seq.append(W('lg', ('R', g, mi)))
                acc = ACC + 16 * mi
                a_, b_ = "a[%d:%d]" % (4 * g, 4 * g + 3), vr(AF + 16 * (g & 1) + 4 * mi, 4)
                if orient == 2:
                    a_, b_ = b_, a_
                seq.append(I("v_mfma_f32_32x32x16_bf16 %s, %s, %s, %s" % (vr(acc, 16), a_, b_, "0" if g == 0 else vr(acc, 16))))
                slot = (g % 4) * 4 + mi
                take = -(-len(sd) // (14 - slot)) if slot < 14 else len(sd)
                seq += sd[:take]
                del sd[:take]
            emit(seq, st)
            if g == 15:
                stamp(2)
        A("s_nop 15")
        A("s_nop 3")
        stamp(3)
        for mi in range(4):
            emit(epi(mi), st)
    T0, T1, T2, T3 = 6, 7, 8, 9
    if kind == 'qkv':
        A("s_cmp_ge_u32 s9, 32")
        A("s_cbranch_scc1 L_%s_v" % name)
        A("s_cmp_lt_u32 s9, 16")
        A("s_cselect_b32 s27, %s, 1.0" % f32(0.25 * LOG2E))
        A("s_mov_b32 s28, %d\ns_mov_b32 s29, %d" % (QF, KF - 32 * 64 * 1024))
        A("s_cselect_b32 s28, s28, s29")
        A("s_lshl_b32 s30, s19, 7\ns_add_u32 s30, s30, s8\ns_lshl_b32 s30, s30, 10\ns_add_u32 s30, s30, s28\ns_add_u32 s31, s30, 65536")
        def epi_qk(mi):
            acc = ACC + 16 * mi
            seq = [W('lg', 'sr')] + L("v_mul_f32 v%d, s27, v%d\nv_mul_f32 v%d, s27, v%d" % (T0, STF + 2 * mi + 1, T1, STF + 2 * mi))
            for i in range(16):
                seq += L("v_mul_f32 v%d, v%d, v%d" % (acc + i, acc + i, T0))
                seq += L("v_fma_f32 v%d, -v%d, v%d, v%d" % (acc + i, T1, CSR + i, acc + i))
            for i in range(8):
                seq += L("v_cvt_pk_bf16_f32 v%d, v%d, v%d" % (acc + i, acc + 2 * i, acc + 2 * i + 1))
            seq.append(I("buffer_store_dwordx4 %s, v1, s[4:7], s30 offen offset:%d" % (vr(acc, 4), 1024 * mi), 'vm'))
            seq.append(I("buffer_store_dwordx4 %s, v1, s[4:7], s31 offen offset:%d" % (vr(acc + 4, 4), 1024 * mi), 'vm'))
            return seq
        misc_save = list(misc)
        run(1, epi_qk, st.copy())
        misc[:] = misc_save
        A("s_branch L_%s_fin" % name)
        A.label("L_%s_v" % name)
        A("v_lshlrev_b32 v%d, 5, v5" % T1)
        A("v_add_u32 v%d, %d, v%d" % (T1, SCR, T1))
        A("v_lshrrev_b32 v%d, 4, v4" % T2)
        A("v_lshlrev_b32 v%d, 16, v%d" % (T2, T2))
        A("v_and_b32 v%d, 15, v4" % T3)
        A("v_lshl_add_u32 v%d, v5, 4, v%d" % (T3, T3))
        A("v_lshl_add_u32 v%d, v%d, 4, v%d" % (T2, T3, T2))
        A("s_sub_u32 s30, s19, 32\ns_lshl_b32 s30, s30, 7\ns_add_u32 s30, s30, s8\ns_lshl_b32 s30, s30, 10\ns_add_u32 s30, s30, %d" % VF)
        def epi_v(mi):
            acc = ACC + 16 * mi
            seq = []
            for g in range(4):
                seq.append(I("ds_read_b128 %s, v%d offset:%d" % (vr(TK + 8 * g, 4), T1, 256 * mi + 64 * g), 'lg'))
                seq.append(I("ds_read_b128 %s, v%d offset:%d" % (vr(TK + 8 * g + 4, 4), T1, 256 * mi + 64 * g + 16), 'lg', ('tk', mi)))
            seq.append(W('lg', ('tk', mi)))
            for i in range(16):
                g, r = i >> 2, i & 3
                mr = TK + 8 * g + 2 * r
                seq += L("v_mul_f32 v%d, v%d, v%d" % (acc + i, acc + i, mr + 1))
                seq += L("v_fma_f32 v%d, -v%d, v%d, v%d" % (acc + i, mr, BR, acc + i))
            for i in range(8):
                seq += L("v_cvt_pk_bf16_f32 v%d, v%d, v%d" % (acc + i, acc + 2 * i, acc + 2 * i + 1))
            seq.append(I("buffer_store_dwordx4 %s, v%d, s[4:7], s30 offen offset:%d" % (vr(acc, 4), T2, 1024 * mi), 'vm'))
            seq.append(I("buffer_store_dwordx4 %s, v%d, s[4:7], s30 offen offset:%d" % (vr(acc + 4, 4), T2, 1024 * mi + 512), 'vm'))
            return seq
        run(2, epi_v, st.copy())
    else:
        A("s_mul_i32 s30, s8, 112\ns_lshl_b32 s31, s19, 1\ns_add_u32 s30, s30, s31\ns_lshl_b32 s30, s30, 10\ns_add_u32 s30, s30, %d" % HF)
        def epi_w1(mi):
            acc = ACC + 16 * mi
            b = STF + 2 * mi
            seq = [W('lg', 'sr')]
            for i0 in range(0, 16, 4):
                tt = [TMP + 2 * k for k in range(4)]
                for k in range(4):
                    i = i0 + k
                    seq += L("v_fma_f32 v%d, -v%d, v%d, v%d" % (tt[k], b, CSR + i, BR + i))
                    seq += L("v_fma_f32 v%d, v%d, v%d, v%d" % (acc + i, acc + i, b + 1, tt[k]))
                    seq += L("v_mul_f32 v%d, %s, v%d" % (tt[k], f32(LOG2E), acc + i))
                for k in range(4):
                    seq += L("v_exp_f32 v%d, v%d" % (tt[k], tt[k]))
                for k in range(4):
                    seq += L("v_add_f32 v%d, 2.0, v%d" % (tt[k] + 1, tt[k]))
                    seq += L("v_fma_f32 v%d, v%d, v%d, 2.0" % (tt[k], tt[k], tt[k] + 1))
                for k in range(4):
                    seq += L("v_rcp_f32 v%d, v%d" % (tt[k], tt[k]))
                for k in range(4):
                    i = i0 + k
                    seq += L("v_mul_f32 v%d, v%d, v%d" % (tt[k], acc + i, tt[k]))
                for k in range(4):
                    i = i0 + k
                    seq += L("v_fma_f32 v%d, v%d, -2.0, v%d" % (acc + i, tt[k], acc + i))
            for i in range(8):
                seq += L("v_cvt_pk_bf16_f32 v%d, v%d, v%d" % (acc + i, acc + 2 * i, acc + 2 * i + 1))
            seq.append(I("buffer_store_dwordx4 %s, v1, s[4:7], s30 offen" % vr(acc, 4), 'vm'))
            seq.append(I("buffer_store_dwordx4 %s, v1, s[4:7], s30 offen offset:1024" % vr(acc + 4, 4), 'vm'))
            seq.append(I("s_add_u32 s30, s30, %d" % (112 * 1024)))
            return seq
        run(1, epi_w1, st)
    kernel_end(name, NV, agpr=128)
    return NWG, 131072 + 1024

def gen_attn():
    name = "attn_kernel"
    kernel_begin(name)
    common_prologue(name, 256)
    A("v_and_b32 v4, 31, v2")
    A("v_lshrrev_b32 v5, 5, v2")
    A("s_and_b32 s8, s2, 7\ns_lshr_b32 s9, s2, 3\ns_lshl_b32 s8, s8, 2\ns_and_b32 s10, s9, 3\ns_add_u32 s8, s8, s10\ns_lshr_b32 s9, s9, 2")
    A("s_and_b32 s24, s3, 7\ns_lshr_b32 s25, s3, 3")
    A("s_lshl_b32 s9, s9, 3\ns_add_u32 s9, s9, s24")
    Q = 8; NEG = 12; S0 = 28; S1 = 44; P = 60; K0 = 68; K1 = 72; V0 = 76; V1 = 84; O = 92
    SS = (S0, S1); KK = (K0, K1); VV = (V0, V1)
    SCR = 131072 + 4096
    A("s_lshl_b32 s10, s8, 6\ns_add_u32 s11, s10, s9\ns_lshl_b32 s11, s11, 10\ns_add_u32 s11, s11, %d" % QF)
    A("buffer_load_dwordx4 %s, v1, s[4:7], s11 offen" % vr(Q, 4))
    A("s_lshl_b32 s10, s10, 10")
    A("s_add_u32 s12, s10, %d" % KF)
    A("s_add_u32 s13, s10, %d" % VF)
    A("s_lshl_b32 s14, s25, 5\ns_add_u32 s14, s14, s24\ns_lshl_b32 s14, s14, 10")
    A("s_add_u32 s15, s12, s14")
    A("s_add_u32 s16, s13, s14")
    A("s_mov_b32 m0, s14")
    A("s_nop 0")
    A("buffer_load_dwordx4 v1, s[4:7], s15 offen lds")
    A("s_add_u32 m0, s14, 0x10000")
    A("s_nop 0")
    A("buffer_load_dwordx4 v1, s[4:7], s16 offen lds")
    A("v_and_b32 v6, 27, v4")
    A("v_cmp_eq_u32 vcc, 16, v6")
    A("v_mov_b32 v7, 0x3f803f80")
    A("s_nop 1")
    A("v_cndmask_b32 v6, 0, v7, vcc")
    for i in range(16):
        A("v_mov_b32 v%d, v6" % (V0 + i))
    A("s_mov_b32 s20, 0xffff\ns_mov_b32 s21, 0xffff")
    A("s_mov_b32 s22, 0")
    A("s_lshl_b32 s26, s25, 15")
    A("s_waitcnt vmcnt(0)")
    A("s_barrier")
    stamp(1)
    A("s_mul_i32 s14, s24, 3\ns_add_u32 s14, s14, 8\ns_lshl_b32 s17, s25, 5\ns_add_u32 s14, s14, s17\ns_lshl_b32 s14, s14, 10")
    A("s_add_u32 s15, s12, s14")
    A("s_add_u32 s16, s13, s14")
    A("s_mov_b32 m0, s14")
    A("s_nop 0")
    for q in range(3):
        A("buffer_load_dwordx4 v1, s[4:7], s15 offen offset:%d lds" % (1024 * q))
    A("s_add_u32 m0, s14, 0x10000")
    A("s_nop 0")
    for q in range(3):
        A("buffer_load_dwordx4 v1, s[4:7], s16 offen offset:%d lds" % (1024 * q))
    A("ds_read_b128 %s, v1" % vr(K0, 4))
    A("s_waitcnt lgkmcnt(0)")
    A("v_mfma_f32_32x32x16_bf16 %s, %s, %s, 0" % (vr(S0, 16), vr(K0, 4), vr(Q, 4)))
    A("s_nop 15")
    A("s_nop 3")
    def max16(dst, S, init=False):
        if init:
            A("v_max3_f32 v%d, v%d, v%d, v%d" % (dst, S, S + 1, S + 2))
            A("v_max_f32 v%d, v%d, v%d" % (dst, dst, S + 3))
            rest = list(range(4, 16))
        else:
            rest = list(range(0, 16))
        for i in range(0, len(rest), 2):
            A("v_max3_f32 v%d, v%d, v%d, v%d" % (dst, dst, S + rest[i], S + rest[i + 1]))
    max16(6, S0, True)
    A.label("L_attn_setneg")
    A("v_mov_b32 v7, v6")
    A("s_nop 1")
    A("v_permlane32_swap_b32 v6, v7")
    A("s_nop 1")
    A("v_max_f32 v6, v6, v7")
    A("v_sub_f32 v%d, 0, v6" % NEG)
    for i in range(1, 16):
        A("v_mov_b32 v%d, v%d" % (NEG + i, NEG))
    A("v_add_u32 v2, s26, v1")
    A("v_lshl_add_u32 v3, v5, 4, v4")
    A("v_lshlrev_b32 v3, 4, v3")
    A("v_add_u32 v3, 0x10000, v3")
    A("v_add_u32 v3, s26, v3")
    for i in range(16):
        A("v_mov_b32 v%d, 0" % (O + i))
    def vread(p, off):
        A("s_mov_b64 exec, s[20:21]")
        A("ds_read_b128 %s, v3 offset:%d" % (vr(VV[p], 4), off))
        A("ds_read_b128 %s, v3 offset:%d" % (vr(VV[p] + 4, 4), off + 512))
        A("s_mov_b64 exec, -1")
    A("ds_read_b128 %s, v2" % vr(K0, 4))
    vread(0, 0)
    A("s_waitcnt lgkmcnt(0)")
    A("v_mfma_f32_32x32x16_bf16 %s, %s, %s, %s" % (vr(S0, 16), vr(K0, 4), vr(Q, 4), vr(NEG, 16)))
    A("ds_read_b128 %s, v2 offset:1024" % vr(K1, 4))
    vread(1, 1024)
    A("s_nop 7")
    def body():
        for p in range(2):
            S = SS[p]
            A("s_waitcnt lgkmcnt(2)")
            A("v_mfma_f32_32x32x16_bf16 %s, %s, %s, %s" % (vr(SS[1 - p], 16), vr(KK[1 - p], 4), vr(Q, 4), vr(NEG, 16)))
            A("ds_read_b128 %s, v2 offset:%d" % (vr(KK[p], 4), 2048 + 1024 * p))
            for i in range(8):
                A("v_exp_f32 v%d, v%d" % (S + i, S + i))
            for i in range(4):
                A("v_cvt_pk_bf16_f32 v%d, v%d, v%d" % (P + i, S + 2 * i, S + 2 * i + 1))
            for i in range(8, 10):
                A("v_exp_f32 v%d, v%d" % (S + i, S + i))
            A("v_mfma_f32_32x32x16_bf16 %s, %s, %s, %s" % (vr(O, 16), vr(VV[p], 4), vr(P, 4), vr(O, 16)))
            for i in range(10, 16):
                A("v_exp_f32 v%d, v%d" % (S + i, S + i))
            for i in range(4):
                A("v_cvt_pk_bf16_f32 v%d, v%d, v%d" % (P + 4 + i, S + 8 + 2 * i, S + 8 + 2 * i + 1))
            if p == 1:
                A("v_add_u32 v2, 2048, v2")
                A("s_sub_u32 s23, s23, 1")
            else:
                A("s_nop 1")
            A("v_mfma_f32_32x32x16_bf16 %s, %s, %s, %s" % (vr(O, 16), vr(VV[p] + 4, 4), vr(P + 4, 4), vr(O, 16)))
            vread(p, 2048 + 1024 * p)
        A("v_add_u32 v3, 2048, v3")
        A("s_cmp_lg_u32 s23, 0")
    A("s_cmp_lg_u32 s22, 0")
    A("s_cbranch_scc0 L_attn_phA")
    A("s_mov_b32 s23, 32")
    A("s_branch L_attn_loopB")
    A.label("L_attn_phA")
    A("s_mov_b32 s23, 3")
    A.label("L_attn_loopA")
    body()
    A("s_cbranch_scc1 L_attn_loopA")
    stamp(2)
    A("s_waitcnt vmcnt(0)")
    A("s_barrier")
    stamp(3)
    A("s_mov_b32 s23, 13")
    A.label("L_attn_loopB")
    body()
    A("s_cbranch_scc1 L_attn_loopB")
    A("s_waitcnt lgkmcnt(0)")
    A("s_nop 15")
    A("s_nop 3")
    A("s_cmp_lg_u32 s22, 0")
    A("s_cbranch_scc1 L_attn_fin")
    A("s_mul_i32 s27, s24, %d" % (9 * 256))
    A("v_lshrrev_b32 v6, 2, v1")
    A("v_add_u32 v6, s27, v6")
    A("v_add_u32 v6, %d, v6" % SCR)
    A("s_cmp_eq_u32 s25, 0")
    A("s_cbranch_scc1 L_attn_lo")
    for i in range(9):
        A("ds_write_b32 v6, v%d offset:%d" % (O + i, 256 * i))
    A("s_waitcnt lgkmcnt(0)")
    A("s_barrier")
    A("s_branch L_%s_end" % name)
    A.label("L_attn_lo")
    A("s_barrier")
    for i in range(9):
        A("ds_read_b32 v%d, v6 offset:%d" % (S0 + i, 256 * i))
    A("s_waitcnt lgkmcnt(0)")
    for i in range(9):
        A("v_add_f32 v%d, v%d, v%d" % (O + i, O + i, S0 + i))
    A("v_cmp_gt_f32 vcc, 0x5f800000, v%d" % (O + 8))
    A("s_nop 3")
    A("s_cmp_eq_u64 vcc, exec")
    A("s_cbranch_scc1 L_attn_fin")
    A("s_mov_b32 s22, 1")
    A("v_mov_b32 v2, v1")
    A("v_mov_b32 v6, 0xff800000")
    A("s_mov_b32 s23, 64")
    A.label("L_attn_maxp")
    A("ds_read_b128 %s, v2" % vr(K0, 4))
    A("s_waitcnt lgkmcnt(0)")
    A("v_mfma_f32_32x32x16_bf16 %s, %s, %s, 0" % (vr(S0, 16), vr(K0, 4), vr(Q, 4)))
    A("s_nop 15")
    A("s_nop 3")
    max16(6, S0, False)
    A("v_add_u32 v2, 1024, v2")
    A("s_sub_u32 s23, s23, 1")
    A("s_cmp_lg_u32 s23, 0")
    A("s_cbranch_scc1 L_attn_maxp")
    A("s_branch L_attn_setneg")
    A.label("L_attn_fin")
    A("v_rcp_f32 v6, v%d" % (O + 8))
    A("s_nop 0")
    for i in range(8):
        A("v_mul_f32 v%d, v%d, v6" % (O + i, O + i))
    for i in range(4):
        A("v_cvt_pk_bf16_f32 v%d, v%d, v%d" % (O + i, O + 2 * i, O + 2 * i + 1))
    A("s_lshl_b32 s10, s9, 5\ns_add_u32 s10, s10, s8\ns_lshl_b32 s10, s10, 10\ns_add_u32 s10, s10, %d" % OF)
    A("buffer_store_dwordx4 %s, v1, s[4:7], s10 offen" % vr(O, 4))
    kernel_end(name, 112)
    return 256, SCR + 8 * 9 * 256

def main():
    A.raw(".amdgcn_target \"amdgcn-amd-amdhsa--gfx950\"")
    A.raw(".text")
    gen_prep()
    g = {}
    g['qkv'] = gen_gemm2("qkv_kernel", 'qkv')
    g['attn'] = gen_attn()
    g['wo'] = gen_gemm("wo_kernel", 'wo')
    g['w1'] = gen_gemm2("w1_kernel", 'w1')
    g['w2'] = gen_gemm("w2_kernel", 'w2')
    g['w2f'] = gen_gemm("w2f_kernel", 'w2f')
    hdr = []
    hdr.append("; @launch kernel=prep_kernel grid=(240,1,1) block=(256,1,1) lds=512")
    seq = ['qkv', 'attn', 'wo', 'w1', 'w2', 'qkv', 'attn', 'wo', 'w1', 'w2f']
    nl = int(sys.argv[2]) if len(sys.argv) > 2 else len(seq)
    for k in seq[:nl]:
        nwg, lds = g[k]
        hdr.append("; @launch kernel=%s_kernel grid=(%d,1,1) block=(%d,1,1) lds=%d" % (k, nwg, 1024 if k == 'attn' else 256, lds))
    out = "\n".join(hdr) + "\n" + A.text()
    out += ".section .rodata,\"a\"\n"
    for (name, vgpr, sgpr, agpr) in kernels:
        v = (vgpr + 3) // 4 * 4
        out += ".p2align 6\n.amdhsa_kernel %s\n" % name
        out += "  .amdhsa_next_free_vgpr %d\n  .amdhsa_next_free_sgpr %d\n  .amdhsa_accum_offset %d\n" % (v + agpr, sgpr, v)
        out += "  .amdhsa_group_segment_fixed_size 0\n  .amdhsa_kernarg_size 80\n  .amdhsa_user_sgpr_count 2\n"
        out += "  .amdhsa_user_sgpr_kernarg_segment_ptr 1\n  .amdhsa_system_sgpr_workgroup_id_x 1\n.end_amdhsa_kernel\n"
    path = sys.argv[1] if len(sys.argv) > 1 else "cdna_kernels/%s.s" % NAME
    open(path, "w").write(out)
    print("wrote", path, len(out), "bytes")

if __name__ == "__main__":
    main()
```

```python
import sys, struct

NAME = "interleave_layers__softmax_full_mha__dense_activation_mish__prompt"
KB = 1024
_off = 0
def alloc(n):
    global _off
    o = _off
    _off += (n + 4095) // 4096 * 4096
    return o

WQKV_F = alloc(48 * 32 * KB)
WO_F   = alloc(16 * 32 * KB)
W1_F   = alloc(56 * 32 * KB)
W2_F   = alloc(16 * 112 * KB)
CS_QKV = alloc(48 * 128)
CS_W1  = alloc(56 * 128)
B1F    = alloc(56 * 128)
XF     = alloc(64 * 32 * KB)
STATS  = alloc(2048 * 128)
QF     = alloc(32 * 64 * KB)
KF     = alloc(32 * 64 * KB)
VF     = alloc(32 * 64 * KB)
OF     = alloc(64 * 32 * KB)
HF     = alloc(64 * 112 * KB)
X1F    = alloc(64 * 32 * KB)
X2F    = alloc(64 * 32 * KB)
STATS1 = alloc(2048 * 128)
STATS2 = alloc(2048 * 128)
FLAGS  = alloc(3 * 2048)
WS_SIZE = 268435456

def f32(x):
    return "0x%08x" % struct.unpack("<I", struct.pack("<f", x))[0]

LOG2E = 1.4426950408889634

class Asm:
    def __init__(self):
        self.lines = []
    def __call__(self, s):
        for l in s.strip("\n").split("\n"):
            self.lines.append("    " + l.strip())
    def label(self, l):
        self.lines.append(l + ":")
    def raw(self, s):
        self.lines.append(s)
    def text(self):
        return "\n".join(self.lines) + "\n"

A = Asm()
kernels = []

def vr(b, n):
    return "v[%d:%d]" % (b, b + n - 1)

import os
PROF = int(os.environ.get("PROF", "0"))
PROF_OFF = 128 * 1024 * 1024
_kid = [0]
def stamp(i):
    if PROF:
        A("s_memtime s[%d:%d]" % (80 + 2 * i, 81 + 2 * i))
        if i == 0:
            A("s_memrealtime s[92:93]")
def stamp_flush():
    if not PROF:
        return
    A("s_memtime s[88:89]")
    A("s_memrealtime s[94:95]")
    A("s_waitcnt vmcnt(0) lgkmcnt(0)")
    A("s_mov_b64 exec, 1")
    for i in range(16):
        A("v_mov_b32 v%d, s%d" % (8 + i, 80 + i))
    A("s_lshl_b32 s96, s2, 4\ns_add_u32 s96, s96, s3\ns_lshl_b32 s96, s96, 6\ns_add_u32 s96, s96, %d" % (PROF_OFF + _kid[0] * 1024 * 1024))
    A("v_mov_b32 v24, 0")
    for q in range(4):
        A("buffer_store_dwordx4 v[%d:%d], v24, s[4:7], s96 offen offset:%d" % (8 + 4 * q, 11 + 4 * q, 16 * q))
    _kid[0] += 1

def kernel_begin(name):
    A.raw(".globl %s" % name)
    A.raw(".p2align 8")
    A.raw(".type %s,@function" % name)
    A.label(name)

def kernel_end(name, vgpr, sgpr=100, agpr=0):
    A.label("L_%s_fin" % name)
    stamp_flush()
    A.label("L_%s_end" % name)
    A("s_endpgm")
    kernels.append((name, vgpr, sgpr, agpr))

def common_prologue(name, nwg, extra_loads=""):
    A("s_cmp_ge_u32 s2, %d" % nwg)
    A("s_cbranch_scc1 L_%s_end" % name)
    A("s_load_dwordx2 s[4:5], s[0:1], 72")
    if extra_loads:
        A(extra_loads)
    A("v_and_b32 v2, 63, v0")
    A("v_lshrrev_b32 v3, 6, v0")
    A("v_lshlrev_b32 v1, 4, v2")
    A("v_readfirstlane_b32 s3, v3")
    A("s_mov_b32 s6, 0x%x" % WS_SIZE)
    A("s_mov_b32 s7, 0x00020000")
    A("s_waitcnt lgkmcnt(0)")
    stamp(0)

def cross_half_add(va, vt):
    A("v_mov_b32 v%d, v%d" % (vt, va))
    A("s_nop 1")
    A("v_permlane32_swap_b32 v%d, v%d" % (va, vt))
    A("s_nop 1")
    A("v_add_f32 v%d, v%d, v%d" % (va, va, vt))

def stats_of_packed(regs, vsum, vsq, vt0, vt1):
    first = True
    for r in regs:
        A("v_lshlrev_b32 v%d, 16, v%d" % (vt0, r))
        A("v_and_b32 v%d, 0xffff0000, v%d" % (vt1, r))
        if first:
            A("v_add_f32 v%d, v%d, v%d" % (vsum, vt0, vt1))
            A("v_mul_f32 v%d, v%d, v%d" % (vsq, vt0, vt0))
            first = False
        else:
            A("v_add_f32 v%d, v%d, v%d" % (vsum, vsum, vt0))
            A("v_add_f32 v%d, v%d, v%d" % (vsum, vsum, vt1))
            A("v_fmac_f32 v%d, v%d, v%d" % (vsq, vt0, vt0))
        A("v_fmac_f32 v%d, v%d, v%d" % (vsq, vt1, vt1))
    cross_half_add(vsum, vt0)
    cross_half_add(vsq, vt0)

def gen_prep():
    name = "prep_kernel"
    kernel_begin(name)
    common_prologue(name, 240,
        "s_load_dwordx4 s[8:11], s[0:1], 0\n"
        "s_load_dwordx2 s[12:13], s[0:1], 16\n"
        "s_load_dwordx4 s[16:19], s[0:1], 32\n"
        "s_load_dwordx2 s[20:21], s[0:1], 48")
    A("v_and_b32 v4, 31, v2")
    A("v_lshrrev_b32 v5, 5, v2")
    A("s_mov_b32 s27, 0x00020000")
    A("s_cmp_ge_u32 s2, 176")
    A("s_cbranch_scc1 L_prep_x")
    A("s_lshl_b32 s30, s3, 3")
    A("s_cmp_ge_u32 s2, 48")
    A("s_cbranch_scc1 L_prep_r1")
    A("s_mov_b32 s24, s10\ns_mov_b32 s25, s11\ns_mov_b32 s26, %d" % (512 * 1536 * 2))
    A("s_mov_b32 s28, 3072\ns_mov_b32 s29, s2")
    A("s_lshl_b32 s31, s29, 5\ns_add_u32 s31, s31, s30\ns_lshl_b32 s31, s31, 10\ns_add_u32 s31, s31, %d" % WQKV_F)
    A("s_lshl_b32 s32, s29, 7\ns_add_u32 s32, s32, %d" % CS_QKV)
    A("s_mov_b32 s33, 1")
    A("s_branch L_prep_w")
    A.label("L_prep_r1")
    A("s_cmp_ge_u32 s2, 64")
    A("s_cbranch_scc1 L_prep_r2")
    A("s_mov_b32 s24, s12\ns_mov_b32 s25, s13\ns_mov_b32 s26, %d" % (512 * 512 * 2))
    A("s_mov_b32 s28, 1024\ns_sub_u32 s29, s2, 48")
    A("s_lshl_b32 s31, s29, 5\ns_add_u32 s31, s31, s30\ns_lshl_b32 s31, s31, 10\ns_add_u32 s31, s31, %d" % WO_F)
    A("s_mov_b32 s32, 0\ns_mov_b32 s33, 0")
    A("s_branch L_prep_w")
    A.label("L_prep_r2")
    A("s_cmp_ge_u32 s2, 120")
    A("s_cbranch_scc1 L_prep_r3")
    A("s_mov_b32 s24, s16\ns_mov_b32 s25, s17\ns_mov_b32 s26, %d" % (512 * 1792 * 2))
    A("s_mov_b32 s28, 3584\ns_sub_u32 s29, s2, 64")
    A("s_lshl_b32 s31, s29, 5\ns_add_u32 s31, s31, s30\ns_lshl_b32 s31, s31, 10\ns_add_u32 s31, s31, %d" % W1_F)
    A("s_lshl_b32 s32, s29, 7\ns_add_u32 s32, s32, %d" % CS_W1)
    A("s_mov_b32 s33, 2")
    A("s_branch L_prep_w")
    A.label("L_prep_r3")
    A("s_mov_b32 s24, s20\ns_mov_b32 s25, s21\ns_mov_b32 s26, %d" % (1792 * 512 * 2))
    A("s_mov_b32 s28, 1024")
    A("s_sub_u32 s34, s2, 120\ns_lshl_b32 s34, s34, 2\ns_add_u32 s34, s34, s3")
    A("s_and_b32 s29, s34, 15\ns_lshr_b32 s30, s34, 4\ns_lshl_b32 s30, s30, 3")
    A("s_mul_i32 s31, s29, 112\ns_add_u32 s31, s31, s30\ns_lshl_b32 s31, s31, 10\ns_add_u32 s31, s31, %d" % W2_F)
    A("s_mov_b32 s32, 0\ns_mov_b32 s33, 0")
    A.label("L_prep_w")
    A("s_lshl_b32 s34, s28, 2")
    A("v_mul_lo_u32 v6, v5, s34")
    A("s_lshl_b32 s35, s29, 5")
    A("v_add_u32 v7, s35, v4")
    A("v_lshl_add_u32 v10, v7, 1, v6")
    for idx, jj in enumerate((0, 1, 2, 3, 8, 9, 10, 11)):
        if idx == 0:
            continue
        A("s_mul_i32 s34, s28, %d" % jj)
        A("v_add_u32 v%d, s34, v10" % (10 + idx))
    A("s_lshl_b32 s34, s28, 4")
    A("s_mul_i32 s35, s30, s34")
    LD = 64
    for s in range(8):
        for j in range(8):
            A("buffer_load_ushort v%d, v%d, s[24:27], s35 offen" % (LD + 8 * s + j, 10 + j))
        if s < 7:
            A("s_add_u32 s35, s35, s34")
    A("s_add_u32 s36, s31, 4096")
    PK = 32
    for s in range(8):
        A("s_waitcnt vmcnt(%d)" % (56 - 8 * s + s))
        for q in range(4):
            A("v_lshl_or_b32 v%d, v%d, 16, v%d" % (PK + 4 * s + q, LD + 8 * s + 2 * q + 1, LD + 8 * s + 2 * q))
        A("buffer_store_dwordx4 %s, v1, s[4:7], s%d offen offset:%d" % (vr(PK + 4 * s, 4), 31 if s < 4 else 36, (s % 4) * 1024))
    A("s_cmp_eq_u32 s33, 0")
    A("s_cbranch_scc1 L_%s_end" % name)
    for i in range(64):
        A("v_lshlrev_b32 v%d, 16, v%d" % (LD + i, LD + i))
    A("v_add_f32 v20, v%d, v%d" % (LD, LD + 1))
    for i in range(2, 64):
        A("v_add_f32 v20, v20, v%d" % (LD + i))
    cross_half_add(20, 21)
    A("s_lshl_b32 s34, s3, 7")
    A("v_lshlrev_b32 v22, 2, v4")
    A("v_add_u32 v22, s34, v22")
    A("ds_write_b32 v22, v20")
    A("s_waitcnt lgkmcnt(0)")
    A("s_barrier")
    A("s_cmp_lg_u32 s3, 0")
    A("s_cbranch_scc1 L_%s_end" % name)
    A("v_lshlrev_b32 v22, 2, v4")
    A("ds_read_b32 v23, v22")
    A("ds_read_b32 v24, v22 offset:128")
    A("ds_read_b32 v25, v22 offset:256")
    A("ds_read_b32 v26, v22 offset:384")
    A("v_bfe_u32 v27, v4, 2, 1")
    A("v_lshlrev_b32 v27, 4, v27")
    A("v_lshrrev_b32 v28, 3, v4")
    A("v_lshl_add_u32 v27, v28, 2, v27")
    A("v_and_b32 v28, 3, v4")
    A("v_add_u32 v27, v27, v28")
    A("v_lshlrev_b32 v27, 2, v27")
    A("s_waitcnt lgkmcnt(0)")
    A("v_add_f32 v23, v23, v24")
    A("v_add_f32 v25, v25, v26")
    A("v_add_f32 v23, v23, v25")
    A("buffer_store_dword v23, v27, s[4:7], s32 offen")
    A("s_cmp_lg_u32 s33, 2")
    A("s_cbranch_scc1 L_%s_end" % name)
    A("s_mov_b32 s40, s18\ns_mov_b32 s41, s19\ns_mov_b32 s42, %d\ns_mov_b32 s43, 0x00020000" % (1792 * 2))
    A("v_lshlrev_b32 v7, 1, v7")
    A("buffer_load_ushort v29, v7, s[40:43], 0 offen")
    A("s_lshl_b32 s34, s29, 7\ns_add_u32 s34, s34, %d" % B1F)
    A("s_waitcnt vmcnt(0)")
    A("v_lshlrev_b32 v29, 16, v29")
    A("buffer_store_dword v29, v27, s[4:7], s34 offen")
    A("s_branch L_%s_end" % name)
    A.label("L_prep_x")
    A("s_mov_b32 s24, s8\ns_mov_b32 s25, s9\ns_mov_b32 s26, %d" % (2048 * 512 * 2))
    A("s_sub_u32 s29, s2, 176")
    A("s_lshl_b32 s34, s29, 5")
    A("v_add_u32 v6, s34, v4")
    A("v_lshlrev_b32 v7, 10, v6")
    A("v_lshl_add_u32 v7, v5, 3, v7")
    A("s_lshl_b32 s35, s3, 8")
    for s in range(8):
        A("buffer_load_dwordx2 %s, v7, s[24:27], s35 offen offset:%d" % (vr(PK + 4 * s, 2), 32 * s))
        A("buffer_load_dwordx2 %s, v7, s[24:27], s35 offen offset:%d" % (vr(PK + 4 * s + 2, 2), 32 * s + 16))
    A("s_lshl_b32 s31, s29, 5\ns_lshl_b32 s34, s3, 3\ns_add_u32 s31, s31, s34\ns_lshl_b32 s31, s31, 10\ns_add_u32 s31, s31, %d" % XF)
    A("s_add_u32 s36, s31, 4096")
    A("v_lshlrev_b32 v8, 4, v4")
    A("s_lshl_b32 s37, s29, 3\ns_lshl_b32 s38, s3, 1\ns_add_u32 s37, s37, s38\ns_lshl_b32 s37, s37, 9\ns_add_u32 s37, s37, %d" % STATS)
    A("s_waitcnt vmcnt(0)")
    for s in range(8):
        A("buffer_store_dwordx4 %s, v1, s[4:7], s%d offen offset:%d" % (vr(PK + 4 * s, 4), 31 if s < 4 else 36, (s % 4) * 1024))
    for q in range(4):
        stats_of_packed([PK + 8 * q + i for i in range(8)], 20 + 2 * q, 21 + 2 * q, 12, 13)
        A("buffer_store_dwordx2 %s, v8, s[4:7], s37 offen offset:%d" % (vr(20 + 2 * q, 2), 512 * (q >> 1) + 8 * (q & 1)))
    kernel_end(name, 128)

class St:
    def __init__(self):
        self.n = {'vm': 0, 'lg': 0}
        self.tag = {}
    def copy(self):
        o = St(); o.n = dict(self.n); o.tag = dict(self.tag); return o

def I(text, cls=None, tag=None):
    return ('i', text, cls, tag)
def W(cls, tag):
    return ('w', cls, tag)

def emit(seq, st):
    for it in seq:
        if it[0] == 'i':
            _, text, cls, tag = it
            A(text)
            if cls:
                if tag is not None:
                    st.tag[tag] = st.n[cls]
                st.n[cls] += 1
        else:
            _, cls, tag = it
            n = st.n[cls] - st.tag[tag] - 1
            if cls == 'vm':
                A("s_waitcnt vmcnt(%d)" % min(n, 63))
            else:
                A("s_waitcnt lgkmcnt(%d)" % min(n, 15))

def L(txt):
    return [I(t.strip()) for t in txt.strip().split("\n")]

def s_cross_half_add(va, vt):
    return L("v_mov_b32 v%d, v%d\ns_nop 1\nv_permlane32_swap_b32 v%d, v%d\ns_nop 1\nv_add_f32 v%d, v%d, v%d" % (vt, va, va, vt, va, va, vt))


NBUF = 4
BUFSZ = 32768
X1R = 216
NVALL = 224

def decode_wg():
    A("v_and_b32 v4, 31, v2")
    A("v_lshrrev_b32 v5, 5, v2")
    A("s_and_b32 s61, s2, 7\ns_lshr_b32 s62, s2, 3\ns_lshr_b32 s60, s61, 1\ns_lshl_b32 s60, s60, 2\ns_and_b32 s63, s62, 3\ns_add_u32 s60, s60, s63\ns_lshr_b32 s62, s62, 2\ns_and_b32 s61, s61, 1")

_lab = [0]
def newlab(p):
    _lab[0] += 1
    return "L_%s_%d" % (p, _lab[0])

def publish(phase):
    A("s_waitcnt vmcnt(0)")
    A("s_barrier")
    l = newlab("pub")
    A("s_cmp_lg_u32 s3, 0")
    A("s_cbranch_scc1 %s" % l)
    A("s_lshl_b32 s64, s60, 7\ns_lshl_b32 s65, s61, 5\ns_add_u32 s64, s64, s65\ns_lshl_b32 s65, s62, 2\ns_add_u32 s64, s64, s65\ns_add_u32 s64, s64, %d" % (FLAGS + phase * 2048))
    A("v_mov_b32 v2, 0")
    A("v_mov_b32 v3, 1")
    A("s_mov_b64 exec, 1")
    A("buffer_store_dword v3, v2, s[4:7], s64 offen sc1")
    A("s_mov_b64 exec, -1")
    A.label(l)

def await_flags(phase, mask):
    l = newlab("aw"); lp = newlab("poll"); ld = newlab("done")
    A("s_cmp_lg_u32 s3, 0")
    A("s_cbranch_scc1 %s" % l)
    A("s_lshl_b32 s64, s60, 7\ns_add_u32 s64, s64, %d" % (FLAGS + phase * 2048))
    A("v_lshrrev_b32 v2, 2, v1")
    A("v_and_b32 v2, 60, v2")
    A("s_mov_b32 s66, 0x20000")
    A.label(lp)
    A("buffer_load_dword v3, v2, s[4:7], s64 offen sc1")
    A("s_waitcnt vmcnt(0)")
    A("v_cmp_eq_u32 vcc, 1, v3")
    A("s_nop 3")
    A("s_and_b32 s65, vcc_lo, 0x%x" % mask)
    A("s_cmp_eq_u32 s65, 0x%x" % mask)
    A("s_cbranch_scc1 %s" % ld)
    A("s_sleep 1")
    A("s_sub_u32 s66, s66, 1")
    A("s_cmp_lg_u32 s66, 0")
    A("s_cbranch_scc1 %s" % lp)
    A.label(ld)
    if not os.environ.get("NOINV"):
        A("buffer_inv sc1")
        A("s_waitcnt vmcnt(0)")
    A.label(l)
    A("s_barrier")

def phase_ring(kind, xin, xout, stats_out, sync=None, sc=""):
    TMB, TNB, KC = 2, 2, 8
    KS = 32 if kind == 'wo' else 112
    ACT = OF if kind == 'wo' else HF
    WOFF = WO_F if kind == 'wo' else W2_F
    NC = KS // KC
    A("s_lshr_b32 s8, s62, 2\ns_lshl_b32 s8, s8, 1\ns_lshl_b32 s9, s60, 2\ns_add_u32 s8, s8, s9")
    A("s_and_b32 s9, s62, 3\ns_lshl_b32 s10, s61, 2\ns_add_u32 s9, s9, s10\ns_lshl_b32 s9, s9, 1")
    A("s_lshr_b32 s16, s3, 1\ns_and_b32 s17, s3, 1")
    A("s_add_u32 s18, s16, s8\ns_add_u32 s19, s17, s9")
    ACC = 16; FR = 32; FSET = 8; NSET = 3; XO = 56
    A("s_lshl_b32 s20, s18, 5\ns_lshl_b32 s21, s19, 1\ns_add_u32 s20, s20, s21\ns_lshl_b32 s20, s20, 10")
    if xin is not None:
        A("s_add_u32 s21, s20, %d" % xin)
        A("buffer_load_dwordx4 %s, v1, s[4:7], s21 offen" % vr(XO, 4))
        A("buffer_load_dwordx4 %s, v1, s[4:7], s21 offen offset:1024" % vr(XO + 4, 4))
    A("s_and_b32 s14, s3, 1")
    A("s_mov_b32 s24, %d\ns_mov_b32 s25, %d" % (ACT, WOFF))
    A("s_cmp_lt_u32 s3, 2")
    A("s_cselect_b32 s15, s8, s9")
    A("s_cselect_b32 s24, s24, s25")
    A("s_add_u32 s15, s15, s14")
    A("s_mul_i32 s15, s15, %d" % (KS * 1024))
    A("s_add_u32 s10, s24, s15")
    A("s_add_u32 s11, s10, 4096")
    A("s_lshl_b32 s12, s3, 13")
    A("s_add_u32 s13, s12, 4096")
    def dma(c):
        bo = (c % NBUF) * BUFSZ
        for u in range(2):
            A("s_add_u32 m0, s%d, %d" % (12 + u, bo))
            A("s_nop 0")
            for q in range(4):
                A("buffer_load_dwordx4 v1, s[4:7], s%d offen offset:%d lds" % (10 + u, 1024 * q))
        A("s_add_u32 s10, s10, %d\ns_add_u32 s11, s11, %d" % (KC * 1024, KC * 1024))
    NPRE = min(NBUF - 1, NC)
    if sync is None:
        for c in range(NPRE):
            dma(c)
    else:
        l1 = newlab("wpre"); l2 = newlab("apre")
        A("s_cmp_lt_u32 s3, 2")
        A("s_cbranch_scc1 %s" % l1)
        for c in range(NPRE):
            dma(c)
        A.label(l1)
        sync()
        A("s_cmp_ge_u32 s3, 2")
        A("s_cbranch_scc1 %s" % l2)
        for c in range(NPRE):
            dma(c)
        A.label(l2)
    issued = NPRE - 1
    A("s_lshl_b32 s26, s16, 13")
    A("v_add_u32 v10, s26, v1")
    A("s_lshl_b32 s26, s17, 13\ns_add_u32 s26, s26, %d" % (TMB * KC * 1024))
    A("v_add_u32 v11, s26, v1")
    A("v_add_u32 v12, 0x10000, v10")
    A("v_add_u32 v13, 0x10000, v11")
    def reads(c, s_, st):
        o = (c % NBUF) * BUFSZ + s_ * 1024
        A("ds_read_b128 %s, v%d offset:%d" % (vr(FR + st * FSET, 4), 10 if o < 65536 else 12, o % 65536))
        A("ds_read_b128 %s, v%d offset:%d" % (vr(FR + st * FSET + 4, 4), 11 if o < 65536 else 13, o % 65536))
    for c in range(NC):
        A("s_waitcnt vmcnt(%d)" % (8 * (issued - c)))
        A("s_barrier")
        if c + NBUF - 1 < NC:
            dma(c + NBUF - 1)
            issued = c + NBUF - 1
        reads(c, 0, 0)
        reads(c, 1, 1)
        for s_ in range(KC):
            st = s_ % NSET
            if s_ + 2 < KC:
                reads(c, s_ + 2, (s_ + 2) % NSET)
            A("s_waitcnt lgkmcnt(%d)" % (min(KC - 1 - s_, 2) * 2))
            A("v_mfma_f32_32x32x16_bf16 %s, %s, %s, %s" % (vr(ACC, 16), vr(FR + st * FSET + 4, 4), vr(FR + st * FSET, 4), "0" if (c == 0 and s_ == 0) else vr(ACC, 16)))
    A("s_nop 15")
    A("s_nop 3")
    T0, T1 = 6, 7
    XS = XO if xin is not None else X1R
    acc = ACC
    for i in range(8):
        A("v_lshlrev_b32 v%d, 16, v%d" % (T0, XS + i))
        A("v_and_b32 v%d, 0xffff0000, v%d" % (T1, XS + i))
        A("v_add_f32 v%d, v%d, v%d" % (acc + 2 * i, acc + 2 * i, T0))
        A("v_add_f32 v%d, v%d, v%d" % (acc + 2 * i + 1, acc + 2 * i + 1, T1))
    for i in range(8):
        A("v_cvt_pk_bf16_f32 v%d, v%d, v%d" % (X1R + i, acc + 2 * i, acc + 2 * i + 1))
    if kind == 'w2f':
        A("s_mov_b32 s42, %d\ns_mov_b32 s43, 0x00020000" % (2048 * 512 * 2))
        A("s_lshl_b32 s30, s18, 5")
        A("v_add_u32 v%d, s30, v4" % T0)
        A("v_lshlrev_b32 v%d, 10, v%d" % (T0, T0))
        A("v_lshl_add_u32 v%d, v5, 3, v%d" % (T0, T0))
        A("s_lshl_b32 s31, s19, 6")
        for g in range(4):
            A("buffer_store_dwordx2 %s, v%d, s[40:43], s31 offen offset:%d" % (vr(X1R + 2 * g, 2), T0, 16 * g))
    else:
        A("s_add_u32 s21, s20, %d" % xout)
        A("buffer_store_dwordx4 %s, v1, s[4:7], s21 offen%s" % (vr(X1R, 4), sc))
        A("buffer_store_dwordx4 %s, v1, s[4:7], s21 offen offset:1024%s" % (vr(X1R + 4, 4), sc))
        stats_of_packed([X1R + i for i in range(8)], XO + 8, XO + 9, T0, T1)
        A("v_lshlrev_b32 v%d, 4, v4" % T0)
        A("s_lshl_b32 s30, s18, 3\ns_lshr_b32 s31, s19, 1\ns_add_u32 s30, s30, s31\ns_lshl_b32 s30, s30, 9\ns_and_b32 s31, s19, 1\ns_lshl_b32 s31, s31, 3\ns_add_u32 s31, s31, s30\ns_add_u32 s31, s31, %d" % stats_out)
        A("buffer_store_dwordx2 %s, v%d, s[4:7], s31 offen%s" % (vr(XO + 8, 2), T0, sc))

def phase_res(kind, xin, stats_in, sync=None, sc="", endlab=None):
    WOFF = WQKV_F if kind == 'qkv' else W1_F
    NH = 6 if kind == 'qkv' else 7
    tagname = newlab(kind)
    A("s_lshl_b32 s8, s60, 2")
    A("s_mul_i32 s9, s61, %d\ns_add_u32 s9, s9, s62\ns_lshl_b32 s9, s9, 2" % NH)
    A("s_add_u32 s19, s9, s3")
    ACC = 16; AF = 80; CSR = 112; BR = 128; STF = 144; TMP = 152; STL = 168; TK = 184
    st = St()
    PD = int(os.environ.get("PD", "2"))
    A("s_add_u32 s10, s8, s3\ns_lshl_b32 s10, s10, 15\ns_add_u32 s10, s10, %d" % xin)
    A("s_lshl_b32 s12, s3, 15")
    A("s_lshl_b32 s13, s19, 15\ns_add_u32 s13, s13, %d" % WOFF)
    def a_loads(c):
        seq = [I("s_add_u32 m0, s12, %d" % (c * 4096)), I("s_nop 0")]
        for q in range(4):
            seq.append(I("buffer_load_dwordx4 v1, s[4:7], s10 offen offset:%d lds" % (1024 * q), 'vm', ('A', c)))
        seq += L("s_add_u32 s10, s10, 4096")
        return seq
    def b_loads(c):
        seq = []
        for q in range(4):
            s_ = 4 * c + q
            seq.append(I("buffer_load_dwordx4 a[%d:%d], v1, s[4:7], s13 offen offset:%d" % (4 * s_, 4 * s_ + 3, 1024 * q), 'vm', ('B', c)))
        seq += L("s_add_u32 s13, s13, 4096")
        return seq
    cs_l = []
    cs_l += L("v_lshlrev_b32 v14, 6, v5\ns_lshl_b32 s22, s19, 7\ns_add_u32 s22, s22, %d" % (CS_QKV if kind == 'qkv' else CS_W1))
    for q in range(4):
        cs_l.append(I("buffer_load_dwordx4 %s, v14, s[4:7], s22 offen offset:%d" % (vr(CSR + 4 * q, 4), 16 * q), 'vm', 'misc'))
    if kind == 'qkv':
        cs_l += L("v_bfe_u32 v15, v4, 2, 1\nv_lshlrev_b32 v15, 4, v15\nv_lshrrev_b32 v3, 3, v4\nv_lshl_add_u32 v15, v3, 2, v15\nv_and_b32 v3, 3, v4\nv_add_u32 v15, v15, v3\nv_lshlrev_b32 v15, 2, v15")
        cs_l.append(I("buffer_load_dword v%d, v15, s[4:7], s22 offen" % BR, 'vm', 'misc'))
    else:
        cs_l += L("s_lshl_b32 s23, s19, 7\ns_add_u32 s23, s23, %d" % B1F)
        for q in range(4):
            cs_l.append(I("buffer_load_dwordx4 %s, v14, s[4:7], s23 offen offset:%d" % (vr(BR + 4 * q, 4), 16 * q), 'vm', 'misc'))
    st_l = L("s_add_u32 s21, s8, s3\ns_lshl_b32 s21, s21, 12\ns_add_u32 s21, s21, %d" % stats_in)
    for q in range(4):
        st_l.append(I("buffer_load_dwordx4 %s, v1, s[4:7], s21 offen offset:%d" % (vr(STL + 4 * q, 4), 1024 * q), 'vm', 'misc'))
    if sync is None:
        def chunk_loads(c):
            return a_loads(c) + b_loads(c)
        misc = st_l + cs_l
    else:
        for c in range(8):
            emit(b_loads(c), st)
        emit(cs_l, st)
        sync()
        chunk_loads = a_loads
        misc = st_l
        PD = int(os.environ.get("PD2", "3"))
    for c in range(PD):
        emit(chunk_loads(c), st)
    A("v_add_u32 v11, 0x10000, v1")
    SCR = 131072
    A("s_lshl_b32 s26, s3, 8")
    A("v_lshlrev_b32 v12, 3, v4")
    A("v_add_u32 v13, %d, v12" % SCR)
    A("v_add_u32 v12, s26, v13")
    def stats_stream():
        seq = [W('vm', 'misc')]
        b = STL
        for p in range(1, 8):
            seq.append(I("v_add_f32 v%d, v%d, v%d" % (b, b, b + 2 * p)))
            seq.append(I("v_add_f32 v%d, v%d, v%d" % (b + 1, b + 1, b + 2 * p + 1)))
        seq += s_cross_half_add(b, b + 2)
        seq += s_cross_half_add(b + 1, b + 2)
        seq += L("v_mul_f32 v%d, %s, v%d" % (b, f32(1.0 / 512), b))
        seq += L("v_mul_f32 v%d, %s, v%d" % (b + 1, f32(1.0 / 512), b + 1))
        seq += L("v_fma_f32 v%d, -v%d, v%d, v%d" % (b + 1, b, b, b + 1))
        seq += L("v_max_f32 v%d, 0, v%d" % (b + 1, b + 1))
        seq += L("v_add_f32 v%d, %s, v%d" % (b + 1, f32(1e-5), b + 1))
        seq += L("v_rsq_f32 v%d, v%d\ns_nop 0" % (b + 1, b + 1))
        seq += L("v_mul_f32 v%d, v%d, v%d" % (b, b, b + 1))
        seq.append(I("ds_write_b64 v12, %s" % vr(b, 2), 'lg', 'sw'))
        return seq
    def run(orient, epi, st):
        def rd(g):
            seq = []
            c = g >> 2
            if g % 4 == 0:
                seq.append(W('vm', ('A', c)))
                if c == 7:
                    seq.append(W('lg', 'sw'))
                seq.append(I("s_barrier"))
                if c == 7 and orient == 1:
                    for t in range(4):
                        seq.append(I("ds_read_b64 %s, v13 offset:%d" % (vr(STF + 2 * t, 2), 256 * t), 'lg', 'sr'))
            for mi in range(4):
                o = mi * 32768 + g * 1024
                seq.append(I("ds_read_b128 %s, v%d offset:%d" % (vr(AF + 16 * (g & 1) + 4 * mi, 4), 1 if o < 65536 else 11, o % 65536), 'lg', ('R', g, mi)))
            return seq
        side = {}
        for c in range(8):
            side[c] = chunk_loads(c + PD) if c + PD < 8 else []
        side[1] = side[1] + list(misc)
        side[5] = side[5] + stats_stream()
        emit(rd(0), st)
        for g in range(32):
            c = g >> 2
            seq = []
            if g + 1 < 32:
                seq += rd(g + 1)
            if g % 4 == 0:
                seq.append(W('vm', ('B', c)))
            sd = side.get(c, [])
            for mi in range(4):
                seq.append(W('lg', ('R', g, mi)))
                acc = ACC + 16 * mi
                a_, b_ = "a[%d:%d]" % (4 * g, 4 * g + 3), vr(AF + 16 * (g & 1) + 4 * mi, 4)
                if orient == 2:
                    a_, b_ = b_, a_
                seq.append(I("v_mfma_f32_32x32x16_bf16 %s, %s, %s, %s" % (vr(acc, 16), a_, b_, "0" if g == 0 else vr(acc, 16))))
                slot = (g % 4) * 4 + mi
                take = -(-len(sd) // (14 - slot)) if slot < 14 else len(sd)
                seq += sd[:take]
                del sd[:take]
            emit(seq, st)
        A("s_nop 15")
        A("s_nop 3")
        for mi in range(4):
            emit(epi(mi), st)
    T0, T1, T2, T3 = 6, 7, 8, 9
    if kind == 'qkv':
        A("s_cmp_ge_u32 s9, 32")
        A("s_cbranch_scc1 %s_v" % tagname)
        A("s_cmp_lt_u32 s9, 16")
        A("s_cselect_b32 s27, %s, 1.0" % f32(0.25 * LOG2E))
        A("s_mov_b32 s28, %d\ns_mov_b32 s29, %d" % (QF, KF - 32 * 64 * 1024))
        A("s_cselect_b32 s28, s28, s29")
        A("s_lshl_b32 s30, s19, 7\ns_add_u32 s30, s30, s8\ns_lshl_b32 s30, s30, 10\ns_add_u32 s30, s30, s28\ns_add_u32 s31, s30, 65536")
        def epi_qk(mi):
            acc = ACC + 16 * mi
            seq = [W('lg', 'sr')] + L("v_mul_f32 v%d, s27, v%d\nv_mul_f32 v%d, s27, v%d" % (T0, STF + 2 * mi + 1, T1, STF + 2 * mi))
            for i in range(16):
                seq += L("v_mul_f32 v%d, v%d, v%d" % (acc + i, acc + i, T0))
                seq += L("v_fma_f32 v%d, -v%d, v%d, v%d" % (acc + i, T1, CSR + i, acc + i))
            for i in range(8):
                seq += L("v_cvt_pk_bf16_f32 v%d, v%d, v%d" % (acc + i, acc + 2 * i, acc + 2 * i + 1))
            seq.append(I("buffer_store_dwordx4 %s, v1, s[4:7], s30 offen offset:%d" % (vr(acc, 4), 1024 * mi), 'vm'))
            seq.append(I("buffer_store_dwordx4 %s, v1, s[4:7], s31 offen offset:%d" % (vr(acc + 4, 4), 1024 * mi), 'vm'))
            return seq
        run(1, epi_qk, st.copy())
        A("s_branch %s" % endlab)
        A.label("%s_v" % tagname)
        A("v_lshlrev_b32 v%d, 5, v5" % T1)
        A("v_add_u32 v%d, %d, v%d" % (T1, SCR, T1))
        A("v_lshrrev_b32 v%d, 4, v4" % T2)
        A("v_lshlrev_b32 v%d, 16, v%d" % (T2, T2))
        A("v_and_b32 v%d, 15, v4" % T3)
        A("v_lshl_add_u32 v%d, v5, 4, v%d" % (T3, T3))
        A("v_lshl_add_u32 v%d, v%d, 4, v%d" % (T2, T3, T2))
        A("s_sub_u32 s30, s19, 32\ns_lshl_b32 s30, s30, 7\ns_add_u32 s30, s30, s8\ns_lshl_b32 s30, s30, 10\ns_add_u32 s30, s30, %d" % VF)
        def epi_v(mi):
            acc = ACC + 16 * mi
            seq = []
            for g in range(4):
                seq.append(I("ds_read_b128 %s, v%d offset:%d" % (vr(TK + 8 * g, 4), T1, 256 * mi + 64 * g), 'lg'))
                seq.append(I("ds_read_b128 %s, v%d offset:%d" % (vr(TK + 8 * g + 4, 4), T1, 256 * mi + 64 * g + 16), 'lg', ('tk', mi)))
            seq.append(W('lg', ('tk', mi)))
            for i in range(16):
                g, r = i >> 2, i & 3
                mr = TK + 8 * g + 2 * r
                seq += L("v_mul_f32 v%d, v%d, v%d" % (acc + i, acc + i, mr + 1))
                seq += L("v_fma_f32 v%d, -v%d, v%d, v%d" % (acc + i, mr, BR, acc + i))
            for i in range(8):
                seq += L("v_cvt_pk_bf16_f32 v%d, v%d, v%d" % (acc + i, acc + 2 * i, acc + 2 * i + 1))
            seq.append(I("buffer_store_dwordx4 %s, v%d, s[4:7], s30 offen offset:%d" % (vr(acc, 4), T2, 1024 * mi), 'vm'))
            seq.append(I("buffer_store_dwordx4 %s, v%d, s[4:7], s30 offen offset:%d" % (vr(acc + 4, 4), T2, 1024 * mi + 512), 'vm'))
            return seq
        run(2, epi_v, st.copy())
    else:
        A("s_mul_i32 s30, s8, 112\ns_lshl_b32 s31, s19, 1\ns_add_u32 s30, s30, s31\ns_lshl_b32 s30, s30, 10\ns_add_u32 s30, s30, %d" % HF)
        def epi_w1(mi):
            acc = ACC + 16 * mi
            b = STF + 2 * mi
            seq = [W('lg', 'sr')]
            for i0 in range(0, 16, 4):
                tt = [TMP + 2 * k for k in range(4)]
                for k in range(4):
                    i = i0 + k
                    seq += L("v_fma_f32 v%d, -v%d, v%d, v%d" % (tt[k], b, CSR + i, BR + i))
                    seq += L("v_fma_f32 v%d, v%d, v%d, v%d" % (acc + i, acc + i, b + 1, tt[k]))
                    seq += L("v_mul_f32 v%d, %s, v%d" % (tt[k], f32(LOG2E), acc + i))
                for k in range(4):
                    seq += L("v_exp_f32 v%d, v%d" % (tt[k], tt[k]))
                for k in range(4):
                    seq += L("v_add_f32 v%d, 2.0, v%d" % (tt[k] + 1, tt[k]))
                    seq += L("v_fma_f32 v%d, v%d, v%d, 2.0" % (tt[k], tt[k], tt[k] + 1))
                for k in range(4):
                    seq += L("v_rcp_f32 v%d, v%d" % (tt[k], tt[k]))
                for k in range(4):
                    i = i0 + k
                    seq += L("v_mul_f32 v%d, v%d, v%d" % (tt[k], acc + i, tt[k]))
                for k in range(4):
                    i = i0 + k
                    seq += L("v_fma_f32 v%d, v%d, -2.0, v%d" % (acc + i, tt[k], acc + i))
            for i in range(8):
                seq += L("v_cvt_pk_bf16_f32 v%d, v%d, v%d" % (acc + i, acc + 2 * i, acc + 2 * i + 1))
            seq.append(I("buffer_store_dwordx4 %s, v1, s[4:7], s30 offen%s" % (vr(acc, 4), sc), 'vm'))
            seq.append(I("buffer_store_dwordx4 %s, v1, s[4:7], s30 offen offset:1024%s" % (vr(acc + 4, 4), sc), 'vm'))
            seq.append(I("s_add_u32 s30, s30, %d" % (112 * 1024)))
            return seq
        run(1, epi_w1, st)

def gen_qkv0():
    name = "qkv_kernel"
    kernel_begin(name)
    common_prologue(name, 256)
    decode_wg()
    A("s_cmp_ge_u32 s62, 6")
    A("s_cbranch_scc1 L_%s_end" % name)
    phase_res('qkv', XF, STATS, endlab="L_%s_fin" % name)
    kernel_end(name, NVALL, agpr=128)
    return 256, 131072 + 1024

def gen_chain(name, last):
    kernel_begin(name)
    common_prologue(name, 256, "s_load_dwordx2 s[40:41], s[0:1], 56" if last else "")
    decode_wg()
    xin = X2F if last else XF
    phase_ring('wo', xin, X1F, STATS1, sc=" sc1")
    stamp(1)
    publish(0)
    if last:
        stamp(2)
    lskip = newlab("skipw1")
    A("s_cmp_ge_u32 s62, 7")
    A("s_cbranch_scc1 %s" % lskip)
    def aw0():
        await_flags(0, 0xffff)
        if last:
            stamp(3)
    phase_res('w1', X1F, STATS1, sync=aw0, sc=" sc1")
    if last and PROF:
        A("s_branch L_%s_fin" % name)
    publish(1)
    A.label(lskip)
    if not last:
        stamp(2)
    phase_ring('w2f' if last else 'w2', None, X2F, STATS2, sync=lambda: await_flags(1, 0x7f7f), sc=" sc1")
    if not last:
        stamp(3)
        publish(2)
        A("s_cmp_ge_u32 s62, 6")
        A("s_cbranch_scc1 L_%s_end" % name)
        phase_res('qkv', X2F, STATS2, sync=lambda: await_flags(2, 0xffff), endlab="L_%s_fin" % name)
    kernel_end(name, NVALL, agpr=128)
    return 256, 131072 + 1024

def gen_attn():
    name = "attn_kernel"
    kernel_begin(name)
    common_prologue(name, 256)
    A("v_and_b32 v4, 31, v2")
    A("v_lshrrev_b32 v5, 5, v2")
    A("s_and_b32 s8, s2, 7\ns_lshr_b32 s9, s2, 3\ns_lshl_b32 s8, s8, 2\ns_and_b32 s10, s9, 3\ns_add_u32 s8, s8, s10\ns_lshr_b32 s9, s9, 2")
    A("s_and_b32 s24, s3, 7\ns_lshr_b32 s25, s3, 3")
    A("s_cmp_lg_u32 s2, 0")
    A("s_cbranch_scc1 L_attn_nz")
    A("s_cmp_ge_u32 s3, 6")
    A("s_cbranch_scc1 L_attn_nz")
    A("v_mov_b32 v8, 0\nv_mov_b32 v9, 0\nv_mov_b32 v10, 0\nv_mov_b32 v11, 0")
    A("s_lshl_b32 s26, s3, 10\ns_add_u32 s26, s26, %d" % FLAGS)
    A("buffer_store_dwordx4 v[8:11], v1, s[4:7], s26 offen")
    A("s_nop 1")
    A.label("L_attn_nz")
    A("s_lshl_b32 s9, s9, 3\ns_add_u32 s9, s9, s24")
    Q = 8; NEG = 12; S0 = 28; S1 = 44; P = 60; K0 = 68; K1 = 72; V0 = 76; V1 = 84; O = 92
    SS = (S0, S1); KK = (K0, K1); VV = (V0, V1)
    SCR = 131072 + 4096
    A("s_lshl_b32 s10, s8, 6\ns_add_u32 s11, s10, s9\ns_lshl_b32 s11, s11, 10\ns_add_u32 s11, s11, %d" % QF)
    A("buffer_load_dwordx4 %s, v1, s[4:7], s11 offen" % vr(Q, 4))
    A("s_lshl_b32 s10, s10, 10")
    A("s_add_u32 s12, s10, %d" % KF)
    A("s_add_u32 s13, s10, %d" % VF)
    A("s_lshl_b32 s14, s25, 5\ns_add_u32 s14, s14, s24\ns_lshl_b32 s14, s14, 10")
    A("s_add_u32 s15, s12, s14")
    A("s_add_u32 s16, s13, s14")
    A("s_mov_b32 m0, s14")
    A("s_nop 0")
    A("buffer_load_dwordx4 v1, s[4:7], s15 offen lds")
    A("s_add_u32 m0, s14, 0x10000")
    A("s_nop 0")
    A("buffer_load_dwordx4 v1, s[4:7], s16 offen lds")
    A("v_and_b32 v6, 27, v4")
    A("v_cmp_eq_u32 vcc, 16, v6")
    A("v_mov_b32 v7, 0x3f803f80")
    A("s_nop 1")
    A("v_cndmask_b32 v6, 0, v7, vcc")
    for i in range(16):
        A("v_mov_b32 v%d, v6" % (V0 + i))
    A("s_mov_b32 s20, 0xffff\ns_mov_b32 s21, 0xffff")
    A("s_mov_b32 s22, 0")
    A("s_lshl_b32 s26, s25, 15")
    A("s_waitcnt vmcnt(0)")
    A("s_barrier")
    stamp(1)
    A("s_mul_i32 s14, s24, 3\ns_add_u32 s14, s14, 8\ns_lshl_b32 s17, s25, 5\ns_add_u32 s14, s14, s17\ns_lshl_b32 s14, s14, 10")
    A("s_add_u32 s15, s12, s14")
    A("s_add_u32 s16, s13, s14")
    A("s_mov_b32 m0, s14")
    A("s_nop 0")
    for q in range(3):
        A("buffer_load_dwordx4 v1, s[4:7], s15 offen offset:%d lds" % (1024 * q))
    A("s_add_u32 m0, s14, 0x10000")
    A("s_nop 0")
    for q in range(3):
        A("buffer_load_dwordx4 v1, s[4:7], s16 offen offset:%d lds" % (1024 * q))
    A("ds_read_b128 %s, v1" % vr(K0, 4))
    A("s_waitcnt lgkmcnt(0)")
    A("v_mfma_f32_32x32x16_bf16 %s, %s, %s, 0" % (vr(S0, 16), vr(K0, 4), vr(Q, 4)))
    A("s_nop 15")
    A("s_nop 3")
    def max16(dst, S, init=False):
        if init:
            A("v_max3_f32 v%d, v%d, v%d, v%d" % (dst, S, S + 1, S + 2))
            A("v_max_f32 v%d, v%d, v%d" % (dst, dst, S + 3))
            rest = list(range(4, 16))
        else:
            rest = list(range(0, 16))
        for i in range(0, len(rest), 2):
            A("v_max3_f32 v%d, v%d, v%d, v%d" % (dst, dst, S + rest[i], S + rest[i + 1]))
    max16(6, S0, True)
    A.label("L_attn_setneg")
    A("v_mov_b32 v7, v6")
    A("s_nop 1")
    A("v_permlane32_swap_b32 v6, v7")
    A("s_nop 1")
    A("v_max_f32 v6, v6, v7")
    A("v_sub_f32 v%d, 0, v6" % NEG)
    for i in range(1, 16):
        A("v_mov_b32 v%d, v%d" % (NEG + i, NEG))
    A("v_add_u32 v2, s26, v1")
    A("v_lshl_add_u32 v3, v5, 4, v4")
    A("v_lshlrev_b32 v3, 4, v3")
    A("v_add_u32 v3, 0x10000, v3")
    A("v_add_u32 v3, s26, v3")
    for i in range(16):
        A("v_mov_b32 v%d, 0" % (O + i))
    def vread(p, off):
        A("s_mov_b64 exec, s[20:21]")
        A("ds_read_b128 %s, v3 offset:%d" % (vr(VV[p], 4), off))
        A("ds_read_b128 %s, v3 offset:%d" % (vr(VV[p] + 4, 4), off + 512))
        A("s_mov_b64 exec, -1")
    A("ds_read_b128 %s, v2" % vr(K0, 4))
    vread(0, 0)
    A("s_waitcnt lgkmcnt(0)")
    A("v_mfma_f32_32x32x16_bf16 %s, %s, %s, %s" % (vr(S0, 16), vr(K0, 4), vr(Q, 4), vr(NEG, 16)))
    A("ds_read_b128 %s, v2 offset:1024" % vr(K1, 4))
    vread(1, 1024)
    A("s_nop 7")
    def body():
        for p in range(2):
            S = SS[p]
            A("s_waitcnt lgkmcnt(2)")
            A("v_mfma_f32_32x32x16_bf16 %s, %s, %s, %s" % (vr(SS[1 - p], 16), vr(KK[1 - p], 4), vr(Q, 4), vr(NEG, 16)))
            A("ds_read_b128 %s, v2 offset:%d" % (vr(KK[p], 4), 2048 + 1024 * p))
            for i in range(8):
                A("v_exp_f32 v%d, v%d" % (S + i, S + i))
            for i in range(4):
                A("v_cvt_pk_bf16_f32 v%d, v%d, v%d" % (P + i, S + 2 * i, S + 2 * i + 1))
            for i in range(8, 10):
                A("v_exp_f32 v%d, v%d" % (S + i, S + i))
            A("v_mfma_f32_32x32x16_bf16 %s, %s, %s, %s" % (vr(O, 16), vr(VV[p], 4), vr(P, 4), vr(O, 16)))
            for i in range(10, 16):
                A("v_exp_f32 v%d, v%d" % (S + i, S + i))
            for i in range(4):
                A("v_cvt_pk_bf16_f32 v%d, v%d, v%d" % (P + 4 + i, S + 8 + 2 * i, S + 8 + 2 * i + 1))
            if p == 1:
                A("v_add_u32 v2, 2048, v2")
                A("s_sub_u32 s23, s23, 1")
            else:
                A("s_nop 1")
            A("v_mfma_f32_32x32x16_bf16 %s, %s, %s, %s" % (vr(O, 16), vr(VV[p] + 4, 4), vr(P + 4, 4), vr(O, 16)))
            vread(p, 2048 + 1024 * p)
        A("v_add_u32 v3, 2048, v3")
        A("s_cmp_lg_u32 s23, 0")
    A("s_cmp_lg_u32 s22, 0")
    A("s_cbranch_scc0 L_attn_phA")
    A("s_mov_b32 s23, 32")
    A("s_branch L_attn_loopB")
    A.label("L_attn_phA")
    A("s_mov_b32 s23, 3")
    A.label("L_attn_loopA")
    body()
    A("s_cbranch_scc1 L_attn_loopA")
    stamp(2)
    A("s_waitcnt vmcnt(0)")
    A("s_barrier")
    stamp(3)
    A("s_mov_b32 s23, 13")
    A.label("L_attn_loopB")
    body()
    A("s_cbranch_scc1 L_attn_loopB")
    A("s_waitcnt lgkmcnt(0)")
    A("s_nop 15")
    A("s_nop 3")
    A("s_cmp_lg_u32 s22, 0")
    A("s_cbranch_scc1 L_attn_fin")
    A("s_mul_i32 s27, s24, %d" % (9 * 256))
    A("v_lshrrev_b32 v6, 2, v1")
    A("v_add_u32 v6, s27, v6")
    A("v_add_u32 v6, %d, v6" % SCR)
    A("s_cmp_eq_u32 s25, 0")
    A("s_cbranch_scc1 L_attn_lo")
    for i in range(9):
        A("ds_write_b32 v6, v%d offset:%d" % (O + i, 256 * i))
    A("s_waitcnt lgkmcnt(0)")
    A("s_barrier")
    A("s_branch L_%s_end" % name)
    A.label("L_attn_lo")
    A("s_barrier")
    for i in range(9):
        A("ds_read_b32 v%d, v6 offset:%d" % (S0 + i, 256 * i))
    A("s_waitcnt lgkmcnt(0)")
    for i in range(9):
        A("v_add_f32 v%d, v%d, v%d" % (O + i, O + i, S0 + i))
    A("v_cmp_gt_f32 vcc, 0x5f800000, v%d" % (O + 8))
    A("s_nop 3")
    A("s_cmp_eq_u64 vcc, exec")
    A("s_cbranch_scc1 L_attn_fin")
    A("s_mov_b32 s22, 1")
    A("v_mov_b32 v2, v1")
    A("v_mov_b32 v6, 0xff800000")
    A("s_mov_b32 s23, 64")
    A.label("L_attn_maxp")
    A("ds_read_b128 %s, v2" % vr(K0, 4))
    A("s_waitcnt lgkmcnt(0)")
    A("v_mfma_f32_32x32x16_bf16 %s, %s, %s, 0" % (vr(S0, 16), vr(K0, 4), vr(Q, 4)))
    A("s_nop 15")
    A("s_nop 3")
    max16(6, S0, False)
    A("v_add_u32 v2, 1024, v2")
    A("s_sub_u32 s23, s23, 1")
    A("s_cmp_lg_u32 s23, 0")
    A("s_cbranch_scc1 L_attn_maxp")
    A("s_branch L_attn_setneg")
    A.label("L_attn_fin")
    A("v_rcp_f32 v6, v%d" % (O + 8))
    A("s_nop 0")
    for i in range(8):
        A("v_mul_f32 v%d, v%d, v6" % (O + i, O + i))
    for i in range(4):
        A("v_cvt_pk_bf16_f32 v%d, v%d, v%d" % (O + i, O + 2 * i, O + 2 * i + 1))
    A("s_lshl_b32 s10, s9, 5\ns_add_u32 s10, s10, s8\ns_lshl_b32 s10, s10, 10\ns_add_u32 s10, s10, %d" % OF)
    A("buffer_store_dwordx4 %s, v1, s[4:7], s10 offen" % vr(O, 4))
    kernel_end(name, 112)
    return 256, SCR + 8 * 9 * 256

def main():
    A.raw(".amdgcn_target \"amdgcn-amd-amdhsa--gfx950\"")
    A.raw(".text")
    gen_prep()
    g = {}
    g['qkv'] = gen_qkv0()
    g['attn'] = gen_attn()
    g['chain1'] = gen_chain("chain1_kernel", False)
    g['chain2'] = gen_chain("chain2_kernel", True)
    hdr = []
    hdr.append("; @launch kernel=prep_kernel grid=(240,1,1) block=(256,1,1) lds=512")
    seq = ['qkv', 'attn', 'chain1', 'attn', 'chain2']
    for k in seq:
        nwg, lds = g[k]
        hdr.append("; @launch kernel=%s_kernel grid=(%d,1,1) block=(%d,1,1) lds=%d" % (k, nwg, 1024 if k == 'attn' else 256, lds))
    out = "\n".join(hdr) + "\n" + A.text()
    out += ".section .rodata,\"a\"\n"
    for (name, vgpr, sgpr, agpr) in kernels:
        v = (vgpr + 3) // 4 * 4
        out += ".p2align 6\n.amdhsa_kernel %s\n" % name
        out += "  .amdhsa_next_free_vgpr %d\n  .amdhsa_next_free_sgpr %d\n  .amdhsa_accum_offset %d\n" % (v + agpr, sgpr, v)
        out += "  .amdhsa_group_segment_fixed_size 0\n  .amdhsa_kernarg_size 80\n  .amdhsa_user_sgpr_count 2\n"
        out += "  .amdhsa_user_sgpr_kernarg_segment_ptr 1\n  .amdhsa_system_sgpr_workgroup_id_x 1\n.end_amdhsa_kernel\n"
    path = sys.argv[1] if len(sys.argv) > 1 else "cdna_kernels/%s.s" % NAME
    open(path, "w").write(out)
    print("wrote", path, len(out), "bytes")

if __name__ == "__main__":
    main()
```

```python
import sys, struct

NAME = "interleave_layers__softmax_full_mha__dense_activation_mish__prompt"
KB = 1024
_off = 0
def alloc(n):
    global _off
    o = _off
    _off += (n + 4095) // 4096 * 4096
    return o

WQKV_F = alloc(48 * 32 * KB)
WO_F   = alloc(16 * 32 * KB)
W1_F   = alloc(56 * 32 * KB)
W2_F   = alloc(16 * 112 * KB)
CS_QKV = alloc(48 * 128)
CS_W1  = alloc(56 * 128)
B1F    = alloc(56 * 128)
XF     = alloc(64 * 32 * KB)
STATS  = alloc(2048 * 128)
QF     = alloc(32 * 64 * KB)
KF     = alloc(32 * 64 * KB)
VF     = alloc(32 * 64 * KB)
OF     = alloc(64 * 32 * KB)
HF     = alloc(64 * 112 * KB)
X1F    = alloc(64 * 32 * KB)
X2F    = alloc(64 * 32 * KB)
STATS1 = alloc(2048 * 128)
STATS2 = alloc(2048 * 128)
FLAGS  = alloc(3 * 2048)
WS_SIZE = 268435456

def f32(x):
    return "0x%08x" % struct.unpack("<I", struct.pack("<f", x))[0]

LOG2E = 1.4426950408889634

class Asm:
    def __init__(self):
        self.lines = []
    def __call__(self, s):
        for l in s.strip("\n").split("\n"):
            self.lines.append("    " + l.strip())
    def label(self, l):
        self.lines.append(l + ":")
    def raw(self, s):
        self.lines.append(s)
    def text(self):
        return "\n".join(self.lines) + "\n"

A = Asm()
kernels = []

def vr(b, n):
    return "v[%d:%d]" % (b, b + n - 1)

import os
PROF = int(os.environ.get("PROF", "0"))
PROF_OFF = 128 * 1024 * 1024
_kid = [0]
def stamp(i):
    if PROF:
        A("s_memtime s[%d:%d]" % (80 + 2 * i, 81 + 2 * i))
        if i == 0:
            A("s_memrealtime s[92:93]")
def stamp_flush():
    if not PROF:
        return
    A("s_memtime s[88:89]")
    A("s_memrealtime s[94:95]")
    A("s_waitcnt vmcnt(0) lgkmcnt(0)")
    A("s_mov_b64 exec, 1")
    for i in range(16):
        A("v_mov_b32 v%d, s%d" % (8 + i, 80 + i))
    A("s_lshl_b32 s96, s2, 4\ns_add_u32 s96, s96, s3\ns_lshl_b32 s96, s96, 6\ns_add_u32 s96, s96, %d" % (PROF_OFF + _kid[0] * 1024 * 1024))
    A("v_mov_b32 v24, 0")
    for q in range(4):
        A("buffer_store_dwordx4 v[%d:%d], v24, s[4:7], s96 offen offset:%d" % (8 + 4 * q, 11 + 4 * q, 16 * q))
    _kid[0] += 1

def kernel_begin(name):
    A.raw(".globl %s" % name)
    A.raw(".p2align 8")
    A.raw(".type %s,@function" % name)
    A.label(name)

def kernel_end(name, vgpr, sgpr=100, agpr=0):
    A.label("L_%s_fin" % name)
    stamp_flush()
    A.label("L_%s_end" % name)
    A("s_endpgm")
    kernels.append((name, vgpr, sgpr, agpr))

def common_prologue(name, nwg, extra_loads=""):
    A("s_cmp_ge_u32 s2, %d" % nwg)
    A("s_cbranch_scc1 L_%s_end" % name)
    A("s_load_dwordx2 s[4:5], s[0:1], 72")
    if extra_loads:
        A(extra_loads)
    A("v_and_b32 v2, 63, v0")
    A("v_lshrrev_b32 v3, 6, v0")
    A("v_lshlrev_b32 v1, 4, v2")
    A("v_readfirstlane_b32 s3, v3")
    A("s_mov_b32 s6, 0x%x" % WS_SIZE)
    A("s_mov_b32 s7, 0x00020000")
    A("s_waitcnt lgkmcnt(0)")
    stamp(0)

def cross_half_add(va, vt):
    A("v_mov_b32 v%d, v%d" % (vt, va))
    A("s_nop 1")
    A("v_permlane32_swap_b32 v%d, v%d" % (va, vt))
    A("s_nop 1")
    A("v_add_f32 v%d, v%d, v%d" % (va, va, vt))

def stats_of_packed(regs, vsum, vsq, vt0, vt1):
    first = True
    for r in regs:
        A("v_lshlrev_b32 v%d, 16, v%d" % (vt0, r))
        A("v_and_b32 v%d, 0xffff0000, v%d" % (vt1, r))
        if first:
            A("v_add_f32 v%d, v%d, v%d" % (vsum, vt0, vt1))
            A("v_mul_f32 v%d, v%d, v%d" % (vsq, vt0, vt0))
            first = False
        else:
            A("v_add_f32 v%d, v%d, v%d" % (vsum, vsum, vt0))
            A("v_add_f32 v%d, v%d, v%d" % (vsum, vsum, vt1))
            A("v_fmac_f32 v%d, v%d, v%d" % (vsq, vt0, vt0))
        A("v_fmac_f32 v%d, v%d, v%d" % (vsq, vt1, vt1))
    cross_half_add(vsum, vt0)
    cross_half_add(vsq, vt0)

def gen_prep():
    name = "prep_kernel"
    kernel_begin(name)
    common_prologue(name, 240,
        "s_load_dwordx4 s[8:11], s[0:1], 0\n"
        "s_load_dwordx2 s[12:13], s[0:1], 16\n"
        "s_load_dwordx4 s[16:19], s[0:1], 32\n"
        "s_load_dwordx2 s[20:21], s[0:1], 48")
    A("v_and_b32 v4, 31, v2")
    A("v_lshrrev_b32 v5, 5, v2")
    A("s_mov_b32 s27, 0x00020000")
    A("s_cmp_ge_u32 s2, 176")
    A("s_cbranch_scc1 L_prep_x")
    A("s_lshl_b32 s30, s3, 3")
    A("s_cmp_ge_u32 s2, 48")
    A("s_cbranch_scc1 L_prep_r1")
    A("s_mov_b32 s24, s10\ns_mov_b32 s25, s11\ns_mov_b32 s26, %d" % (512 * 1536 * 2))
    A("s_mov_b32 s28, 3072\ns_mov_b32 s29, s2")
    A("s_lshl_b32 s31, s29, 5\ns_add_u32 s31, s31, s30\ns_lshl_b32 s31, s31, 10\ns_add_u32 s31, s31, %d" % WQKV_F)
    A("s_lshl_b32 s32, s29, 7\ns_add_u32 s32, s32, %d" % CS_QKV)
    A("s_mov_b32 s33, 1")
    A("s_branch L_prep_w")
    A.label("L_prep_r1")
    A("s_cmp_ge_u32 s2, 64")
    A("s_cbranch_scc1 L_prep_r2")
    A("s_mov_b32 s24, s12\ns_mov_b32 s25, s13\ns_mov_b32 s26, %d" % (512 * 512 * 2))
    A("s_mov_b32 s28, 1024\ns_sub_u32 s29, s2, 48")
    A("s_lshl_b32 s31, s29, 5\ns_add_u32 s31, s31, s30\ns_lshl_b32 s31, s31, 10\ns_add_u32 s31, s31, %d" % WO_F)
    A("s_mov_b32 s32, 0\ns_mov_b32 s33, 0")
    A("s_branch L_prep_w")
    A.label("L_prep_r2")
    A("s_cmp_ge_u32 s2, 120")
    A("s_cbranch_scc1 L_prep_r3")
    A("s_mov_b32 s24, s16\ns_mov_b32 s25, s17\ns_mov_b32 s26, %d" % (512 * 1792 * 2))
    A("s_mov_b32 s28, 3584\ns_sub_u32 s29, s2, 64")
    A("s_lshl_b32 s31, s29, 5\ns_add_u32 s31, s31, s30\ns_lshl_b32 s31, s31, 10\ns_add_u32 s31, s31, %d" % W1_F)
    A("s_lshl_b32 s32, s29, 7\ns_add_u32 s32, s32, %d" % CS_W1)
    A("s_mov_b32 s33, 2")
    A("s_branch L_prep_w")
    A.label("L_prep_r3")
    A("s_mov_b32 s24, s20\ns_mov_b32 s25, s21\ns_mov_b32 s26, %d" % (1792 * 512 * 2))
    A("s_mov_b32 s28, 1024")
    A("s_sub_u32 s34, s2, 120\ns_lshl_b32 s34, s34, 2\ns_add_u32 s34, s34, s3")
    A("s_and_b32 s29, s34, 15\ns_lshr_b32 s30, s34, 4\ns_lshl_b32 s30, s30, 3")
    A("s_mul_i32 s31, s29, 112\ns_add_u32 s31, s31, s30\ns_lshl_b32 s31, s31, 10\ns_add_u32 s31, s31, %d" % W2_F)
    A("s_mov_b32 s32, 0\ns_mov_b32 s33, 0")
    A.label("L_prep_w")
    A("s_lshl_b32 s34, s28, 2")
    A("v_mul_lo_u32 v6, v5, s34")
    A("s_lshl_b32 s35, s29, 5")
    A("v_add_u32 v7, s35, v4")
    A("v_lshl_add_u32 v10, v7, 1, v6")
    for idx, jj in enumerate((0, 1, 2, 3, 8, 9, 10, 11)):
        if idx == 0:
            continue
        A("s_mul_i32 s34, s28, %d" % jj)
        A("v_add_u32 v%d, s34, v10" % (10 + idx))
    A("s_lshl_b32 s34, s28, 4")
    A("s_mul_i32 s35, s30, s34")
    LD = 64
    for s in range(8):
        for j in range(8):
            A("buffer_load_ushort v%d, v%d, s[24:27], s35 offen" % (LD + 8 * s + j, 10 + j))
        if s < 7:
            A("s_add_u32 s35, s35, s34")
    A("s_add_u32 s36, s31, 4096")
    PK = 32
    for s in range(8):
        A("s_waitcnt vmcnt(%d)" % (56 - 8 * s + s))
        for q in range(4):
            A("v_lshl_or_b32 v%d, v%d, 16, v%d" % (PK + 4 * s + q, LD + 8 * s + 2 * q + 1, LD + 8 * s + 2 * q))
        A("buffer_store_dwordx4 %s, v1, s[4:7], s%d offen offset:%d" % (vr(PK + 4 * s, 4), 31 if s < 4 else 36, (s % 4) * 1024))
    A("s_cmp_eq_u32 s33, 0")
    A("s_cbranch_scc1 L_%s_end" % name)
    for i in range(64):
        A("v_lshlrev_b32 v%d, 16, v%d" % (LD + i, LD + i))
    A("v_add_f32 v20, v%d, v%d" % (LD, LD + 1))
    for i in range(2, 64):
        A("v_add_f32 v20, v20, v%d" % (LD + i))
    cross_half_add(20, 21)
    A("s_lshl_b32 s34, s3, 7")
    A("v_lshlrev_b32 v22, 2, v4")
    A("v_add_u32 v22, s34, v22")
    A("ds_write_b32 v22, v20")
    A("s_waitcnt lgkmcnt(0)")
    A("s_barrier")
    A("s_cmp_lg_u32 s3, 0")
    A("s_cbranch_scc1 L_%s_end" % name)
    A("v_lshlrev_b32 v22, 2, v4")
    A("ds_read_b32 v23, v22")
    A("ds_read_b32 v24, v22 offset:128")
    A("ds_read_b32 v25, v22 offset:256")
    A("ds_read_b32 v26, v22 offset:384")
    A("v_bfe_u32 v27, v4, 2, 1")
    A("v_lshlrev_b32 v27, 4, v27")
    A("v_lshrrev_b32 v28, 3, v4")
    A("v_lshl_add_u32 v27, v28, 2, v27")
    A("v_and_b32 v28, 3, v4")
    A("v_add_u32 v27, v27, v28")
    A("v_lshlrev_b32 v27, 2, v27")
    A("s_waitcnt lgkmcnt(0)")
    A("v_add_f32 v23, v23, v24")
    A("v_add_f32 v25, v25, v26")
    A("v_add_f32 v23, v23, v25")
    A("buffer_store_dword v23, v27, s[4:7], s32 offen")
    A("s_cmp_lg_u32 s33, 2")
    A("s_cbranch_scc1 L_%s_end" % name)
    A("s_mov_b32 s40, s18\ns_mov_b32 s41, s19\ns_mov_b32 s42, %d\ns_mov_b32 s43, 0x00020000" % (1792 * 2))
    A("v_lshlrev_b32 v7, 1, v7")
    A("buffer_load_ushort v29, v7, s[40:43], 0 offen")
    A("s_lshl_b32 s34, s29, 7\ns_add_u32 s34, s34, %d" % B1F)
    A("s_waitcnt vmcnt(0)")
    A("v_lshlrev_b32 v29, 16, v29")
    A("buffer_store_dword v29, v27, s[4:7], s34 offen")
    A("s_branch L_%s_end" % name)
    A.label("L_prep_x")
    A("s_mov_b32 s24, s8\ns_mov_b32 s25, s9\ns_mov_b32 s26, %d" % (2048 * 512 * 2))
    A("s_sub_u32 s29, s2, 176")
    A("s_lshl_b32 s34, s29, 5")
    A("v_add_u32 v6, s34, v4")
    A("v_lshlrev_b32 v7, 10, v6")
    A("v_lshl_add_u32 v7, v5, 3, v7")
    A("s_lshl_b32 s35, s3, 8")
    for s in range(8):
        A("buffer_load_dwordx2 %s, v7, s[24:27], s35 offen offset:%d" % (vr(PK + 4 * s, 2), 32 * s))
        A("buffer_load_dwordx2 %s, v7, s[24:27], s35 offen offset:%d" % (vr(PK + 4 * s + 2, 2), 32 * s + 16))
    A("s_lshl_b32 s31, s29, 5\ns_lshl_b32 s34, s3, 3\ns_add_u32 s31, s31, s34\ns_lshl_b32 s31, s31, 10\ns_add_u32 s31, s31, %d" % XF)
    A("s_add_u32 s36, s31, 4096")
    A("v_lshlrev_b32 v8, 4, v4")
    A("s_lshl_b32 s37, s29, 3\ns_lshl_b32 s38, s3, 1\ns_add_u32 s37, s37, s38\ns_lshl_b32 s37, s37, 9\ns_add_u32 s37, s37, %d" % STATS)
    A("s_waitcnt vmcnt(0)")
    for s in range(8):
        A("buffer_store_dwordx4 %s, v1, s[4:7], s%d offen offset:%d" % (vr(PK + 4 * s, 4), 31 if s < 4 else 36, (s % 4) * 1024))
    for q in range(4):
        stats_of_packed([PK + 8 * q + i for i in range(8)], 20 + 2 * q, 21 + 2 * q, 12, 13)
        A("buffer_store_dwordx2 %s, v8, s[4:7], s37 offen offset:%d" % (vr(20 + 2 * q, 2), 512 * (q >> 1) + 8 * (q & 1)))
    kernel_end(name, 128)

class St:
    def __init__(self):
        self.n = {'vm': 0, 'lg': 0}
        self.tag = {}
    def copy(self):
        o = St(); o.n = dict(self.n); o.tag = dict(self.tag); return o

def I(text, cls=None, tag=None):
    return ('i', text, cls, tag)
def W(cls, tag):
    return ('w', cls, tag)

def emit(seq, st):
    for it in seq:
        if it[0] == 'i':
            _, text, cls, tag = it
            A(text)
            if cls:
                if tag is not None:
                    st.tag[tag] = st.n[cls]
                st.n[cls] += 1
        else:
            _, cls, tag = it
            n = st.n[cls] - st.tag[tag] - 1
            if cls == 'vm':
                A("s_waitcnt vmcnt(%d)" % min(n, 63))
            else:
                A("s_waitcnt lgkmcnt(%d)" % min(n, 15))

def L(txt):
    return [I(t.strip()) for t in txt.strip().split("\n")]

def s_cross_half_add(va, vt):
    return L("v_mov_b32 v%d, v%d\ns_nop 1\nv_permlane32_swap_b32 v%d, v%d\ns_nop 1\nv_add_f32 v%d, v%d, v%d" % (vt, va, va, vt, va, va, vt))


NBUF = 4
BUFSZ = 32768
X1R = 216
NVALL = 224

def decode_wg():
    A("v_and_b32 v4, 31, v2")
    A("v_lshrrev_b32 v5, 5, v2")
    A("s_and_b32 s61, s2, 7\ns_lshr_b32 s62, s2, 3\ns_lshr_b32 s60, s61, 1\ns_lshl_b32 s60, s60, 2\ns_and_b32 s63, s62, 3\ns_add_u32 s60, s60, s63\ns_lshr_b32 s62, s62, 2\ns_and_b32 s61, s61, 1")

_lab = [0]
def newlab(p):
    _lab[0] += 1
    return "L_%s_%d" % (p, _lab[0])

def publish(phase):
    A("s_waitcnt vmcnt(0)")
    A("s_barrier")
    l = newlab("pub")
    A("s_cmp_lg_u32 s3, 0")
    A("s_cbranch_scc1 %s" % l)
    A("s_lshl_b32 s64, s60, 7\ns_lshl_b32 s65, s61, 5\ns_add_u32 s64, s64, s65\ns_lshl_b32 s65, s62, 2\ns_add_u32 s64, s64, s65\ns_add_u32 s64, s64, %d" % (FLAGS + phase * 2048))
    A("v_mov_b32 v2, 0")
    A("v_mov_b32 v3, 1")
    A("s_mov_b64 exec, 1")
    A("buffer_store_dword v3, v2, s[4:7], s64 offen sc1")
    A("s_mov_b64 exec, -1")
    A.label(l)

def await_flags(phase, mask):
    l = newlab("aw"); lp = newlab("poll"); ld = newlab("done")
    A("s_cmp_lg_u32 s3, 0")
    A("s_cbranch_scc1 %s" % l)
    A("s_lshl_b32 s64, s60, 7\ns_add_u32 s64, s64, %d" % (FLAGS + phase * 2048))
    A("v_lshrrev_b32 v2, 2, v1")
    A("v_and_b32 v2, 60, v2")
    A("s_mov_b32 s66, 0x20000")
    A.label(lp)
    A("buffer_load_dword v3, v2, s[4:7], s64 offen sc1")
    A("s_waitcnt vmcnt(0)")
    A("v_cmp_eq_u32 vcc, 1, v3")
    A("s_nop 3")
    A("s_and_b32 s65, vcc_lo, 0x%x" % mask)
    A("s_cmp_eq_u32 s65, 0x%x" % mask)
    A("s_cbranch_scc1 %s" % ld)
    A("s_sleep 1")
    A("s_sub_u32 s66, s66, 1")
    A("s_cmp_lg_u32 s66, 0")
    A("s_cbranch_scc1 %s" % lp)
    A.label(ld)
    A.label(l)
    A("s_barrier")

def bpre_setup(kind):
    WOFF = WQKV_F if kind == 'qkv' else W1_F
    NH = 6 if kind == 'qkv' else 7
    A("s_mul_i32 s70, s61, %d\ns_add_u32 s70, s70, s62\ns_lshl_b32 s70, s70, 2\ns_add_u32 s70, s70, s3\ns_lshl_b32 s70, s70, 15\ns_add_u32 s70, s70, %d" % (NH, WOFF))
def bpre_chunk(c):
    seq = []
    for q in range(4):
        s_ = 4 * c + q
        seq.append(I("buffer_load_dwordx4 a[%d:%d], v1, s[4:7], s70 offen offset:%d" % (4 * s_, 4 * s_ + 3, 1024 * q), 'vm', ('B', c)))
    seq += L("s_add_u32 s70, s70, 4096")
    return seq

class Ring:
    def __init__(self, kind, st, lsc=""):
        self.kind = kind; self.st = st; self.lsc = lsc
        self.KC = 8
        self.KS = 32 if kind == 'wo' else 112
        self.NC = self.KS // self.KC
        self.NPRE = min(NBUF - 1, self.NC)
    def setup(self):
        kind, KS = self.kind, self.KS
        ACT = OF if kind == 'wo' else HF
        WOFF = WO_F if kind == 'wo' else W2_F
        A("s_lshr_b32 s44, s62, 2\ns_lshl_b32 s44, s44, 1\ns_lshl_b32 s45, s60, 2\ns_add_u32 s44, s44, s45")
        A("s_and_b32 s45, s62, 3\ns_lshl_b32 s46, s61, 2\ns_add_u32 s45, s45, s46\ns_lshl_b32 s45, s45, 1")
        A("s_and_b32 s46, s3, 1")
        A("s_mov_b32 s47, %d\ns_mov_b32 s48, %d" % (ACT, WOFF))
        A("s_cmp_lt_u32 s3, 2")
        A("s_cselect_b32 s49, s44, s45")
        A("s_cselect_b32 s47, s47, s48")
        A("s_add_u32 s49, s49, s46")
        A("s_mul_i32 s49, s49, %d" % (KS * 1024))
        A("s_add_u32 s50, s47, s49")
        A("s_add_u32 s51, s50, 4096")
        A("s_lshl_b32 s52, s3, 13")
        A("s_add_u32 s53, s52, 4096")
    def dma(self, c):
        bo = (c % NBUF) * BUFSZ
        seq = []
        for u in range(2):
            seq += L("s_add_u32 m0, s%d, %d\ns_nop 0" % (52 + u, bo))
            for q in range(4):
                seq.append(I("buffer_load_dwordx4 v1, s[4:7], s%d offen offset:%d%s lds" % (50 + u, 1024 * q, self.lsc), 'vm', ('D', self.kind, c)))
        seq += L("s_add_u32 s50, s50, %d\ns_add_u32 s51, s51, %d" % (self.KC * 1024, self.KC * 1024))
        return seq
    def pre(self, which):
        seq = []
        for c in range(self.NPRE):
            seq += self.dma(c)
        if which == 'all':
            emit(seq, self.st)
        else:
            l = newlab("pre")
            A("s_cmp_%s_u32 s3, 2" % ("lt" if which == 'w' else "ge"))
            A("s_cbranch_scc1 %s" % l)
            emit(seq, self.st if which == 'a' else self.st.copy())
            A.label(l)
    def body(self, xin, xout, stats_out, sc="", side=None):
        kind, st, KC, NC = self.kind, self.st, self.KC, self.NC
        side = side or {}
        A("s_lshr_b32 s16, s3, 1\ns_and_b32 s17, s3, 1")
        A("s_add_u32 s18, s16, s44\ns_add_u32 s19, s17, s45")
        ACC = 16; FR = 32; FSET = 8; NSET = 3; XO = 56
        A("s_lshl_b32 s20, s18, 5\ns_lshl_b32 s21, s19, 1\ns_add_u32 s20, s20, s21\ns_lshl_b32 s20, s20, 10")
        if xin is not None:
            A("s_add_u32 s21, s20, %d" % xin)
            emit([I("buffer_load_dwordx4 %s, v1, s[4:7], s21 offen" % vr(XO, 4), 'vm'),
                  I("buffer_load_dwordx4 %s, v1, s[4:7], s21 offen offset:1024" % vr(XO + 4, 4), 'vm', 'xo')], st)
        A("s_lshl_b32 s26, s16, 13")
        A("v_add_u32 v10, s26, v1")
        A("s_lshl_b32 s26, s17, 13\ns_add_u32 s26, s26, %d" % (2 * KC * 1024))
        A("v_add_u32 v11, s26, v1")
        A("v_add_u32 v12, 0x10000, v10")
        A("v_add_u32 v13, 0x10000, v11")
        def reads(c, s_, k):
            o = (c % NBUF) * BUFSZ + s_ * 1024
            A("ds_read_b128 %s, v%d offset:%d" % (vr(FR + k * FSET, 4), 10 if o < 65536 else 12, o % 65536))
            A("ds_read_b128 %s, v%d offset:%d" % (vr(FR + k * FSET + 4, 4), 11 if o < 65536 else 13, o % 65536))
        for c in range(NC):
            emit([W('vm', ('D', kind, c))], st)
            A("s_barrier")
            if c + NBUF - 1 < NC:
                emit(self.dma(c + NBUF - 1), st)
            reads(c, 0, 0)
            reads(c, 1, 1)
            sd = list(side.get(c, []))
            for s_ in range(KC):
                k = s_ % NSET
                if s_ + 2 < KC:
                    reads(c, s_ + 2, (s_ + 2) % NSET)
                A("s_waitcnt lgkmcnt(%d)" % (min(KC - 1 - s_, 2) * 2))
                A("v_mfma_f32_32x32x16_bf16 %s, %s, %s, %s" % (vr(ACC, 16), vr(FR + k * FSET + 4, 4), vr(FR + k * FSET, 4), "0" if (c == 0 and s_ == 0) else vr(ACC, 16)))
                take = -(-len(sd) // (KC - s_))
                emit(sd[:take], st)
                del sd[:take]
        A("s_nop 15")
        A("s_nop 3")
        T0, T1 = 6, 7
        if xin is not None:
            emit([W('vm', 'xo')], st)
        XS = XO if xin is not None else X1R
        acc = ACC
        for i in range(8):
            A("v_lshlrev_b32 v%d, 16, v%d" % (T0, XS + i))
            A("v_and_b32 v%d, 0xffff0000, v%d" % (T1, XS + i))
            A("v_add_f32 v%d, v%d, v%d" % (acc + 2 * i, acc + 2 * i, T0))
            A("v_add_f32 v%d, v%d, v%d" % (acc + 2 * i + 1, acc + 2 * i + 1, T1))
        for i in range(8):
            A("v_cvt_pk_bf16_f32 v%d, v%d, v%d" % (X1R + i, acc + 2 * i, acc + 2 * i + 1))
        if kind == 'w2f':
            A("s_mov_b32 s42, %d\ns_mov_b32 s43, 0x00020000" % (2048 * 512 * 2))
            A("s_lshl_b32 s30, s18, 5")
            A("v_add_u32 v%d, s30, v4" % T0)
            A("v_lshlrev_b32 v%d, 10, v%d" % (T0, T0))
            A("v_lshl_add_u32 v%d, v5, 3, v%d" % (T0, T0))
            A("s_lshl_b32 s31, s19, 6")
            for g in range(4):
                A("buffer_store_dwordx2 %s, v%d, s[40:43], s31 offen offset:%d" % (vr(X1R + 2 * g, 2), T0, 16 * g))
        else:
            A("s_add_u32 s21, s20, %d" % xout)
            emit([I("buffer_store_dwordx4 %s, v1, s[4:7], s21 offen%s" % (vr(X1R, 4), sc), 'vm'),
                  I("buffer_store_dwordx4 %s, v1, s[4:7], s21 offen offset:1024%s" % (vr(X1R + 4, 4), sc), 'vm')], st)
            stats_of_packed([X1R + i for i in range(8)], XO + 8, XO + 9, T0, T1)
            A("v_lshlrev_b32 v%d, 4, v4" % T0)
            A("s_lshl_b32 s30, s18, 3\ns_lshr_b32 s31, s19, 1\ns_add_u32 s30, s30, s31\ns_lshl_b32 s30, s30, 9\ns_and_b32 s31, s19, 1\ns_lshl_b32 s31, s31, 3\ns_add_u32 s31, s31, s30\ns_add_u32 s31, s31, %d" % stats_out)
            emit([I("buffer_store_dwordx2 %s, v%d, s[4:7], s31 offen%s" % (vr(XO + 8, 2), T0, sc), 'vm')], st)

def phase_res(kind, xin, stats_in, st, sync=None, sc="", lsc="", endlab=None, pre_epi=None):
    NH = 6 if kind == 'qkv' else 7
    tagname = newlab(kind)
    A("s_lshl_b32 s8, s60, 2")
    A("s_mul_i32 s9, s61, %d\ns_add_u32 s9, s9, s62\ns_lshl_b32 s9, s9, 2" % NH)
    A("s_add_u32 s19, s9, s3")
    ACC = 16; AF = 80; CSR = 112; BR = 128; STF = 144; TMP = 152; STL = 168; TK = 184
    PD = int(os.environ.get("PD", "2"))
    A("s_add_u32 s10, s8, s3\ns_lshl_b32 s10, s10, 15\ns_add_u32 s10, s10, %d" % xin)
    A("s_lshl_b32 s12, s3, 15")
    def a_loads(c):
        seq = [I("s_add_u32 m0, s12, %d" % (c * 4096)), I("s_nop 0")]
        for q in range(4):
            seq.append(I("buffer_load_dwordx4 v1, s[4:7], s10 offen offset:%d%s lds" % (1024 * q, lsc), 'vm', ('A', c)))
        seq += L("s_add_u32 s10, s10, 4096")
        return seq
    cs_l = []
    cs_l += L("v_lshlrev_b32 v14, 6, v5\ns_lshl_b32 s22, s19, 7\ns_add_u32 s22, s22, %d" % (CS_QKV if kind == 'qkv' else CS_W1))
    for q in range(4):
        cs_l.append(I("buffer_load_dwordx4 %s, v14, s[4:7], s22 offen offset:%d" % (vr(CSR + 4 * q, 4), 16 * q), 'vm', 'misc'))
    if kind == 'qkv':
        cs_l += L("v_bfe_u32 v15, v4, 2, 1\nv_lshlrev_b32 v15, 4, v15\nv_lshrrev_b32 v3, 3, v4\nv_lshl_add_u32 v15, v3, 2, v15\nv_and_b32 v3, 3, v4\nv_add_u32 v15, v15, v3\nv_lshlrev_b32 v15, 2, v15")
        cs_l.append(I("buffer_load_dword v%d, v15, s[4:7], s22 offen" % BR, 'vm', 'misc'))
    else:
        cs_l += L("s_lshl_b32 s23, s19, 7\ns_add_u32 s23, s23, %d" % B1F)
        for q in range(4):
            cs_l.append(I("buffer_load_dwordx4 %s, v14, s[4:7], s23 offen offset:%d" % (vr(BR + 4 * q, 4), 16 * q), 'vm', 'misc'))
    st_l = L("s_add_u32 s21, s8, s3\ns_lshl_b32 s21, s21, 12\ns_add_u32 s21, s21, %d" % stats_in)
    for q in range(4):
        st_l.append(I("buffer_load_dwordx4 %s, v1, s[4:7], s21 offen offset:%d%s" % (vr(STL + 4 * q, 4), 1024 * q, lsc), 'vm', 'misc'))
    misc = st_l + cs_l
    if sync is None:
        bpre_setup(kind)
        def chunk_loads(c):
            return a_loads(c) + bpre_chunk(c)
    else:
        sync()
        chunk_loads = a_loads
        PD = int(os.environ.get("PD2", "3"))
    for c in range(PD):
        emit(chunk_loads(c), st)
    A("v_add_u32 v11, 0x10000, v1")
    SCR = 131072
    A("s_lshl_b32 s26, s3, 8")
    A("v_lshlrev_b32 v12, 3, v4")
    A("v_add_u32 v13, %d, v12" % SCR)
    A("v_add_u32 v12, s26, v13")
    def stats_stream():
        seq = [W('vm', 'misc')]
        b = STL
        for p in range(1, 8):
            seq.append(I("v_add_f32 v%d, v%d, v%d" % (b, b, b + 2 * p)))
            seq.append(I("v_add_f32 v%d, v%d, v%d" % (b + 1, b + 1, b + 2 * p + 1)))
        seq += s_cross_half_add(b, b + 2)
        seq += s_cross_half_add(b + 1, b + 2)
        seq += L("v_mul_f32 v%d, %s, v%d" % (b, f32(1.0 / 512), b))
        seq += L("v_mul_f32 v%d, %s, v%d" % (b + 1, f32(1.0 / 512), b + 1))
        seq += L("v_fma_f32 v%d, -v%d, v%d, v%d" % (b + 1, b, b, b + 1))
        seq += L("v_max_f32 v%d, 0, v%d" % (b + 1, b + 1))
        seq += L("v_add_f32 v%d, %s, v%d" % (b + 1, f32(1e-5), b + 1))
        seq += L("v_rsq_f32 v%d, v%d\ns_nop 0" % (b + 1, b + 1))
        seq += L("v_mul_f32 v%d, v%d, v%d" % (b, b, b + 1))
        seq.append(I("ds_write_b64 v12, %s" % vr(b, 2), 'lg', 'sw'))
        return seq
    def run(orient, epi, st):
        def rd(g):
            seq = []
            c = g >> 2
            if g % 4 == 0:
                seq.append(W('vm', ('A', c)))
                if c == 7:
                    seq.append(W('lg', 'sw'))
                seq.append(I("s_barrier"))
                if c == 7 and orient == 1:
                    for t in range(4):
                        seq.append(I("ds_read_b64 %s, v13 offset:%d" % (vr(STF + 2 * t, 2), 256 * t), 'lg', 'sr'))
            for mi in range(4):
                o = mi * 32768 + g * 1024
                seq.append(I("ds_read_b128 %s, v%d offset:%d" % (vr(AF + 16 * (g & 1) + 4 * mi, 4), 1 if o < 65536 else 11, o % 65536), 'lg', ('R', g, mi)))
            return seq
        side = {}
        for c in range(8):
            side[c] = chunk_loads(c + PD) if c + PD < 8 else []
        side[1] = side[1] + list(misc)
        side[5] = side[5] + stats_stream()
        emit(rd(0), st)
        for g in range(32):
            c = g >> 2
            seq = []
            if g + 1 < 32:
                seq += rd(g + 1)
            if g % 4 == 0:
                seq.append(W('vm', ('B', c)))
            sd = side.get(c, [])
            for mi in range(4):
                seq.append(W('lg', ('R', g, mi)))
                acc = ACC + 16 * mi
                a_, b_ = "a[%d:%d]" % (4 * g, 4 * g + 3), vr(AF + 16 * (g & 1) + 4 * mi, 4)
                if orient == 2:
                    a_, b_ = b_, a_
                seq.append(I("v_mfma_f32_32x32x16_bf16 %s, %s, %s, %s" % (vr(acc, 16), a_, b_, "0" if g == 0 else vr(acc, 16))))
                slot = (g % 4) * 4 + mi
                take = -(-len(sd) // (14 - slot)) if slot < 14 else len(sd)
                seq += sd[:take]
                del sd[:take]
            emit(seq, st)
        if pre_epi is not None:
            pre_epi()
        A("s_nop 15")
        A("s_nop 3")
        for mi in range(4):
            emit(epi(mi), st)
    T0, T1, T2, T3 = 6, 7, 8, 9
    if kind == 'qkv':
        A("s_cmp_ge_u32 s9, 32")
        A("s_cbranch_scc1 %s_v" % tagname)
        A("s_cmp_lt_u32 s9, 16")
        A("s_cselect_b32 s27, %s, 1.0" % f32(0.25 * LOG2E))
        A("s_mov_b32 s28, %d\ns_mov_b32 s29, %d" % (QF, KF - 32 * 64 * 1024))
        A("s_cselect_b32 s28, s28, s29")
        A("s_lshl_b32 s30, s19, 7\ns_add_u32 s30, s30, s8\ns_lshl_b32 s30, s30, 10\ns_add_u32 s30, s30, s28\ns_add_u32 s31, s30, 65536")
        def epi_qk(mi):
            acc = ACC + 16 * mi
            seq = [W('lg', 'sr')] + L("v_mul_f32 v%d, s27, v%d\nv_mul_f32 v%d, s27, v%d" % (T0, STF + 2 * mi + 1, T1, STF + 2 * mi))
            for i in range(16):
                seq += L("v_mul_f32 v%d, v%d, v%d" % (acc + i, acc + i, T0))
                seq += L("v_fma_f32 v%d, -v%d, v%d, v%d" % (acc + i, T1, CSR + i, acc + i))
            for i in range(8):
                seq += L("v_cvt_pk_bf16_f32 v%d, v%d, v%d" % (acc + i, acc + 2 * i, acc + 2 * i + 1))
            seq.append(I("buffer_store_dwordx4 %s, v1, s[4:7], s30 offen offset:%d" % (vr(acc, 4), 1024 * mi), 'vm'))
            seq.append(I("buffer_store_dwordx4 %s, v1, s[4:7], s31 offen offset:%d" % (vr(acc + 4, 4), 1024 * mi), 'vm'))
            return seq
        run(1, epi_qk, st.copy())
        A("s_branch %s" % endlab)
        A.label("%s_v" % tagname)
        A("v_lshlrev_b32 v%d, 5, v5" % T1)
        A("v_add_u32 v%d, %d, v%d" % (T1, SCR, T1))
        A("v_lshrrev_b32 v%d, 4, v4" % T2)
        A("v_lshlrev_b32 v%d, 16, v%d" % (T2, T2))
        A("v_and_b32 v%d, 15, v4" % T3)
        A("v_lshl_add_u32 v%d, v5, 4, v%d" % (T3, T3))
        A("v_lshl_add_u32 v%d, v%d, 4, v%d" % (T2, T3, T2))
        A("s_sub_u32 s30, s19, 32\ns_lshl_b32 s30, s30, 7\ns_add_u32 s30, s30, s8\ns_lshl_b32 s30, s30, 10\ns_add_u32 s30, s30, %d" % VF)
        def epi_v(mi):
            acc = ACC + 16 * mi
            seq = []
            for g in range(4):
                seq.append(I("ds_read_b128 %s, v%d offset:%d" % (vr(TK + 8 * g, 4), T1, 256 * mi + 64 * g), 'lg'))
                seq.append(I("ds_read_b128 %s, v%d offset:%d" % (vr(TK + 8 * g + 4, 4), T1, 256 * mi + 64 * g + 16), 'lg', ('tk', mi)))
            seq.append(W('lg', ('tk', mi)))
            for i in range(16):
                g, r = i >> 2, i & 3
                mr = TK + 8 * g + 2 * r
                seq += L("v_mul_f32 v%d, v%d, v%d" % (acc + i, acc + i, mr + 1))
                seq += L("v_fma_f32 v%d, -v%d, v%d, v%d" % (acc + i, mr, BR, acc + i))
            for i in range(8):
                seq += L("v_cvt_pk_bf16_f32 v%d, v%d, v%d" % (acc + i, acc + 2 * i, acc + 2 * i + 1))
            seq.append(I("buffer_store_dwordx4 %s, v%d, s[4:7], s30 offen offset:%d" % (vr(acc, 4), T2, 1024 * mi), 'vm'))
            seq.append(I("buffer_store_dwordx4 %s, v%d, s[4:7], s30 offen offset:%d" % (vr(acc + 4, 4), T2, 1024 * mi + 512), 'vm'))
            return seq
        run(2, epi_v, st.copy())
    else:
        A("s_mul_i32 s30, s8, 112\ns_lshl_b32 s31, s19, 1\ns_add_u32 s30, s30, s31\ns_lshl_b32 s30, s30, 10\ns_add_u32 s30, s30, %d" % HF)
        def epi_w1(mi):
            acc = ACC + 16 * mi
            b = STF + 2 * mi
            seq = [W('lg', 'sr')]
            for i0 in range(0, 16, 4):
                tt = [TMP + 2 * k for k in range(4)]
                for k in range(4):
                    i = i0 + k
                    seq += L("v_fma_f32 v%d, -v%d, v%d, v%d" % (tt[k], b, CSR + i, BR + i))
                    seq += L("v_fma_f32 v%d, v%d, v%d, v%d" % (acc + i, acc + i, b + 1, tt[k]))
                    seq += L("v_mul_f32 v%d, %s, v%d" % (tt[k], f32(LOG2E), acc + i))
                for k in range(4):
                    seq += L("v_exp_f32 v%d, v%d" % (tt[k], tt[k]))
                for k in range(4):
                    seq += L("v_add_f32 v%d, 2.0, v%d" % (tt[k] + 1, tt[k]))
                    seq += L("v_fma_f32 v%d, v%d, v%d, 2.0" % (tt[k], tt[k], tt[k] + 1))
                for k in range(4):
                    seq += L("v_rcp_f32 v%d, v%d" % (tt[k], tt[k]))
                for k in range(4):
                    i = i0 + k
                    seq += L("v_mul_f32 v%d, v%d, v%d" % (tt[k], acc + i, tt[k]))
                for k in range(4):
                    i = i0 + k
                    seq += L("v_fma_f32 v%d, v%d, -2.0, v%d" % (acc + i, tt[k], acc + i))
            for i in range(8):
                seq += L("v_cvt_pk_bf16_f32 v%d, v%d, v%d" % (acc + i, acc + 2 * i, acc + 2 * i + 1))
            seq.append(I("buffer_store_dwordx4 %s, v1, s[4:7], s30 offen%s" % (vr(acc, 4), sc), 'vm'))
            seq.append(I("buffer_store_dwordx4 %s, v1, s[4:7], s30 offen offset:1024%s" % (vr(acc + 4, 4), sc), 'vm'))
            seq.append(I("s_add_u32 s30, s30, %d" % (112 * 1024)))
            return seq
        run(1, epi_w1, st)

def gen_qkv0():
    name = "qkv_kernel"
    kernel_begin(name)
    common_prologue(name, 256)
    decode_wg()
    A("s_cmp_ge_u32 s62, 6")
    A("s_cbranch_scc1 L_%s_end" % name)
    phase_res('qkv', XF, STATS, St(), endlab="L_%s_fin" % name)
    kernel_end(name, NVALL, agpr=128)
    return 256, 131072 + 1024

def gen_chain(name, last):
    kernel_begin(name)
    common_prologue(name, 256, "s_load_dwordx2 s[40:41], s[0:1], 56" if last else "")
    decode_wg()
    xin = X2F if last else XF
    SC = " sc1"
    st = St()
    r1 = Ring('wo', st)
    r1.setup()
    r1.pre('all')
    bpre_setup('w1')
    r1.body(xin, X1F, STATS1, sc=SC, side={c: bpre_chunk(2 * c) + bpre_chunk(2 * c + 1) for c in range(4)})
    stamp(1)
    publish(0)
    st2 = St(); st2.tag = {k: -1 for k in st.tag}
    r2 = Ring('w2f' if last else 'w2', st2, lsc=SC)
    lskip = newlab("skipw1"); ljoin = newlab("joinw1")
    A("s_cmp_ge_u32 s62, 7")
    A("s_cbranch_scc1 %s" % lskip)
    def pre_epi():
        A("s_barrier")
        r2.setup()
        r2.pre('w')
    phase_res('w1', X1F, STATS1, st2, sync=lambda: await_flags(0, 0xffff), sc=SC, lsc=SC, pre_epi=pre_epi)
    publish(1)
    A("s_branch %s" % ljoin)
    A.label(lskip)
    r2.setup()
    r2.pre('w')
    A.label(ljoin)
    stamp(2)
    await_flags(1, 0x7f7f)
    st3 = St()
    r2.st = st3
    r2.pre('a')
    side = {}
    if not last:
        bpre_setup('qkv')
        side = {6 + c: bpre_chunk(c) for c in range(8)}
    r2.body(None, X2F, STATS2, sc=SC, side=side)
    stamp(3)
    if not last:
        publish(2)
        A("s_cmp_ge_u32 s62, 6")
        A("s_cbranch_scc1 L_%s_end" % name)
        st4 = St(); st4.tag = {k: -1 for k in st3.tag}
        phase_res('qkv', X2F, STATS2, st4, sync=lambda: await_flags(2, 0xffff), lsc=SC, endlab="L_%s_fin" % name)
    kernel_end(name, NVALL, agpr=128)
    return 256, 131072 + 1024

def gen_attn():
    name = "attn_kernel"
    kernel_begin(name)
    common_prologue(name, 256)
    A("v_and_b32 v4, 31, v2")
    A("v_lshrrev_b32 v5, 5, v2")
    A("s_and_b32 s8, s2, 7\ns_lshr_b32 s9, s2, 3\ns_lshl_b32 s8, s8, 2\ns_and_b32 s10, s9, 3\ns_add_u32 s8, s8, s10\ns_lshr_b32 s9, s9, 2")
    A("s_and_b32 s24, s3, 7\ns_lshr_b32 s25, s3, 3")
    A("s_cmp_lg_u32 s2, 0")
    A("s_cbranch_scc1 L_attn_nz")
    A("s_cmp_ge_u32 s3, 6")
    A("s_cbranch_scc1 L_attn_nz")
    A("v_mov_b32 v8, 0\nv_mov_b32 v9, 0\nv_mov_b32 v10, 0\nv_mov_b32 v11, 0")
    A("s_lshl_b32 s26, s3, 10\ns_add_u32 s26, s26, %d" % FLAGS)
    A("buffer_store_dwordx4 v[8:11], v1, s[4:7], s26 offen")
    A("s_nop 1")
    A.label("L_attn_nz")
    A("s_lshl_b32 s9, s9, 3\ns_add_u32 s9, s9, s24")
    Q = 8; NEG = 12; S0 = 28; S1 = 44; P = 60; K0 = 68; K1 = 72; V0 = 76; V1 = 84; O = 92
    SS = (S0, S1); KK = (K0, K1); VV = (V0, V1)
    SCR = 131072 + 4096
    A("s_lshl_b32 s10, s8, 6\ns_add_u32 s11, s10, s9\ns_lshl_b32 s11, s11, 10\ns_add_u32 s11, s11, %d" % QF)
    A("buffer_load_dwordx4 %s, v1, s[4:7], s11 offen" % vr(Q, 4))
    A("s_lshl_b32 s10, s10, 10")
    A("s_add_u32 s12, s10, %d" % KF)
    A("s_add_u32 s13, s10, %d" % VF)
    A("s_lshl_b32 s14, s25, 5\ns_add_u32 s14, s14, s24\ns_lshl_b32 s14, s14, 10")
    A("s_add_u32 s15, s12, s14")
    A("s_add_u32 s16, s13, s14")
    A("s_mov_b32 m0, s14")
    A("s_nop 0")
    A("buffer_load_dwordx4 v1, s[4:7], s15 offen lds")
    A("s_add_u32 m0, s14, 0x10000")
    A("s_nop 0")
    A("buffer_load_dwordx4 v1, s[4:7], s16 offen lds")
    A("v_and_b32 v6, 27, v4")
    A("v_cmp_eq_u32 vcc, 16, v6")
    A("v_mov_b32 v7, 0x3f803f80")
    A("s_nop 1")
    A("v_cndmask_b32 v6, 0, v7, vcc")
    for i in range(16):
        A("v_mov_b32 v%d, v6" % (V0 + i))
    A("s_mov_b32 s20, 0xffff\ns_mov_b32 s21, 0xffff")
    A("s_mov_b32 s22, 0")
    A("s_lshl_b32 s26, s25, 15")
    A("s_waitcnt vmcnt(0)")
    A("s_barrier")
    stamp(1)
    A("s_mul_i32 s14, s24, 3\ns_add_u32 s14, s14, 8\ns_lshl_b32 s17, s25, 5\ns_add_u32 s14, s14, s17\ns_lshl_b32 s14, s14, 10")
    A("s_add_u32 s15, s12, s14")
    A("s_add_u32 s16, s13, s14")
    A("s_mov_b32 m0, s14")
    A("s_nop 0")
    for q in range(3):
        A("buffer_load_dwordx4 v1, s[4:7], s15 offen offset:%d lds" % (1024 * q))
    A("s_add_u32 m0, s14, 0x10000")
    A("s_nop 0")
    for q in range(3):
        A("buffer_load_dwordx4 v1, s[4:7], s16 offen offset:%d lds" % (1024 * q))
    A("ds_read_b128 %s, v1" % vr(K0, 4))
    A("s_waitcnt lgkmcnt(0)")
    A("v_mfma_f32_32x32x16_bf16 %s, %s, %s, 0" % (vr(S0, 16), vr(K0, 4), vr(Q, 4)))
    A("s_nop 15")
    A("s_nop 3")
    def max16(dst, S, init=False):
        if init:
            A("v_max3_f32 v%d, v%d, v%d, v%d" % (dst, S, S + 1, S + 2))
            A("v_max_f32 v%d, v%d, v%d" % (dst, dst, S + 3))
            rest = list(range(4, 16))
        else:
            rest = list(range(0, 16))
        for i in range(0, len(rest), 2):
            A("v_max3_f32 v%d, v%d, v%d, v%d" % (dst, dst, S + rest[i], S + rest[i + 1]))
    max16(6, S0, True)
    A.label("L_attn_setneg")
    A("v_mov_b32 v7, v6")
    A("s_nop 1")
    A("v_permlane32_swap_b32 v6, v7")
    A("s_nop 1")
    A("v_max_f32 v6, v6, v7")
    A("v_sub_f32 v%d, 0, v6" % NEG)
    for i in range(1, 16):
        A("v_mov_b32 v%d, v%d" % (NEG + i, NEG))
    A("v_add_u32 v2, s26, v1")
    A("v_lshl_add_u32 v3, v5, 4, v4")
    A("v_lshlrev_b32 v3, 4, v3")
    A("v_add_u32 v3, 0x10000, v3")
    A("v_add_u32 v3, s26, v3")
    for i in range(16):
        A("v_mov_b32 v%d, 0" % (O + i))
    def vread(p, off):
        A("s_mov_b64 exec, s[20:21]")
        A("ds_read_b128 %s, v3 offset:%d" % (vr(VV[p], 4), off))
        A("ds_read_b128 %s, v3 offset:%d" % (vr(VV[p] + 4, 4), off + 512))
        A("s_mov_b64 exec, -1")
    A("ds_read_b128 %s, v2" % vr(K0, 4))
    vread(0, 0)
    A("s_waitcnt lgkmcnt(0)")
    A("v_mfma_f32_32x32x16_bf16 %s, %s, %s, %s" % (vr(S0, 16), vr(K0, 4), vr(Q, 4), vr(NEG, 16)))
    A("ds_read_b128 %s, v2 offset:1024" % vr(K1, 4))
    vread(1, 1024)
    A("s_nop 7")
    def body():
        for p in range(2):
            S = SS[p]
            A("s_waitcnt lgkmcnt(2)")
            A("v_mfma_f32_32x32x16_bf16 %s, %s, %s, %s" % (vr(SS[1 - p], 16), vr(KK[1 - p], 4), vr(Q, 4), vr(NEG, 16)))
            A("ds_read_b128 %s, v2 offset:%d" % (vr(KK[p], 4), 2048 + 1024 * p))
            for i in range(8):
                A("v_exp_f32 v%d, v%d" % (S + i, S + i))
            for i in range(4):
                A("v_cvt_pk_bf16_f32 v%d, v%d, v%d" % (P + i, S + 2 * i, S + 2 * i + 1))
            for i in range(8, 10):
                A("v_exp_f32 v%d, v%d" % (S + i, S + i))
            A("v_mfma_f32_32x32x16_bf16 %s, %s, %s, %s" % (vr(O, 16), vr(VV[p], 4), vr(P, 4), vr(O, 16)))
            for i in range(10, 16):
                A("v_exp_f32 v%d, v%d" % (S + i, S + i))
            for i in range(4):
                A("v_cvt_pk_bf16_f32 v%d, v%d, v%d" % (P + 4 + i, S + 8 + 2 * i, S + 8 + 2 * i + 1))
            if p == 1:
                A("v_add_u32 v2, 2048, v2")
                A("s_sub_u32 s23, s23, 1")
            else:
                A("s_nop 1")
            A("v_mfma_f32_32x32x16_bf16 %s, %s, %s, %s" % (vr(O, 16), vr(VV[p] + 4, 4), vr(P + 4, 4), vr(O, 16)))
            vread(p, 2048 + 1024 * p)
        A("v_add_u32 v3, 2048, v3")
        A("s_cmp_lg_u32 s23, 0")
    A("s_cmp_lg_u32 s22, 0")
    A("s_cbranch_scc0 L_attn_phA")
    A("s_mov_b32 s23, 32")
    A("s_branch L_attn_loopB")
    A.label("L_attn_phA")
    A("s_mov_b32 s23, 3")
    A.label("L_attn_loopA")
    body()
    A("s_cbranch_scc1 L_attn_loopA")
    stamp(2)
    A("s_waitcnt vmcnt(0)")
    A("s_barrier")
    stamp(3)
    A("s_mov_b32 s23, 13")
    A.label("L_attn_loopB")
    body()
    A("s_cbranch_scc1 L_attn_loopB")
    A("s_waitcnt lgkmcnt(0)")
    A("s_nop 15")
    A("s_nop 3")
    A("s_cmp_lg_u32 s22, 0")
    A("s_cbranch_scc1 L_attn_fin")
    A("s_mul_i32 s27, s24, %d" % (9 * 256))
    A("v_lshrrev_b32 v6, 2, v1")
    A("v_add_u32 v6, s27, v6")
    A("v_add_u32 v6, %d, v6" % SCR)
    A("s_cmp_eq_u32 s25, 0")
    A("s_cbranch_scc1 L_attn_lo")
    for i in range(9):
        A("ds_write_b32 v6, v%d offset:%d" % (O + i, 256 * i))
    A("s_waitcnt lgkmcnt(0)")
    A("s_barrier")
    A("s_branch L_%s_end" % name)
    A.label("L_attn_lo")
    A("s_barrier")
    for i in range(9):
        A("ds_read_b32 v%d, v6 offset:%d" % (S0 + i, 256 * i))
    A("s_waitcnt lgkmcnt(0)")
    for i in range(9):
        A("v_add_f32 v%d, v%d, v%d" % (O + i, O + i, S0 + i))
    A("v_cmp_gt_f32 vcc, 0x5f800000, v%d" % (O + 8))
    A("s_nop 3")
    A("s_cmp_eq_u64 vcc, exec")
    A("s_cbranch_scc1 L_attn_fin")
    A("s_mov_b32 s22, 1")
    A("v_mov_b32 v2, v1")
    A("v_mov_b32 v6, 0xff800000")
    A("s_mov_b32 s23, 64")
    A.label("L_attn_maxp")
    A("ds_read_b128 %s, v2" % vr(K0, 4))
    A("s_waitcnt lgkmcnt(0)")
    A("v_mfma_f32_32x32x16_bf16 %s, %s, %s, 0" % (vr(S0, 16), vr(K0, 4), vr(Q, 4)))
    A("s_nop 15")
    A("s_nop 3")
    max16(6, S0, False)
    A("v_add_u32 v2, 1024, v2")
    A("s_sub_u32 s23, s23, 1")
    A("s_cmp_lg_u32 s23, 0")
    A("s_cbranch_scc1 L_attn_maxp")
    A("s_branch L_attn_setneg")
    A.label("L_attn_fin")
    A("v_rcp_f32 v6, v%d" % (O + 8))
    A("s_nop 0")
    for i in range(8):
        A("v_mul_f32 v%d, v%d, v6" % (O + i, O + i))
    for i in range(4):
        A("v_cvt_pk_bf16_f32 v%d, v%d, v%d" % (O + i, O + 2 * i, O + 2 * i + 1))
    A("s_lshl_b32 s10, s9, 5\ns_add_u32 s10, s10, s8\ns_lshl_b32 s10, s10, 10\ns_add_u32 s10, s10, %d" % OF)
    A("buffer_store_dwordx4 %s, v1, s[4:7], s10 offen" % vr(O, 4))
    kernel_end(name, 112)
    return 256, SCR + 8 * 9 * 256

def main():
    A.raw(".amdgcn_target \"amdgcn-amd-amdhsa--gfx950\"")
    A.raw(".text")
    gen_prep()
    g = {}
    g['qkv'] = gen_qkv0()
    g['attn'] = gen_attn()
    g['chain1'] = gen_chain("chain1_kernel", False)
    g['chain2'] = gen_chain("chain2_kernel", True)
    hdr = []
    hdr.append("; @launch kernel=prep_kernel grid=(240,1,1) block=(256,1,1) lds=512")
    seq = ['qkv', 'attn', 'chain1', 'attn', 'chain2']
    for k in seq:
        nwg, lds = g[k]
        hdr.append("; @launch kernel=%s_kernel grid=(%d,1,1) block=(%d,1,1) lds=%d" % (k, nwg, 1024 if k == 'attn' else 256, lds))
    out = "\n".join(hdr) + "\n" + A.text()
    out += ".section .rodata,\"a\"\n"
    for (name, vgpr, sgpr, agpr) in kernels:
        v = (vgpr + 3) // 4 * 4
        out += ".p2align 6\n.amdhsa_kernel %s\n" % name
        out += "  .amdhsa_next_free_vgpr %d\n  .amdhsa_next_free_sgpr %d\n  .amdhsa_accum_offset %d\n" % (v + agpr, sgpr, v)
        out += "  .amdhsa_group_segment_fixed_size 0\n  .amdhsa_kernarg_size 80\n  .amdhsa_user_sgpr_count 2\n"
        out += "  .amdhsa_user_sgpr_kernarg_segment_ptr 1\n  .amdhsa_system_sgpr_workgroup_id_x 1\n.end_amdhsa_kernel\n"
    path = sys.argv[1] if len(sys.argv) > 1 else "cdna_kernels/%s.s" % NAME
    open(path, "w").write(out)
    print("wrote", path, len(out), "bytes")

if __name__ == "__main__":
    main()
```

```python
import sys, struct

NAME = "interleave_layers__softmax_full_mha__dense_activation_mish__prompt"
KB = 1024
_off = 0
def alloc(n):
    global _off
    o = _off
    _off += (n + 4095) // 4096 * 4096
    return o

WQKV_F = alloc(48 * 32 * KB)
WO_F   = alloc(16 * 32 * KB)
W1_F   = alloc(56 * 32 * KB)
W2_F   = alloc(16 * 112 * KB)
CS_QKV = alloc(48 * 128)
CS_W1  = alloc(56 * 128)
B1F    = alloc(56 * 128)
XF     = alloc(64 * 32 * KB)
STATS  = alloc(2048 * 128)
QF     = alloc(32 * 64 * KB)
KF     = alloc(32 * 64 * KB)
VF     = alloc(32 * 64 * KB)
OF     = alloc(64 * 32 * KB)
HF     = alloc(64 * 112 * KB)
X1F    = alloc(64 * 32 * KB)
X2F    = alloc(64 * 32 * KB)
STATS1 = alloc(2048 * 128)
STATS2 = alloc(2048 * 128)
FLAGS  = alloc(3 * 2048)
WS_SIZE = 268435456

def f32(x):
    return "0x%08x" % struct.unpack("<I", struct.pack("<f", x))[0]

LOG2E = 1.4426950408889634

class Asm:
    def __init__(self):
        self.lines = []
    def __call__(self, s):
        for l in s.strip("\n").split("\n"):
            self.lines.append("    " + l.strip())
    def label(self, l):
        self.lines.append(l + ":")
    def raw(self, s):
        self.lines.append(s)
    def text(self):
        return "\n".join(self.lines) + "\n"

A = Asm()
kernels = []

def vr(b, n):
    return "v[%d:%d]" % (b, b + n - 1)

import os
PROF = int(os.environ.get("PROF", "0"))
PROF_OFF = 128 * 1024 * 1024
_kid = [0]
def stamp(i):
    if PROF:
        A("s_memtime s[%d:%d]" % (80 + 2 * i, 81 + 2 * i))
        if i == 0:
            A("s_memrealtime s[92:93]")
def stamp_flush():
    if not PROF:
        return
    A("s_memtime s[88:89]")
    A("s_memrealtime s[94:95]")
    A("s_waitcnt vmcnt(0) lgkmcnt(0)")
    A("s_mov_b64 exec, 1")
    for i in range(16):
        A("v_mov_b32 v%d, s%d" % (8 + i, 80 + i))
    A("s_lshl_b32 s96, s2, 4\ns_add_u32 s96, s96, s3\ns_lshl_b32 s96, s96, 6\ns_add_u32 s96, s96, %d" % (PROF_OFF + _kid[0] * 1024 * 1024))
    A("v_mov_b32 v24, 0")
    for q in range(4):
        A("buffer_store_dwordx4 v[%d:%d], v24, s[4:7], s96 offen offset:%d" % (8 + 4 * q, 11 + 4 * q, 16 * q))
    _kid[0] += 1

def kernel_begin(name):
    A.raw(".globl %s" % name)
    A.raw(".p2align 8")
    A.raw(".type %s,@function" % name)
    A.label(name)

def kernel_end(name, vgpr, sgpr=100, agpr=0):
    A.label("L_%s_fin" % name)
    stamp_flush()
    A.label("L_%s_end" % name)
    A("s_endpgm")
    kernels.append((name, vgpr, sgpr, agpr))

def common_prologue(name, nwg, extra_loads=""):
    A("s_cmp_ge_u32 s2, %d" % nwg)
    A("s_cbranch_scc1 L_%s_end" % name)
    A("s_load_dwordx2 s[4:5], s[0:1], 72")
    if extra_loads:
        A(extra_loads)
    A("v_and_b32 v2, 63, v0")
    A("v_lshrrev_b32 v3, 6, v0")
    A("v_lshlrev_b32 v1, 4, v2")
    A("v_readfirstlane_b32 s3, v3")
    A("s_mov_b32 s6, 0x%x" % WS_SIZE)
    A("s_mov_b32 s7, 0x00020000")
    A("s_waitcnt lgkmcnt(0)")
    stamp(0)

def cross_half_add(va, vt):
    A("v_mov_b32 v%d, v%d" % (vt, va))
    A("s_nop 1")
    A("v_permlane32_swap_b32 v%d, v%d" % (va, vt))
    A("s_nop 1")
    A("v_add_f32 v%d, v%d, v%d" % (va, va, vt))

def stats_of_packed(regs, vsum, vsq, vt0, vt1):
    first = True
    for r in regs:
        A("v_lshlrev_b32 v%d, 16, v%d" % (vt0, r))
        A("v_and_b32 v%d, 0xffff0000, v%d" % (vt1, r))
        if first:
            A("v_add_f32 v%d, v%d, v%d" % (vsum, vt0, vt1))
            A("v_mul_f32 v%d, v%d, v%d" % (vsq, vt0, vt0))
            first = False
        else:
            A("v_add_f32 v%d, v%d, v%d" % (vsum, vsum, vt0))
            A("v_add_f32 v%d, v%d, v%d" % (vsum, vsum, vt1))
            A("v_fmac_f32 v%d, v%d, v%d" % (vsq, vt0, vt0))
        A("v_fmac_f32 v%d, v%d, v%d" % (vsq, vt1, vt1))
    cross_half_add(vsum, vt0)
    cross_half_add(vsq, vt0)

def gen_prep():
    name = "prep_kernel"
    kernel_begin(name)
    common_prologue(name, 240,
        "s_load_dwordx4 s[8:11], s[0:1], 0\n"
        "s_load_dwordx2 s[12:13], s[0:1], 16\n"
        "s_load_dwordx4 s[16:19], s[0:1], 32\n"
        "s_load_dwordx2 s[20:21], s[0:1], 48")
    A("v_and_b32 v4, 31, v2")
    A("v_lshrrev_b32 v5, 5, v2")
    A("s_mov_b32 s27, 0x00020000")
    A("s_cmp_ge_u32 s2, 176")
    A("s_cbranch_scc1 L_prep_x")
    A("s_lshl_b32 s30, s3, 3")
    A("s_cmp_ge_u32 s2, 48")
    A("s_cbranch_scc1 L_prep_r1")
    A("s_mov_b32 s24, s10\ns_mov_b32 s25, s11\ns_mov_b32 s26, %d" % (512 * 1536 * 2))
    A("s_mov_b32 s28, 3072\ns_mov_b32 s29, s2")
    A("s_lshl_b32 s31, s29, 5\ns_add_u32 s31, s31, s30\ns_lshl_b32 s31, s31, 10\ns_add_u32 s31, s31, %d" % WQKV_F)
    A("s_lshl_b32 s32, s29, 7\ns_add_u32 s32, s32, %d" % CS_QKV)
    A("s_mov_b32 s33, 1")
    A("s_branch L_prep_w")
    A.label("L_prep_r1")
    A("s_cmp_ge_u32 s2, 64")
    A("s_cbranch_scc1 L_prep_r2")
    A("s_mov_b32 s24, s12\ns_mov_b32 s25, s13\ns_mov_b32 s26, %d" % (512 * 512 * 2))
    A("s_mov_b32 s28, 1024\ns_sub_u32 s29, s2, 48")
    A("s_lshl_b32 s31, s29, 5\ns_add_u32 s31, s31, s30\ns_lshl_b32 s31, s31, 10\ns_add_u32 s31, s31, %d" % WO_F)
    A("s_mov_b32 s32, 0\ns_mov_b32 s33, 0")
    A("s_branch L_prep_w")
    A.label("L_prep_r2")
    A("s_cmp_ge_u32 s2, 120")
    A("s_cbranch_scc1 L_prep_r3")
    A("s_mov_b32 s24, s16\ns_mov_b32 s25, s17\ns_mov_b32 s26, %d" % (512 * 1792 * 2))
    A("s_mov_b32 s28, 3584\ns_sub_u32 s29, s2, 64")
    A("s_lshl_b32 s31, s29, 5\ns_add_u32 s31, s31, s30\ns_lshl_b32 s31, s31, 10\ns_add_u32 s31, s31, %d" % W1_F)
    A("s_lshl_b32 s32, s29, 7\ns_add_u32 s32, s32, %d" % CS_W1)
    A("s_mov_b32 s33, 2")
    A("s_branch L_prep_w")
    A.label("L_prep_r3")
    A("s_mov_b32 s24, s20\ns_mov_b32 s25, s21\ns_mov_b32 s26, %d" % (1792 * 512 * 2))
    A("s_mov_b32 s28, 1024")
    A("s_sub_u32 s34, s2, 120\ns_lshl_b32 s34, s34, 2\ns_add_u32 s34, s34, s3")
    A("s_and_b32 s29, s34, 15\ns_lshr_b32 s30, s34, 4\ns_lshl_b32 s30, s30, 3")
    A("s_mul_i32 s31, s29, 112\ns_add_u32 s31, s31, s30\ns_lshl_b32 s31, s31, 10\ns_add_u32 s31, s31, %d" % W2_F)
    A("s_mov_b32 s32, 0\ns_mov_b32 s33, 0")
    A.label("L_prep_w")
    A("s_lshl_b32 s34, s28, 2")
    A("v_mul_lo_u32 v6, v5, s34")
    A("s_lshl_b32 s35, s29, 5")
    A("v_add_u32 v7, s35, v4")
    A("v_lshl_add_u32 v10, v7, 1, v6")
    for idx, jj in enumerate((0, 1, 2, 3, 8, 9, 10, 11)):
        if idx == 0:
            continue
        A("s_mul_i32 s34, s28, %d" % jj)
        A("v_add_u32 v%d, s34, v10" % (10 + idx))
    A("s_lshl_b32 s34, s28, 4")
    A("s_mul_i32 s35, s30, s34")
    LD = 64
    for s in range(8):
        for j in range(8):
            A("buffer_load_ushort v%d, v%d, s[24:27], s35 offen" % (LD + 8 * s + j, 10 + j))
        if s < 7:
            A("s_add_u32 s35, s35, s34")
    A("s_add_u32 s36, s31, 4096")
    PK = 32
    for s in range(8):
        A("s_waitcnt vmcnt(%d)" % (56 - 8 * s + s))
        for q in range(4):
            A("v_lshl_or_b32 v%d, v%d, 16, v%d" % (PK + 4 * s + q, LD + 8 * s + 2 * q + 1, LD + 8 * s + 2 * q))
        A("buffer_store_dwordx4 %s, v1, s[4:7], s%d offen offset:%d" % (vr(PK + 4 * s, 4), 31 if s < 4 else 36, (s % 4) * 1024))
    A("s_cmp_eq_u32 s33, 0")
    A("s_cbranch_scc1 L_%s_end" % name)
    for i in range(64):
        A("v_lshlrev_b32 v%d, 16, v%d" % (LD + i, LD + i))
    A("v_add_f32 v20, v%d, v%d" % (LD, LD + 1))
    for i in range(2, 64):
        A("v_add_f32 v20, v20, v%d" % (LD + i))
    cross_half_add(20, 21)
    A("s_lshl_b32 s34, s3, 7")
    A("v_lshlrev_b32 v22, 2, v4")
    A("v_add_u32 v22, s34, v22")
    A("ds_write_b32 v22, v20")
    A("s_waitcnt lgkmcnt(0)")
    A("s_barrier")
    A("s_cmp_lg_u32 s3, 0")
    A("s_cbranch_scc1 L_%s_end" % name)
    A("v_lshlrev_b32 v22, 2, v4")
    A("ds_read_b32 v23, v22")
    A("ds_read_b32 v24, v22 offset:128")
    A("ds_read_b32 v25, v22 offset:256")
    A("ds_read_b32 v26, v22 offset:384")
    A("v_bfe_u32 v27, v4, 2, 1")
    A("v_lshlrev_b32 v27, 4, v27")
    A("v_lshrrev_b32 v28, 3, v4")
    A("v_lshl_add_u32 v27, v28, 2, v27")
    A("v_and_b32 v28, 3, v4")
    A("v_add_u32 v27, v27, v28")
    A("v_lshlrev_b32 v27, 2, v27")
    A("s_waitcnt lgkmcnt(0)")
    A("v_add_f32 v23, v23, v24")
    A("v_add_f32 v25, v25, v26")
    A("v_add_f32 v23, v23, v25")
    A("buffer_store_dword v23, v27, s[4:7], s32 offen")
    A("s_cmp_lg_u32 s33, 2")
    A("s_cbranch_scc1 L_%s_end" % name)
    A("s_mov_b32 s40, s18\ns_mov_b32 s41, s19\ns_mov_b32 s42, %d\ns_mov_b32 s43, 0x00020000" % (1792 * 2))
    A("v_lshlrev_b32 v7, 1, v7")
    A("buffer_load_ushort v29, v7, s[40:43], 0 offen")
    A("s_lshl_b32 s34, s29, 7\ns_add_u32 s34, s34, %d" % B1F)
    A("s_waitcnt vmcnt(0)")
    A("v_lshlrev_b32 v29, 16, v29")
    A("buffer_store_dword v29, v27, s[4:7], s34 offen")
    A("s_branch L_%s_end" % name)
    A.label("L_prep_x")
    A("s_mov_b32 s24, s8\ns_mov_b32 s25, s9\ns_mov_b32 s26, %d" % (2048 * 512 * 2))
    A("s_sub_u32 s29, s2, 176")
    A("s_lshl_b32 s34, s29, 5")
    A("v_add_u32 v6, s34, v4")
    A("v_lshlrev_b32 v7, 10, v6")
    A("v_lshl_add_u32 v7, v5, 3, v7")
    A("s_lshl_b32 s35, s3, 8")
    for s in range(8):
        A("buffer_load_dwordx2 %s, v7, s[24:27], s35 offen offset:%d" % (vr(PK + 4 * s, 2), 32 * s))
        A("buffer_load_dwordx2 %s, v7, s[24:27], s35 offen offset:%d" % (vr(PK + 4 * s + 2, 2), 32 * s + 16))
    A("s_lshl_b32 s31, s29, 5\ns_lshl_b32 s34, s3, 3\ns_add_u32 s31, s31, s34\ns_lshl_b32 s31, s31, 10\ns_add_u32 s31, s31, %d" % XF)
    A("s_add_u32 s36, s31, 4096")
    A("v_lshlrev_b32 v8, 4, v4")
    A("s_lshl_b32 s37, s29, 3\ns_lshl_b32 s38, s3, 1\ns_add_u32 s37, s37, s38\ns_lshl_b32 s37, s37, 9\ns_add_u32 s37, s37, %d" % STATS)
    A("s_waitcnt vmcnt(0)")
    for s in range(8):
        A("buffer_store_dwordx4 %s, v1, s[4:7], s%d offen offset:%d" % (vr(PK + 4 * s, 4), 31 if s < 4 else 36, (s % 4) * 1024))
    for q in range(4):
        stats_of_packed([PK + 8 * q + i for i in range(8)], 20 + 2 * q, 21 + 2 * q, 12, 13)
        A("buffer_store_dwordx2 %s, v8, s[4:7], s37 offen offset:%d" % (vr(20 + 2 * q, 2), 512 * (q >> 1) + 8 * (q & 1)))
    kernel_end(name, 128)

class St:
    def __init__(self):
        self.n = {'vm': 0, 'lg': 0}
        self.tag = {}
    def copy(self):
        o = St(); o.n = dict(self.n); o.tag = dict(self.tag); return o

def I(text, cls=None, tag=None):
    return ('i', text, cls, tag)
def W(cls, tag):
    return ('w', cls, tag)

def emit(seq, st):
    for it in seq:
        if it[0] == 'i':
            _, text, cls, tag = it
            A(text)
            if cls:
                if tag is not None:
                    st.tag[tag] = st.n[cls]
                st.n[cls] += 1
        else:
            _, cls, tag = it
            n = st.n[cls] - st.tag[tag] - 1
            if cls == 'vm':
                A("s_waitcnt vmcnt(%d)" % min(n, 63))
            else:
                A("s_waitcnt lgkmcnt(%d)" % min(n, 15))

def L(txt):
    return [I(t.strip()) for t in txt.strip().split("\n")]

def s_cross_half_add(va, vt):
    return L("v_mov_b32 v%d, v%d\ns_nop 1\nv_permlane32_swap_b32 v%d, v%d\ns_nop 1\nv_add_f32 v%d, v%d, v%d" % (vt, va, va, vt, va, va, vt))


NBUF = 4
BUFSZ = 32768
X1R = 216
NVALL = 224

def decode_wg():
    A("v_and_b32 v4, 31, v2")
    A("v_lshrrev_b32 v5, 5, v2")
    A("s_and_b32 s61, s2, 7\ns_lshr_b32 s62, s2, 3\ns_lshr_b32 s60, s61, 1\ns_lshl_b32 s60, s60, 2\ns_and_b32 s63, s62, 3\ns_add_u32 s60, s60, s63\ns_lshr_b32 s62, s62, 2\ns_and_b32 s61, s61, 1")

_lab = [0]
def newlab(p):
    _lab[0] += 1
    return "L_%s_%d" % (p, _lab[0])

def publish(phase):
    A("s_waitcnt vmcnt(0)")
    A("s_barrier")
    l = newlab("pub")
    A("s_cmp_lg_u32 s3, 0")
    A("s_cbranch_scc1 %s" % l)
    A("s_lshl_b32 s64, s60, 7\ns_lshl_b32 s65, s61, 5\ns_add_u32 s64, s64, s65\ns_lshl_b32 s65, s62, 2\ns_add_u32 s64, s64, s65\ns_add_u32 s64, s64, %d" % (FLAGS + phase * 2048))
    A("v_mov_b32 v2, 0")
    A("v_mov_b32 v3, 1")
    A("s_mov_b64 exec, 1")
    A("buffer_store_dword v3, v2, s[4:7], s64 offen sc1")
    A("s_mov_b64 exec, -1")
    A.label(l)

def await_flags(phase, mask):
    l = newlab("aw"); lp = newlab("poll"); ld = newlab("done")
    A("s_cmp_lg_u32 s3, 0")
    A("s_cbranch_scc1 %s" % l)
    A("s_lshl_b32 s64, s60, 7\ns_add_u32 s64, s64, %d" % (FLAGS + phase * 2048))
    A("v_lshrrev_b32 v2, 2, v1")
    A("v_and_b32 v2, 60, v2")
    A("s_mov_b32 s66, 0x20000")
    A.label(lp)
    A("buffer_load_dword v3, v2, s[4:7], s64 offen sc1")
    A("s_waitcnt vmcnt(0)")
    A("v_cmp_eq_u32 vcc, 1, v3")
    A("s_nop 3")
    A("s_and_b32 s65, vcc_lo, 0x%x" % mask)
    A("s_cmp_eq_u32 s65, 0x%x" % mask)
    A("s_cbranch_scc1 %s" % ld)
    A("s_sleep 1")
    A("s_sub_u32 s66, s66, 1")
    A("s_cmp_lg_u32 s66, 0")
    A("s_cbranch_scc1 %s" % lp)
    A.label(ld)
    A.label(l)
    A("s_barrier")

def bpre_setup(kind):
    WOFF = WQKV_F if kind == 'qkv' else W1_F
    NH = 6 if kind == 'qkv' else 7
    A("s_mul_i32 s70, s61, %d\ns_add_u32 s70, s70, s62\ns_lshl_b32 s70, s70, 2\ns_add_u32 s70, s70, s3\ns_lshl_b32 s70, s70, 15\ns_add_u32 s70, s70, %d" % (NH, WOFF))
def bpre_chunk(c):
    seq = []
    for q in range(4):
        s_ = 4 * c + q
        seq.append(I("buffer_load_dwordx4 a[%d:%d], v1, s[4:7], s70 offen offset:%d" % (4 * s_, 4 * s_ + 3, 1024 * q), 'vm', ('B', c)))
    seq += L("s_add_u32 s70, s70, 4096")
    return seq

class Ring:
    def __init__(self, kind, st, lsc=""):
        self.kind = kind; self.st = st; self.lsc = lsc
        self.KC = 8
        self.KS = 32 if kind == 'wo' else 112
        self.NC = self.KS // self.KC
        self.NPRE = min(NBUF - 1, self.NC)
    def setup(self):
        kind, KS = self.kind, self.KS
        ACT = OF if kind == 'wo' else HF
        WOFF = WO_F if kind == 'wo' else W2_F
        A("s_lshr_b32 s44, s62, 2\ns_lshl_b32 s44, s44, 1\ns_lshl_b32 s45, s60, 2\ns_add_u32 s44, s44, s45")
        A("s_and_b32 s45, s62, 3\ns_lshl_b32 s46, s61, 2\ns_add_u32 s45, s45, s46\ns_lshl_b32 s45, s45, 1")
        A("s_and_b32 s46, s3, 1")
        A("s_mov_b32 s47, %d\ns_mov_b32 s48, %d" % (ACT, WOFF))
        A("s_cmp_lt_u32 s3, 2")
        A("s_cselect_b32 s49, s44, s45")
        A("s_cselect_b32 s47, s47, s48")
        A("s_add_u32 s49, s49, s46")
        A("s_mul_i32 s49, s49, %d" % (KS * 1024))
        A("s_add_u32 s50, s47, s49")
        A("s_add_u32 s51, s50, 4096")
        A("s_lshl_b32 s52, s3, 13")
        A("s_add_u32 s53, s52, 4096")
    def dma(self, c):
        bo = (c % NBUF) * BUFSZ
        seq = []
        for u in range(2):
            seq += L("s_add_u32 m0, s%d, %d\ns_nop 0" % (52 + u, bo))
            for q in range(4):
                seq.append(I("buffer_load_dwordx4 v1, s[4:7], s%d offen offset:%d%s lds" % (50 + u, 1024 * q, self.lsc), 'vm', ('D', self.kind, c)))
        seq += L("s_add_u32 s50, s50, %d\ns_add_u32 s51, s51, %d" % (self.KC * 1024, self.KC * 1024))
        return seq
    def pre(self, which):
        seq = []
        for c in range(self.NPRE):
            seq += self.dma(c)
        if which == 'all':
            emit(seq, self.st)
        else:
            l = newlab("pre")
            A("s_cmp_%s_u32 s3, 2" % ("lt" if which == 'w' else "ge"))
            A("s_cbranch_scc1 %s" % l)
            emit(seq, self.st if which == 'a' else self.st.copy())
            A.label(l)
    def body(self, xin, xout, stats_out, sc="", side=None):
        kind, st, KC, NC = self.kind, self.st, self.KC, self.NC
        side = side or {}
        A("s_lshr_b32 s16, s3, 1\ns_and_b32 s17, s3, 1")
        A("s_add_u32 s18, s16, s44\ns_add_u32 s19, s17, s45")
        ACC = 16; FR = 32; FSET = 8; NSET = 3; XO = 56
        A("s_lshl_b32 s20, s18, 5\ns_lshl_b32 s21, s19, 1\ns_add_u32 s20, s20, s21\ns_lshl_b32 s20, s20, 10")
        if xin is not None:
            A("s_add_u32 s21, s20, %d" % xin)
            emit([I("buffer_load_dwordx4 %s, v1, s[4:7], s21 offen" % vr(XO, 4), 'vm'),
                  I("buffer_load_dwordx4 %s, v1, s[4:7], s21 offen offset:1024" % vr(XO + 4, 4), 'vm', 'xo')], st)
        A("s_lshl_b32 s26, s16, 13")
        A("v_add_u32 v10, s26, v1")
        A("s_lshl_b32 s26, s17, 13\ns_add_u32 s26, s26, %d" % (2 * KC * 1024))
        A("v_add_u32 v11, s26, v1")
        A("v_add_u32 v12, 0x10000, v10")
        A("v_add_u32 v13, 0x10000, v11")
        def reads(c, s_, k):
            o = (c % NBUF) * BUFSZ + s_ * 1024
            A("ds_read_b128 %s, v%d offset:%d" % (vr(FR + k * FSET, 4), 10 if o < 65536 else 12, o % 65536))
            A("ds_read_b128 %s, v%d offset:%d" % (vr(FR + k * FSET + 4, 4), 11 if o < 65536 else 13, o % 65536))
        for c in range(NC):
            emit([W('vm', ('D', kind, c))], st)
            A("s_barrier")
            if c + NBUF - 1 < NC:
                emit(self.dma(c + NBUF - 1), st)
            reads(c, 0, 0)
            reads(c, 1, 1)
            sd = list(side.get(c, []))
            for s_ in range(KC):
                k = s_ % NSET
                if s_ + 2 < KC:
                    reads(c, s_ + 2, (s_ + 2) % NSET)
                A("s_waitcnt lgkmcnt(%d)" % (min(KC - 1 - s_, 2) * 2))
                A("v_mfma_f32_32x32x16_bf16 %s, %s, %s, %s" % (vr(ACC, 16), vr(FR + k * FSET + 4, 4), vr(FR + k * FSET, 4), "0" if (c == 0 and s_ == 0) else vr(ACC, 16)))
                take = -(-len(sd) // (KC - s_))
                emit(sd[:take], st)
                del sd[:take]
        A("s_nop 15")
        A("s_nop 3")
        T0, T1 = 6, 7
        if xin is not None:
            emit([W('vm', 'xo')], st)
        XS = XO if xin is not None else X1R
        acc = ACC
        for i in range(8):
            A("v_lshlrev_b32 v%d, 16, v%d" % (T0, XS + i))
            A("v_and_b32 v%d, 0xffff0000, v%d" % (T1, XS + i))
            A("v_add_f32 v%d, v%d, v%d" % (acc + 2 * i, acc + 2 * i, T0))
            A("v_add_f32 v%d, v%d, v%d" % (acc + 2 * i + 1, acc + 2 * i + 1, T1))
        for i in range(8):
            A("v_cvt_pk_bf16_f32 v%d, v%d, v%d" % (X1R + i, acc + 2 * i, acc + 2 * i + 1))
        if kind == 'w2f':
            A("s_mov_b32 s42, %d\ns_mov_b32 s43, 0x00020000" % (2048 * 512 * 2))
            A("s_lshl_b32 s30, s18, 5")
            A("v_add_u32 v%d, s30, v4" % T0)
            A("v_lshlrev_b32 v%d, 10, v%d" % (T0, T0))
            A("v_lshl_add_u32 v%d, v5, 3, v%d" % (T0, T0))
            A("s_lshl_b32 s31, s19, 6")
            for g in range(4):
                A("buffer_store_dwordx2 %s, v%d, s[40:43], s31 offen offset:%d" % (vr(X1R + 2 * g, 2), T0, 16 * g))
        else:
            A("s_add_u32 s21, s20, %d" % xout)
            emit([I("buffer_store_dwordx4 %s, v1, s[4:7], s21 offen%s" % (vr(X1R, 4), sc), 'vm'),
                  I("buffer_store_dwordx4 %s, v1, s[4:7], s21 offen offset:1024%s" % (vr(X1R + 4, 4), sc), 'vm')], st)
            stats_of_packed([X1R + i for i in range(8)], XO + 8, XO + 9, T0, T1)
            A("v_lshlrev_b32 v%d, 4, v4" % T0)
            A("s_lshl_b32 s30, s18, 3\ns_lshr_b32 s31, s19, 1\ns_add_u32 s30, s30, s31\ns_lshl_b32 s30, s30, 9\ns_and_b32 s31, s19, 1\ns_lshl_b32 s31, s31, 3\ns_add_u32 s31, s31, s30\ns_add_u32 s31, s31, %d" % stats_out)
            emit([I("buffer_store_dwordx2 %s, v%d, s[4:7], s31 offen%s" % (vr(XO + 8, 2), T0, sc), 'vm')], st)

def phase_res(kind, xin, stats_in, st, sync=None, sc="", lsc="", endlab=None, pre_epi=None):
    NH = 6 if kind == 'qkv' else 7
    tagname = newlab(kind)
    A("s_lshl_b32 s8, s60, 2")
    A("s_mul_i32 s9, s61, %d\ns_add_u32 s9, s9, s62\ns_lshl_b32 s9, s9, 2" % NH)
    A("s_add_u32 s19, s9, s3")
    ACC = 16; AF = 80; CSR = 112; BR = 128; STF = 144; TMP = 152; STL = 168; TK = 184
    PD = int(os.environ.get("PD", "2"))
    A("s_add_u32 s10, s8, s3\ns_lshl_b32 s10, s10, 15\ns_add_u32 s10, s10, %d" % xin)
    A("s_lshl_b32 s12, s3, 15")
    def a_loads(c):
        seq = [I("s_add_u32 m0, s12, %d" % (c * 4096)), I("s_nop 0")]
        for q in range(4):
            seq.append(I("buffer_load_dwordx4 v1, s[4:7], s10 offen offset:%d%s lds" % (1024 * q, lsc), 'vm', ('A', c)))
        seq += L("s_add_u32 s10, s10, 4096")
        return seq
    cs_l = []
    cs_l += L("v_lshlrev_b32 v14, 6, v5\ns_lshl_b32 s22, s19, 7\ns_add_u32 s22, s22, %d" % (CS_QKV if kind == 'qkv' else CS_W1))
    for q in range(4):
        cs_l.append(I("buffer_load_dwordx4 %s, v14, s[4:7], s22 offen offset:%d" % (vr(CSR + 4 * q, 4), 16 * q), 'vm', 'misc'))
    if kind == 'qkv':
        cs_l += L("v_bfe_u32 v15, v4, 2, 1\nv_lshlrev_b32 v15, 4, v15\nv_lshrrev_b32 v3, 3, v4\nv_lshl_add_u32 v15, v3, 2, v15\nv_and_b32 v3, 3, v4\nv_add_u32 v15, v15, v3\nv_lshlrev_b32 v15, 2, v15")
        cs_l.append(I("buffer_load_dword v%d, v15, s[4:7], s22 offen" % BR, 'vm', 'misc'))
    else:
        cs_l += L("s_lshl_b32 s23, s19, 7\ns_add_u32 s23, s23, %d" % B1F)
        for q in range(4):
            cs_l.append(I("buffer_load_dwordx4 %s, v14, s[4:7], s23 offen offset:%d" % (vr(BR + 4 * q, 4), 16 * q), 'vm', 'misc'))
    st_l = L("s_add_u32 s21, s8, s3\ns_lshl_b32 s21, s21, 12\ns_add_u32 s21, s21, %d" % stats_in)
    for q in range(4):
        st_l.append(I("buffer_load_dwordx4 %s, v1, s[4:7], s21 offen offset:%d%s" % (vr(STL + 4 * q, 4), 1024 * q, lsc), 'vm', 'misc'))
    misc = st_l + cs_l
    if sync is None:
        bpre_setup(kind)
        def chunk_loads(c):
            return a_loads(c) + bpre_chunk(c)
    else:
        sync()
        chunk_loads = a_loads
        PD = int(os.environ.get("PD2", "3"))
    for c in range(PD):
        emit(chunk_loads(c), st)
    A("v_add_u32 v11, 0x10000, v1")
    SCR = 131072
    A("s_lshl_b32 s26, s3, 8")
    A("v_lshlrev_b32 v12, 3, v4")
    A("v_add_u32 v13, %d, v12" % SCR)
    A("v_add_u32 v12, s26, v13")
    def stats_stream():
        seq = [W('vm', 'misc')]
        b = STL
        for p in range(1, 8):
            seq.append(I("v_add_f32 v%d, v%d, v%d" % (b, b, b + 2 * p)))
            seq.append(I("v_add_f32 v%d, v%d, v%d" % (b + 1, b + 1, b + 2 * p + 1)))
        seq += s_cross_half_add(b, b + 2)
        seq += s_cross_half_add(b + 1, b + 2)
        seq += L("v_mul_f32 v%d, %s, v%d" % (b, f32(1.0 / 512), b))
        seq += L("v_mul_f32 v%d, %s, v%d" % (b + 1, f32(1.0 / 512), b + 1))
        seq += L("v_fma_f32 v%d, -v%d, v%d, v%d" % (b + 1, b, b, b + 1))
        seq += L("v_max_f32 v%d, 0, v%d" % (b + 1, b + 1))
        seq += L("v_add_f32 v%d, %s, v%d" % (b + 1, f32(1e-5), b + 1))
        seq += L("v_rsq_f32 v%d, v%d\ns_nop 0" % (b + 1, b + 1))
        seq += L("v_mul_f32 v%d, v%d, v%d" % (b, b, b + 1))
        seq.append(I("ds_write_b64 v12, %s" % vr(b, 2), 'lg', 'sw'))
        return seq
    def run(orient, epi, st):
        def rd(g):
            seq = []
            c = g >> 2
            if g % 4 == 0:
                seq.append(W('vm', ('A', c)))
                if c == 7:
                    seq.append(W('lg', 'sw'))
                seq.append(I("s_barrier"))
                if c == 7 and orient == 1:
                    for t in range(4):
                        seq.append(I("ds_read_b64 %s, v13 offset:%d" % (vr(STF + 2 * t, 2), 256 * t), 'lg', 'sr'))
            for mi in range(4):
                o = mi * 32768 + g * 1024
                seq.append(I("ds_read_b128 %s, v%d offset:%d" % (vr(AF + 16 * (g & 1) + 4 * mi, 4), 1 if o < 65536 else 11, o % 65536), 'lg', ('R', g, mi)))
            return seq
        side = {}
        for c in range(8):
            side[c] = chunk_loads(c + PD) if c + PD < 8 else []
        side[1] = side[1] + list(misc)
        side[5] = side[5] + stats_stream()
        emit(rd(0), st)
        for g in range(32):
            c = g >> 2
            seq = []
            if g + 1 < 32:
                seq += rd(g + 1)
            if g % 4 == 0:
                seq.append(W('vm', ('B', c)))
            sd = side.get(c, [])
            for mi in range(4):
                seq.append(W('lg', ('R', g, mi)))
                acc = ACC + 16 * mi
                a_, b_ = "a[%d:%d]" % (4 * g, 4 * g + 3), vr(AF + 16 * (g & 1) + 4 * mi, 4)
                if orient == 2:
                    a_, b_ = b_, a_
                seq.append(I("v_mfma_f32_32x32x16_bf16 %s, %s, %s, %s" % (vr(acc, 16), a_, b_, "0" if g == 0 else vr(acc, 16))))
                slot = (g % 4) * 4 + mi
                take = -(-len(sd) // (14 - slot)) if slot < 14 else len(sd)
                seq += sd[:take]
                del sd[:take]
            emit(seq, st)
        if pre_epi is not None:
            pre_epi()
        A("s_nop 15")
        A("s_nop 3")
        for mi in range(4):
            emit(epi(mi), st)
    T0, T1, T2, T3 = 6, 7, 8, 9
    if kind == 'qkv':
        A("s_cmp_ge_u32 s9, 32")
        A("s_cbranch_scc1 %s_v" % tagname)
        A("s_cmp_lt_u32 s9, 16")
        A("s_cselect_b32 s27, %s, 1.0" % f32(0.25 * LOG2E))
        A("s_mov_b32 s28, %d\ns_mov_b32 s29, %d" % (QF, KF - 32 * 64 * 1024))
        A("s_cselect_b32 s28, s28, s29")
        A("s_lshl_b32 s30, s19, 7\ns_add_u32 s30, s30, s8\ns_lshl_b32 s30, s30, 10\ns_add_u32 s30, s30, s28\ns_add_u32 s31, s30, 65536")
        def epi_qk(mi):
            acc = ACC + 16 * mi
            seq = [W('lg', 'sr')] + L("v_mul_f32 v%d, s27, v%d\nv_mul_f32 v%d, s27, v%d" % (T0, STF + 2 * mi + 1, T1, STF + 2 * mi))
            for i in range(16):
                seq += L("v_mul_f32 v%d, v%d, v%d" % (acc + i, acc + i, T0))
                seq += L("v_fma_f32 v%d, -v%d, v%d, v%d" % (acc + i, T1, CSR + i, acc + i))
            for i in range(8):
                seq += L("v_cvt_pk_bf16_f32 v%d, v%d, v%d" % (acc + i, acc + 2 * i, acc + 2 * i + 1))
            seq.append(I("buffer_store_dwordx4 %s, v1, s[4:7], s30 offen offset:%d" % (vr(acc, 4), 1024 * mi), 'vm'))
            seq.append(I("buffer_store_dwordx4 %s, v1, s[4:7], s31 offen offset:%d" % (vr(acc + 4, 4), 1024 * mi), 'vm'))
            return seq
        run(1, epi_qk, st.copy())
        A("s_branch %s" % endlab)
        A.label("%s_v" % tagname)
        A("v_lshlrev_b32 v%d, 5, v5" % T1)
        A("v_add_u32 v%d, %d, v%d" % (T1, SCR, T1))
        A("v_lshrrev_b32 v%d, 4, v4" % T2)
        A("v_lshlrev_b32 v%d, 16, v%d" % (T2, T2))
        A("v_and_b32 v%d, 15, v4" % T3)
        A("v_lshl_add_u32 v%d, v5, 4, v%d" % (T3, T3))
        A("v_lshl_add_u32 v%d, v%d, 4, v%d" % (T2, T3, T2))
        A("s_sub_u32 s30, s19, 32\ns_lshl_b32 s30, s30, 7\ns_add_u32 s30, s30, s8\ns_lshl_b32 s30, s30, 10\ns_add_u32 s30, s30, %d" % VF)
        def epi_v(mi):
            acc = ACC + 16 * mi
            seq = []
            for g in range(4):
                seq.append(I("ds_read_b128 %s, v%d offset:%d" % (vr(TK + 8 * g, 4), T1, 256 * mi + 64 * g), 'lg'))
                seq.append(I("ds_read_b128 %s, v%d offset:%d" % (vr(TK + 8 * g + 4, 4), T1, 256 * mi + 64 * g + 16), 'lg', ('tk', mi)))
            seq.append(W('lg', ('tk', mi)))
            for i in range(16):
                g, r = i >> 2, i & 3
                mr = TK + 8 * g + 2 * r
                seq += L("v_mul_f32 v%d, v%d, v%d" % (acc + i, acc + i, mr + 1))
                seq += L("v_fma_f32 v%d, -v%d, v%d, v%d" % (acc + i, mr, BR, acc + i))
            for i in range(8):
                seq += L("v_cvt_pk_bf16_f32 v%d, v%d, v%d" % (acc + i, acc + 2 * i, acc + 2 * i + 1))
            seq.append(I("buffer_store_dwordx4 %s, v%d, s[4:7], s30 offen offset:%d" % (vr(acc, 4), T2, 1024 * mi), 'vm'))
            seq.append(I("buffer_store_dwordx4 %s, v%d, s[4:7], s30 offen offset:%d" % (vr(acc + 4, 4), T2, 1024 * mi + 512), 'vm'))
            return seq
        run(2, epi_v, st.copy())
    else:
        A("s_mul_i32 s30, s8, 112\ns_lshl_b32 s31, s19, 1\ns_add_u32 s30, s30, s31\ns_lshl_b32 s30, s30, 10\ns_add_u32 s30, s30, %d" % HF)
        def epi_w1(mi):
            acc = ACC + 16 * mi
            b = STF + 2 * mi
            seq = [W('lg', 'sr')]
            for i0 in range(0, 16, 4):
                tt = [TMP + 2 * k for k in range(4)]
                for k in range(4):
                    i = i0 + k
                    seq += L("v_fma_f32 v%d, -v%d, v%d, v%d" % (tt[k], b, CSR + i, BR + i))
                    seq += L("v_fma_f32 v%d, v%d, v%d, v%d" % (acc + i, acc + i, b + 1, tt[k]))
                    seq += L("v_mul_f32 v%d, %s, v%d" % (tt[k], f32(LOG2E), acc + i))
                for k in range(4):
                    seq += L("v_exp_f32 v%d, v%d" % (tt[k], tt[k]))
                for k in range(4):
                    seq += L("v_add_f32 v%d, 2.0, v%d" % (tt[k] + 1, tt[k]))
                    seq += L("v_fma_f32 v%d, v%d, v%d, 2.0" % (tt[k], tt[k], tt[k] + 1))
                for k in range(4):
                    seq += L("v_rcp_f32 v%d, v%d" % (tt[k], tt[k]))
                for k in range(4):
                    i = i0 + k
                    seq += L("v_mul_f32 v%d, v%d, v%d" % (tt[k], acc + i, tt[k]))
                for k in range(4):
                    i = i0 + k
                    seq += L("v_fma_f32 v%d, v%d, -2.0, v%d" % (acc + i, tt[k], acc + i))
            for i in range(8):
                seq += L("v_cvt_pk_bf16_f32 v%d, v%d, v%d" % (acc + i, acc + 2 * i, acc + 2 * i + 1))
            seq.append(I("buffer_store_dwordx4 %s, v1, s[4:7], s30 offen%s" % (vr(acc, 4), sc), 'vm'))
            seq.append(I("buffer_store_dwordx4 %s, v1, s[4:7], s30 offen offset:1024%s" % (vr(acc + 4, 4), sc), 'vm'))
            seq.append(I("s_add_u32 s30, s30, %d" % (112 * 1024)))
            return seq
        run(1, epi_w1, st)

def gen_qkv0():
    name = "qkv_kernel"
    kernel_begin(name)
    common_prologue(name, 256)
    decode_wg()
    A("s_cmp_ge_u32 s62, 6")
    A("s_cbranch_scc1 L_%s_end" % name)
    phase_res('qkv', XF, STATS, St(), endlab="L_%s_fin" % name)
    kernel_end(name, NVALL, agpr=128)
    return 256, 131072 + 1024

def gen_chain(name, last):
    kernel_begin(name)
    common_prologue(name, 256, "s_load_dwordx2 s[40:41], s[0:1], 56" if last else "")
    decode_wg()
    xin = X2F if last else XF
    SC = " sc1"
    LSC = os.environ.get("LSC", "")
    st = St()
    r1 = Ring('wo', st)
    r1.setup()
    r1.pre('all')
    bpre_setup('w1')
    r1.body(xin, X1F, STATS1, sc=SC, side={c: bpre_chunk(2 * c) + bpre_chunk(2 * c + 1) for c in range(4)})
    stamp(1)
    publish(0)
    st2 = St(); st2.tag = {k: -1 for k in st.tag}
    r2 = Ring('w2f' if last else 'w2', st2, lsc=LSC)
    lskip = newlab("skipw1"); ljoin = newlab("joinw1")
    A("s_cmp_ge_u32 s62, 7")
    A("s_cbranch_scc1 %s" % lskip)
    def pre_epi():
        A("s_barrier")
        r2.setup()
        r2.pre('w')
    phase_res('w1', X1F, STATS1, st2, sync=lambda: await_flags(0, 0xffff), sc=SC, lsc=LSC, pre_epi=pre_epi)
    publish(1)
    A("s_branch %s" % ljoin)
    A.label(lskip)
    r2.setup()
    r2.pre('w')
    A.label(ljoin)
    stamp(2)
    await_flags(1, 0x7f7f)
    st3 = St()
    r2.st = st3
    r2.pre('a')
    side = {}
    if not last:
        bpre_setup('qkv')
        side = {6 + c: bpre_chunk(c) for c in range(8)}
    r2.body(None, X2F, STATS2, sc=SC, side=side)
    stamp(3)
    if not last:
        publish(2)
        A("s_cmp_ge_u32 s62, 6")
        A("s_cbranch_scc1 L_%s_end" % name)
        st4 = St(); st4.tag = {k: -1 for k in st3.tag}
        phase_res('qkv', X2F, STATS2, st4, sync=lambda: await_flags(2, 0xffff), lsc=LSC, endlab="L_%s_fin" % name)
    kernel_end(name, NVALL, agpr=128)
    return 256, 131072 + 1024

def gen_attn():
    name = "attn_kernel"
    kernel_begin(name)
    common_prologue(name, 256)
    A("v_and_b32 v4, 31, v2")
    A("v_lshrrev_b32 v5, 5, v2")
    A("s_and_b32 s8, s2, 7\ns_lshr_b32 s9, s2, 3\ns_lshl_b32 s8, s8, 2\ns_and_b32 s10, s9, 3\ns_add_u32 s8, s8, s10\ns_lshr_b32 s9, s9, 2")
    A("s_and_b32 s24, s3, 7\ns_lshr_b32 s25, s3, 3")
    A("s_cmp_lg_u32 s2, 0")
    A("s_cbranch_scc1 L_attn_nz")
    A("s_cmp_ge_u32 s3, 6")
    A("s_cbranch_scc1 L_attn_nz")
    A("v_mov_b32 v8, 0\nv_mov_b32 v9, 0\nv_mov_b32 v10, 0\nv_mov_b32 v11, 0")
    A("s_lshl_b32 s26, s3, 10\ns_add_u32 s26, s26, %d" % FLAGS)
    A("buffer_store_dwordx4 v[8:11], v1, s[4:7], s26 offen")
    A("s_nop 1")
    A.label("L_attn_nz")
    A("s_lshl_b32 s9, s9, 3\ns_add_u32 s9, s9, s24")
    Q = 8; NEG = 12; S0 = 28; S1 = 44; P = 60; K0 = 68; K1 = 72; V0 = 76; V1 = 84; O = 92
    SS = (S0, S1); KK = (K0, K1); VV = (V0, V1)
    SCR = 131072 + 4096
    A("s_lshl_b32 s10, s8, 6\ns_add_u32 s11, s10, s9\ns_lshl_b32 s11, s11, 10\ns_add_u32 s11, s11, %d" % QF)
    A("buffer_load_dwordx4 %s, v1, s[4:7], s11 offen" % vr(Q, 4))
    A("s_lshl_b32 s10, s10, 10")
    A("s_add_u32 s12, s10, %d" % KF)
    A("s_add_u32 s13, s10, %d" % VF)
    A("s_lshl_b32 s14, s25, 5\ns_add_u32 s14, s14, s24\ns_lshl_b32 s14, s14, 10")
    A("s_add_u32 s15, s12, s14")
    A("s_add_u32 s16, s13, s14")
    A("s_mov_b32 m0, s14")
    A("s_nop 0")
    A("buffer_load_dwordx4 v1, s[4:7], s15 offen lds")
    A("s_add_u32 m0, s14, 0x10000")
    A("s_nop 0")
    A("buffer_load_dwordx4 v1, s[4:7], s16 offen lds")
    A("v_and_b32 v6, 27, v4")
    A("v_cmp_eq_u32 vcc, 16, v6")
    A("v_mov_b32 v7, 0x3f803f80")
    A("s_nop 1")
    A("v_cndmask_b32 v6, 0, v7, vcc")
    for i in range(16):
        A("v_mov_b32 v%d, v6" % (V0 + i))
    A("s_mov_b32 s20, 0xffff\ns_mov_b32 s21, 0xffff")
    A("s_mov_b32 s22, 0")
    A("s_lshl_b32 s26, s25, 15")
    A("s_waitcnt vmcnt(0)")
    A("s_barrier")
    stamp(1)
    A("s_mul_i32 s14, s24, 3\ns_add_u32 s14, s14, 8\ns_lshl_b32 s17, s25, 5\ns_add_u32 s14, s14, s17\ns_lshl_b32 s14, s14, 10")
    A("s_add_u32 s15, s12, s14")
    A("s_add_u32 s16, s13, s14")
    A("s_mov_b32 m0, s14")
    A("s_nop 0")
    for q in range(3):
        A("buffer_load_dwordx4 v1, s[4:7], s15 offen offset:%d lds" % (1024 * q))
    A("s_add_u32 m0, s14, 0x10000")
    A("s_nop 0")
    for q in range(3):
        A("buffer_load_dwordx4 v1, s[4:7], s16 offen offset:%d lds" % (1024 * q))
    A("ds_read_b128 %s, v1" % vr(K0, 4))
    A("s_waitcnt lgkmcnt(0)")
    A("v_mfma_f32_32x32x16_bf16 %s, %s, %s, 0" % (vr(S0, 16), vr(K0, 4), vr(Q, 4)))
    A("s_nop 15")
    A("s_nop 3")
    def max16(dst, S, init=False):
        if init:
            A("v_max3_f32 v%d, v%d, v%d, v%d" % (dst, S, S + 1, S + 2))
            A("v_max_f32 v%d, v%d, v%d" % (dst, dst, S + 3))
            rest = list(range(4, 16))
        else:
            rest = list(range(0, 16))
        for i in range(0, len(rest), 2):
            A("v_max3_f32 v%d, v%d, v%d, v%d" % (dst, dst, S + rest[i], S + rest[i + 1]))
    max16(6, S0, True)
    A.label("L_attn_setneg")
    A("v_mov_b32 v7, v6")
    A("s_nop 1")
    A("v_permlane32_swap_b32 v6, v7")
    A("s_nop 1")
    A("v_max_f32 v6, v6, v7")
    A("v_sub_f32 v%d, 0, v6" % NEG)
    for i in range(1, 16):
        A("v_mov_b32 v%d, v%d" % (NEG + i, NEG))
    A("v_add_u32 v2, s26, v1")
    A("v_lshl_add_u32 v3, v5, 4, v4")
    A("v_lshlrev_b32 v3, 4, v3")
    A("v_add_u32 v3, 0x10000, v3")
    A("v_add_u32 v3, s26, v3")
    for i in range(16):
        A("v_mov_b32 v%d, 0" % (O + i))
    def vread(p, off):
        A("s_mov_b64 exec, s[20:21]")
        A("ds_read_b128 %s, v3 offset:%d" % (vr(VV[p], 4), off))
        A("ds_read_b128 %s, v3 offset:%d" % (vr(VV[p] + 4, 4), off + 512))
        A("s_mov_b64 exec, -1")
    A("ds_read_b128 %s, v2" % vr(K0, 4))
    vread(0, 0)
    A("s_waitcnt lgkmcnt(0)")
    A("v_mfma_f32_32x32x16_bf16 %s, %s, %s, %s" % (vr(S0, 16), vr(K0, 4), vr(Q, 4), vr(NEG, 16)))
    A("ds_read_b128 %s, v2 offset:1024" % vr(K1, 4))
    vread(1, 1024)
    A("s_nop 7")
    def body():
        for p in range(2):
            S = SS[p]
            A("s_waitcnt lgkmcnt(2)")
            A("v_mfma_f32_32x32x16_bf16 %s, %s, %s, %s" % (vr(SS[1 - p], 16), vr(KK[1 - p], 4), vr(Q, 4), vr(NEG, 16)))
            A("ds_read_b128 %s, v2 offset:%d" % (vr(KK[p], 4), 2048 + 1024 * p))
            for i in range(8):
                A("v_exp_f32 v%d, v%d" % (S + i, S + i))
            for i in range(4):
                A("v_cvt_pk_bf16_f32 v%d, v%d, v%d" % (P + i, S + 2 * i, S + 2 * i + 1))
            for i in range(8, 10):
                A("v_exp_f32 v%d, v%d" % (S + i, S + i))
            A("v_mfma_f32_32x32x16_bf16 %s, %s, %s, %s" % (vr(O, 16), vr(VV[p], 4), vr(P, 4), vr(O, 16)))
            for i in range(10, 16):
                A("v_exp_f32 v%d, v%d" % (S + i, S + i))
            for i in range(4):
                A("v_cvt_pk_bf16_f32 v%d, v%d, v%d" % (P + 4 + i, S + 8 + 2 * i, S + 8 + 2 * i + 1))
            if p == 1:
                A("v_add_u32 v2, 2048, v2")
                A("s_sub_u32 s23, s23, 1")
            else:
                A("s_nop 1")
            A("v_mfma_f32_32x32x16_bf16 %s, %s, %s, %s" % (vr(O, 16), vr(VV[p] + 4, 4), vr(P + 4, 4), vr(O, 16)))
            vread(p, 2048 + 1024 * p)
        A("v_add_u32 v3, 2048, v3")
        A("s_cmp_lg_u32 s23, 0")
    A("s_cmp_lg_u32 s22, 0")
    A("s_cbranch_scc0 L_attn_phA")
    A("s_mov_b32 s23, 32")
    A("s_branch L_attn_loopB")
    A.label("L_attn_phA")
    A("s_mov_b32 s23, 3")
    A.label("L_attn_loopA")
    body()
    A("s_cbranch_scc1 L_attn_loopA")
    stamp(2)
    A("s_waitcnt vmcnt(0)")
    A("s_barrier")
    stamp(3)
    A("s_mov_b32 s23, 13")
    A.label("L_attn_loopB")
    body()
    A("s_cbranch_scc1 L_attn_loopB")
    A("s_waitcnt lgkmcnt(0)")
    A("s_nop 15")
    A("s_nop 3")
    A("s_cmp_lg_u32 s22, 0")
    A("s_cbranch_scc1 L_attn_fin")
    A("s_mul_i32 s27, s24, %d" % (9 * 256))
    A("v_lshrrev_b32 v6, 2, v1")
    A("v_add_u32 v6, s27, v6")
    A("v_add_u32 v6, %d, v6" % SCR)
    A("s_cmp_eq_u32 s25, 0")
    A("s_cbranch_scc1 L_attn_lo")
    for i in range(9):
        A("ds_write_b32 v6, v%d offset:%d" % (O + i, 256 * i))
    A("s_waitcnt lgkmcnt(0)")
    A("s_barrier")
    A("s_branch L_%s_end" % name)
    A.label("L_attn_lo")
    A("s_barrier")
    for i in range(9):
        A("ds_read_b32 v%d, v6 offset:%d" % (S0 + i, 256 * i))
    A("s_waitcnt lgkmcnt(0)")
    for i in range(9):
        A("v_add_f32 v%d, v%d, v%d" % (O + i, O + i, S0 + i))
    A("v_cmp_gt_f32 vcc, 0x5f800000, v%d" % (O + 8))
    A("s_nop 3")
    A("s_cmp_eq_u64 vcc, exec")
    A("s_cbranch_scc1 L_attn_fin")
    A("s_mov_b32 s22, 1")
    A("v_mov_b32 v2, v1")
    A("v_mov_b32 v6, 0xff800000")
    A("s_mov_b32 s23, 64")
    A.label("L_attn_maxp")
    A("ds_read_b128 %s, v2" % vr(K0, 4))
    A("s_waitcnt lgkmcnt(0)")
    A("v_mfma_f32_32x32x16_bf16 %s, %s, %s, 0" % (vr(S0, 16), vr(K0, 4), vr(Q, 4)))
    A("s_nop 15")
    A("s_nop 3")
    max16(6, S0, False)
    A("v_add_u32 v2, 1024, v2")
    A("s_sub_u32 s23, s23, 1")
    A("s_cmp_lg_u32 s23, 0")
    A("s_cbranch_scc1 L_attn_maxp")
    A("s_branch L_attn_setneg")
    A.label("L_attn_fin")
    A("v_rcp_f32 v6, v%d" % (O + 8))
    A("s_nop 0")
    for i in range(8):
        A("v_mul_f32 v%d, v%d, v6" % (O + i, O + i))
    for i in range(4):
        A("v_cvt_pk_bf16_f32 v%d, v%d, v%d" % (O + i, O + 2 * i, O + 2 * i + 1))
    A("s_lshl_b32 s10, s9, 5\ns_add_u32 s10, s10, s8\ns_lshl_b32 s10, s10, 10\ns_add_u32 s10, s10, %d" % OF)
    A("buffer_store_dwordx4 %s, v1, s[4:7], s10 offen" % vr(O, 4))
    kernel_end(name, 112)
    return 256, SCR + 8 * 9 * 256

def main():
    A.raw(".amdgcn_target \"amdgcn-amd-amdhsa--gfx950\"")
    A.raw(".text")
    gen_prep()
    g = {}
    g['qkv'] = gen_qkv0()
    g['attn'] = gen_attn()
    g['chain1'] = gen_chain("chain1_kernel", False)
    g['chain2'] = gen_chain("chain2_kernel", True)
    hdr = []
    hdr.append("; @launch kernel=prep_kernel grid=(240,1,1) block=(256,1,1) lds=512")
    seq = ['qkv', 'attn', 'chain1', 'attn', 'chain2']
    for k in seq:
        nwg, lds = g[k]
        hdr.append("; @launch kernel=%s_kernel grid=(%d,1,1) block=(%d,1,1) lds=%d" % (k, nwg, 1024 if k == 'attn' else 256, lds))
    out = "\n".join(hdr) + "\n" + A.text()
    out += ".section .rodata,\"a\"\n"
    for (name, vgpr, sgpr, agpr) in kernels:
        v = (vgpr + 3) // 4 * 4
        out += ".p2align 6\n.amdhsa_kernel %s\n" % name
        out += "  .amdhsa_next_free_vgpr %d\n  .amdhsa_next_free_sgpr %d\n  .amdhsa_accum_offset %d\n" % (v + agpr, sgpr, v)
        out += "  .amdhsa_group_segment_fixed_size 0\n  .amdhsa_kernarg_size 80\n  .amdhsa_user_sgpr_count 2\n"
        out += "  .amdhsa_user_sgpr_kernarg_segment_ptr 1\n  .amdhsa_system_sgpr_workgroup_id_x 1\n.end_amdhsa_kernel\n"
    path = sys.argv[1] if len(sys.argv) > 1 else "cdna_kernels/%s.s" % NAME
    open(path, "w").write(out)
    print("wrote", path, len(out), "bytes")

if __name__ == "__main__":
    main()
```

```python
import sys, struct

NAME = "interleave_layers__softmax_full_mha__dense_activation_mish__prompt"
KB = 1024
_off = 0
def alloc(n):
    global _off
    o = _off
    _off += (n + 4095) // 4096 * 4096
    return o

WQKV_F = alloc(48 * 32 * KB)
WO_F   = alloc(16 * 32 * KB)
W1_F   = alloc(56 * 32 * KB)
W2_F   = alloc(16 * 112 * KB)
CS_QKV = alloc(48 * 128)
CS_W1  = alloc(56 * 128)
B1F    = alloc(56 * 128)
XF     = alloc(64 * 32 * KB)
STATS  = alloc(2048 * 128)
QF     = alloc(32 * 64 * KB)
KF     = alloc(32 * 64 * KB)
VF     = alloc(32 * 64 * KB)
OF     = alloc(64 * 32 * KB)
HF     = alloc(64 * 112 * KB)
X1F    = alloc(64 * 32 * KB)
X2F    = alloc(64 * 32 * KB)
STATS1 = alloc(2048 * 128)
STATS2 = alloc(2048 * 128)
FLAGS  = alloc(3 * 2048)
WS_SIZE = 268435456

def f32(x):
    return "0x%08x" % struct.unpack("<I", struct.pack("<f", x))[0]

LOG2E = 1.4426950408889634

class Asm:
    def __init__(self):
        self.lines = []
    def __call__(self, s):
        for l in s.strip("\n").split("\n"):
            self.lines.append("    " + l.strip())
    def label(self, l):
        self.lines.append(l + ":")
    def raw(self, s):
        self.lines.append(s)
    def text(self):
        return "\n".join(self.lines) + "\n"

A = Asm()
kernels = []

def vr(b, n):
    return "v[%d:%d]" % (b, b + n - 1)

import os
PROF = int(os.environ.get("PROF", "0"))
PROF_OFF = 128 * 1024 * 1024
_kid = [0]
def stamp(i):
    if PROF:
        A("s_memtime s[%d:%d]" % (72 + 2 * i, 73 + 2 * i))
        if i == 0:
            A("s_memrealtime s[92:93]")
def stamp_flush():
    if not PROF:
        return
    A("s_memtime s[88:89]")
    A("s_memrealtime s[94:95]")
    A("s_waitcnt vmcnt(0) lgkmcnt(0)")
    A("s_mov_b64 exec, 1")
    for i in range(24):
        A("v_mov_b32 v%d, s%d" % (8 + i, 72 + i))
    A("s_lshl_b32 s96, s2, 4\ns_add_u32 s96, s96, s3\ns_lshl_b32 s96, s96, 7\ns_add_u32 s96, s96, %d" % (PROF_OFF + _kid[0] * 1024 * 1024))
    A("v_mov_b32 v40, 0")
    for q in range(6):
        A("buffer_store_dwordx4 v[%d:%d], v40, s[4:7], s96 offen offset:%d" % (8 + 4 * q, 11 + 4 * q, 16 * q))
    _kid[0] += 1

def kernel_begin(name):
    A.raw(".globl %s" % name)
    A.raw(".p2align 8")
    A.raw(".type %s,@function" % name)
    A.label(name)

def kernel_end(name, vgpr, sgpr=100, agpr=0):
    A.label("L_%s_fin" % name)
    stamp_flush()
    A.label("L_%s_end" % name)
    A("s_endpgm")
    kernels.append((name, vgpr, sgpr, agpr))

def common_prologue(name, nwg, extra_loads=""):
    A("s_cmp_ge_u32 s2, %d" % nwg)
    A("s_cbranch_scc1 L_%s_end" % name)
    A("s_load_dwordx2 s[4:5], s[0:1], 72")
    if extra_loads:
        A(extra_loads)
    A("v_and_b32 v2, 63, v0")
    A("v_lshrrev_b32 v3, 6, v0")
    A("v_lshlrev_b32 v1, 4, v2")
    A("v_readfirstlane_b32 s3, v3")
    A("s_mov_b32 s6, 0x%x" % WS_SIZE)
    A("s_mov_b32 s7, 0x00020000")
    A("s_waitcnt lgkmcnt(0)")
    stamp(0)

def cross_half_add(va, vt):
    A("v_mov_b32 v%d, v%d" % (vt, va))
    A("s_nop 1")
    A("v_permlane32_swap_b32 v%d, v%d" % (va, vt))
    A("s_nop 1")
    A("v_add_f32 v%d, v%d, v%d" % (va, va, vt))

def stats_of_packed(regs, vsum, vsq, vt0, vt1):
    first = True
    for r in regs:
        A("v_lshlrev_b32 v%d, 16, v%d" % (vt0, r))
        A("v_and_b32 v%d, 0xffff0000, v%d" % (vt1, r))
        if first:
            A("v_add_f32 v%d, v%d, v%d" % (vsum, vt0, vt1))
            A("v_mul_f32 v%d, v%d, v%d" % (vsq, vt0, vt0))
            first = False
        else:
            A("v_add_f32 v%d, v%d, v%d" % (vsum, vsum, vt0))
            A("v_add_f32 v%d, v%d, v%d" % (vsum, vsum, vt1))
            A("v_fmac_f32 v%d, v%d, v%d" % (vsq, vt0, vt0))
        A("v_fmac_f32 v%d, v%d, v%d" % (vsq, vt1, vt1))
    cross_half_add(vsum, vt0)
    cross_half_add(vsq, vt0)

def gen_prep():
    name = "prep_kernel"
    kernel_begin(name)
    common_prologue(name, 240,
        "s_load_dwordx4 s[8:11], s[0:1], 0\n"
        "s_load_dwordx2 s[12:13], s[0:1], 16\n"
        "s_load_dwordx4 s[16:19], s[0:1], 32\n"
        "s_load_dwordx2 s[20:21], s[0:1], 48")
    A("v_and_b32 v4, 31, v2")
    A("v_lshrrev_b32 v5, 5, v2")
    A("s_mov_b32 s27, 0x00020000")
    A("s_cmp_ge_u32 s2, 176")
    A("s_cbranch_scc1 L_prep_x")
    A("s_lshl_b32 s30, s3, 3")
    A("s_cmp_ge_u32 s2, 48")
    A("s_cbranch_scc1 L_prep_r1")
    A("s_mov_b32 s24, s10\ns_mov_b32 s25, s11\ns_mov_b32 s26, %d" % (512 * 1536 * 2))
    A("s_mov_b32 s28, 3072\ns_mov_b32 s29, s2")
    A("s_lshl_b32 s31, s29, 5\ns_add_u32 s31, s31, s30\ns_lshl_b32 s31, s31, 10\ns_add_u32 s31, s31, %d" % WQKV_F)
    A("s_lshl_b32 s32, s29, 7\ns_add_u32 s32, s32, %d" % CS_QKV)
    A("s_mov_b32 s33, 1")
    A("s_branch L_prep_w")
    A.label("L_prep_r1")
    A("s_cmp_ge_u32 s2, 64")
    A("s_cbranch_scc1 L_prep_r2")
    A("s_mov_b32 s24, s12\ns_mov_b32 s25, s13\ns_mov_b32 s26, %d" % (512 * 512 * 2))
    A("s_mov_b32 s28, 1024\ns_sub_u32 s29, s2, 48")
    A("s_lshl_b32 s31, s29, 5\ns_add_u32 s31, s31, s30\ns_lshl_b32 s31, s31, 10\ns_add_u32 s31, s31, %d" % WO_F)
    A("s_mov_b32 s32, 0\ns_mov_b32 s33, 0")
    A("s_branch L_prep_w")
    A.label("L_prep_r2")
    A("s_cmp_ge_u32 s2, 120")
    A("s_cbranch_scc1 L_prep_r3")
    A("s_mov_b32 s24, s16\ns_mov_b32 s25, s17\ns_mov_b32 s26, %d" % (512 * 1792 * 2))
    A("s_mov_b32 s28, 3584\ns_sub_u32 s29, s2, 64")
    A("s_lshl_b32 s31, s29, 5\ns_add_u32 s31, s31, s30\ns_lshl_b32 s31, s31, 10\ns_add_u32 s31, s31, %d" % W1_F)
    A("s_lshl_b32 s32, s29, 7\ns_add_u32 s32, s32, %d" % CS_W1)
    A("s_mov_b32 s33, 2")
    A("s_branch L_prep_w")
    A.label("L_prep_r3")
    A("s_mov_b32 s24, s20\ns_mov_b32 s25, s21\ns_mov_b32 s26, %d" % (1792 * 512 * 2))
    A("s_mov_b32 s28, 1024")
    A("s_sub_u32 s34, s2, 120\ns_lshl_b32 s34, s34, 2\ns_add_u32 s34, s34, s3")
    A("s_and_b32 s29, s34, 15\ns_lshr_b32 s30, s34, 4\ns_lshl_b32 s30, s30, 3")
    A("s_mul_i32 s31, s29, 112\ns_add_u32 s31, s31, s30\ns_lshl_b32 s31, s31, 10\ns_add_u32 s31, s31, %d" % W2_F)
    A("s_mov_b32 s32, 0\ns_mov_b32 s33, 0")
    A.label("L_prep_w")
    A("s_lshl_b32 s34, s28, 2")
    A("v_mul_lo_u32 v6, v5, s34")
    A("s_lshl_b32 s35, s29, 5")
    A("v_add_u32 v7, s35, v4")
    A("v_lshl_add_u32 v10, v7, 1, v6")
    for idx, jj in enumerate((0, 1, 2, 3, 8, 9, 10, 11)):
        if idx == 0:
            continue
        A("s_mul_i32 s34, s28, %d" % jj)
        A("v_add_u32 v%d, s34, v10" % (10 + idx))
    A("s_lshl_b32 s34, s28, 4")
    A("s_mul_i32 s35, s30, s34")
    LD = 64
    for s in range(8):
        for j in range(8):
            A("buffer_load_ushort v%d, v%d, s[24:27], s35 offen" % (LD + 8 * s + j, 10 + j))
        if s < 7:
            A("s_add_u32 s35, s35, s34")
    A("s_add_u32 s36, s31, 4096")
    PK = 32
    for s in range(8):
        A("s_waitcnt vmcnt(%d)" % (56 - 8 * s + s))
        for q in range(4):
            A("v_lshl_or_b32 v%d, v%d, 16, v%d" % (PK + 4 * s + q, LD + 8 * s + 2 * q + 1, LD + 8 * s + 2 * q))
        A("buffer_store_dwordx4 %s, v1, s[4:7], s%d offen offset:%d" % (vr(PK + 4 * s, 4), 31 if s < 4 else 36, (s % 4) * 1024))
    A("s_cmp_eq_u32 s33, 0")
    A("s_cbranch_scc1 L_%s_end" % name)
    for i in range(64):
        A("v_lshlrev_b32 v%d, 16, v%d" % (LD + i, LD + i))
    A("v_add_f32 v20, v%d, v%d" % (LD, LD + 1))
    for i in range(2, 64):
        A("v_add_f32 v20, v20, v%d" % (LD + i))
    cross_half_add(20, 21)
    A("s_lshl_b32 s34, s3, 7")
    A("v_lshlrev_b32 v22, 2, v4")
    A("v_add_u32 v22, s34, v22")
    A("ds_write_b32 v22, v20")
    A("s_waitcnt lgkmcnt(0)")
    A("s_barrier")
    A("s_cmp_lg_u32 s3, 0")
    A("s_cbranch_scc1 L_%s_end" % name)
    A("v_lshlrev_b32 v22, 2, v4")
    A("ds_read_b32 v23, v22")
    A("ds_read_b32 v24, v22 offset:128")
    A("ds_read_b32 v25, v22 offset:256")
    A("ds_read_b32 v26, v22 offset:384")
    A("v_bfe_u32 v27, v4, 2, 1")
    A("v_lshlrev_b32 v27, 4, v27")
    A("v_lshrrev_b32 v28, 3, v4")
    A("v_lshl_add_u32 v27, v28, 2, v27")
    A("v_and_b32 v28, 3, v4")
    A("v_add_u32 v27, v27, v28")
    A("v_lshlrev_b32 v27, 2, v27")
    A("s_waitcnt lgkmcnt(0)")
    A("v_add_f32 v23, v23, v24")
    A("v_add_f32 v25, v25, v26")
    A("v_add_f32 v23, v23, v25")
    A("buffer_store_dword v23, v27, s[4:7], s32 offen")
    A("s_cmp_lg_u32 s33, 2")
    A("s_cbranch_scc1 L_%s_end" % name)
    A("s_mov_b32 s40, s18\ns_mov_b32 s41, s19\ns_mov_b32 s42, %d\ns_mov_b32 s43, 0x00020000" % (1792 * 2))
    A("v_lshlrev_b32 v7, 1, v7")
    A("buffer_load_ushort v29, v7, s[40:43], 0 offen")
    A("s_lshl_b32 s34, s29, 7\ns_add_u32 s34, s34, %d" % B1F)
    A("s_waitcnt vmcnt(0)")
    A("v_lshlrev_b32 v29, 16, v29")
    A("buffer_store_dword v29, v27, s[4:7], s34 offen")
    A("s_branch L_%s_end" % name)
    A.label("L_prep_x")
    A("s_mov_b32 s24, s8\ns_mov_b32 s25, s9\ns_mov_b32 s26, %d" % (2048 * 512 * 2))
    A("s_sub_u32 s29, s2, 176")
    A("s_lshl_b32 s34, s29, 5")
    A("v_add_u32 v6, s34, v4")
    A("v_lshlrev_b32 v7, 10, v6")
    A("v_lshl_add_u32 v7, v5, 3, v7")
    A("s_lshl_b32 s35, s3, 8")
    for s in range(8):
        A("buffer_load_dwordx2 %s, v7, s[24:27], s35 offen offset:%d" % (vr(PK + 4 * s, 2), 32 * s))
        A("buffer_load_dwordx2 %s, v7, s[24:27], s35 offen offset:%d" % (vr(PK + 4 * s + 2, 2), 32 * s + 16))
    A("s_lshl_b32 s31, s29, 5\ns_lshl_b32 s34, s3, 3\ns_add_u32 s31, s31, s34\ns_lshl_b32 s31, s31, 10\ns_add_u32 s31, s31, %d" % XF)
    A("s_add_u32 s36, s31, 4096")
    A("v_lshlrev_b32 v8, 4, v4")
    A("s_lshl_b32 s37, s29, 3\ns_lshl_b32 s38, s3, 1\ns_add_u32 s37, s37, s38\ns_lshl_b32 s37, s37, 9\ns_add_u32 s37, s37, %d" % STATS)
    A("s_waitcnt vmcnt(0)")
    for s in range(8):
        A("buffer_store_dwordx4 %s, v1, s[4:7], s%d offen offset:%d" % (vr(PK + 4 * s, 4), 31 if s < 4 else 36, (s % 4) * 1024))
    for q in range(4):
        stats_of_packed([PK + 8 * q + i for i in range(8)], 20 + 2 * q, 21 + 2 * q, 12, 13)
        A("buffer_store_dwordx2 %s, v8, s[4:7], s37 offen offset:%d" % (vr(20 + 2 * q, 2), 512 * (q >> 1) + 8 * (q & 1)))
    kernel_end(name, 128)

class St:
    def __init__(self):
        self.n = {'vm': 0, 'lg': 0}
        self.tag = {}
    def copy(self):
        o = St(); o.n = dict(self.n); o.tag = dict(self.tag); return o

def I(text, cls=None, tag=None):
    return ('i', text, cls, tag)
def W(cls, tag):
    return ('w', cls, tag)

def emit(seq, st):
    for it in seq:
        if it[0] == 'i':
            _, text, cls, tag = it
            A(text)
            if cls:
                if tag is not None:
                    st.tag[tag] = st.n[cls]
                st.n[cls] += 1
        else:
            _, cls, tag = it
            n = st.n[cls] - st.tag[tag] - 1
            if cls == 'vm':
                A("s_waitcnt vmcnt(%d)" % min(n, 63))
            else:
                A("s_waitcnt lgkmcnt(%d)" % min(n, 15))

def L(txt):
    return [I(t.strip()) for t in txt.strip().split("\n")]

def s_cross_half_add(va, vt):
    return L("v_mov_b32 v%d, v%d\ns_nop 1\nv_permlane32_swap_b32 v%d, v%d\ns_nop 1\nv_add_f32 v%d, v%d, v%d" % (vt, va, va, vt, va, va, vt))


NBUF = 4
BUFSZ = 32768
X1R = 216
NVALL = 224

def decode_wg():
    A("v_and_b32 v4, 31, v2")
    A("v_lshrrev_b32 v5, 5, v2")
    A("s_and_b32 s61, s2, 7\ns_lshr_b32 s62, s2, 3\ns_lshr_b32 s60, s61, 1\ns_lshl_b32 s60, s60, 2\ns_and_b32 s63, s62, 3\ns_add_u32 s60, s60, s63\ns_lshr_b32 s62, s62, 2\ns_and_b32 s61, s61, 1")

_lab = [0]
def newlab(p):
    _lab[0] += 1
    return "L_%s_%d" % (p, _lab[0])

def publish(phase):
    A("s_waitcnt vmcnt(0)")
    A("s_barrier")
    l = newlab("pub")
    A("s_cmp_lg_u32 s3, 0")
    A("s_cbranch_scc1 %s" % l)
    A("s_lshl_b32 s64, s60, 7\ns_lshl_b32 s65, s61, 5\ns_add_u32 s64, s64, s65\ns_lshl_b32 s65, s62, 2\ns_add_u32 s64, s64, s65\ns_add_u32 s64, s64, %d" % (FLAGS + phase * 2048))
    A("v_mov_b32 v2, 0")
    A("v_mov_b32 v3, 1")
    A("s_mov_b64 exec, 1")
    A("buffer_store_dword v3, v2, s[4:7], s64 offen sc1")
    A("s_mov_b64 exec, -1")
    A.label(l)

def await_flags(phase, mask):
    l = newlab("aw"); lp = newlab("poll"); ld = newlab("done")
    A("s_cmp_lg_u32 s3, 0")
    A("s_cbranch_scc1 %s" % l)
    A("s_lshl_b32 s64, s60, 7\ns_add_u32 s64, s64, %d" % (FLAGS + phase * 2048))
    A("v_lshrrev_b32 v2, 2, v1")
    A("v_and_b32 v2, 60, v2")
    A("s_mov_b32 s66, 0x20000")
    A.label(lp)
    A("buffer_load_dword v3, v2, s[4:7], s64 offen sc1")
    A("s_waitcnt vmcnt(0)")
    A("v_cmp_eq_u32 vcc, 1, v3")
    A("s_nop 3")
    A("s_and_b32 s65, vcc_lo, 0x%x" % mask)
    A("s_cmp_eq_u32 s65, 0x%x" % mask)
    A("s_cbranch_scc1 %s" % ld)
    A("s_sleep 1")
    A("s_sub_u32 s66, s66, 1")
    A("s_cmp_lg_u32 s66, 0")
    A("s_cbranch_scc1 %s" % lp)
    A.label(ld)
    A.label(l)
    A("s_barrier")

def bpre_setup(kind):
    WOFF = WQKV_F if kind == 'qkv' else W1_F
    NH = 6 if kind == 'qkv' else 7
    A("s_mul_i32 s70, s61, %d\ns_add_u32 s70, s70, s62\ns_lshl_b32 s70, s70, 2\ns_add_u32 s70, s70, s3\ns_lshl_b32 s70, s70, 15\ns_add_u32 s70, s70, %d" % (NH, WOFF))
def bpre_chunk(c):
    seq = []
    for q in range(4):
        s_ = 4 * c + q
        seq.append(I("buffer_load_dwordx4 a[%d:%d], v1, s[4:7], s70 offen offset:%d" % (4 * s_, 4 * s_ + 3, 1024 * q), 'vm', ('B', c)))
    seq += L("s_add_u32 s70, s70, 4096")
    return seq

class Ring:
    def __init__(self, kind, st, lsc=""):
        self.kind = kind; self.st = st; self.lsc = lsc
        self.KC = 8
        self.KS = 32 if kind == 'wo' else 112
        self.NC = self.KS // self.KC
        self.NPRE = min(NBUF - 1, self.NC)
    def setup(self):
        kind, KS = self.kind, self.KS
        ACT = OF if kind == 'wo' else HF
        WOFF = WO_F if kind == 'wo' else W2_F
        A("s_lshr_b32 s44, s62, 2\ns_lshl_b32 s44, s44, 1\ns_lshl_b32 s45, s60, 2\ns_add_u32 s44, s44, s45")
        A("s_and_b32 s45, s62, 3\ns_lshl_b32 s46, s61, 2\ns_add_u32 s45, s45, s46\ns_lshl_b32 s45, s45, 1")
        A("s_and_b32 s46, s3, 1")
        A("s_mov_b32 s47, %d\ns_mov_b32 s48, %d" % (ACT, WOFF))
        A("s_cmp_lt_u32 s3, 2")
        A("s_cselect_b32 s49, s44, s45")
        A("s_cselect_b32 s47, s47, s48")
        A("s_add_u32 s49, s49, s46")
        A("s_mul_i32 s49, s49, %d" % (KS * 1024))
        A("s_add_u32 s50, s47, s49")
        A("s_add_u32 s51, s50, 4096")
        A("s_lshl_b32 s52, s3, 13")
        A("s_add_u32 s53, s52, 4096")
    def dma(self, c):
        bo = (c % NBUF) * BUFSZ
        seq = []
        for u in range(2):
            seq += L("s_add_u32 m0, s%d, %d\ns_nop 0" % (52 + u, bo))
            for q in range(4):
                seq.append(I("buffer_load_dwordx4 v1, s[4:7], s%d offen offset:%d%s lds" % (50 + u, 1024 * q, self.lsc), 'vm', ('D', self.kind, c)))
        seq += L("s_add_u32 s50, s50, %d\ns_add_u32 s51, s51, %d" % (self.KC * 1024, self.KC * 1024))
        return seq
    def pre(self, which):
        seq = []
        for c in range(self.NPRE):
            seq += self.dma(c)
        if which == 'all':
            emit(seq, self.st)
        else:
            l = newlab("pre")
            A("s_cmp_%s_u32 s3, 2" % ("lt" if which == 'w' else "ge"))
            A("s_cbranch_scc1 %s" % l)
            emit(seq, self.st if which == 'a' else self.st.copy())
            A.label(l)
    def body(self, xin, xout, stats_out, sc="", side=None):
        kind, st, KC, NC = self.kind, self.st, self.KC, self.NC
        side = side or {}
        A("s_lshr_b32 s16, s3, 1\ns_and_b32 s17, s3, 1")
        A("s_add_u32 s18, s16, s44\ns_add_u32 s19, s17, s45")
        ACC = 16; FR = 32; FSET = 8; NSET = 3; XO = 56
        A("s_lshl_b32 s20, s18, 5\ns_lshl_b32 s21, s19, 1\ns_add_u32 s20, s20, s21\ns_lshl_b32 s20, s20, 10")
        if xin is not None:
            A("s_add_u32 s21, s20, %d" % xin)
            emit([I("buffer_load_dwordx4 %s, v1, s[4:7], s21 offen" % vr(XO, 4), 'vm'),
                  I("buffer_load_dwordx4 %s, v1, s[4:7], s21 offen offset:1024" % vr(XO + 4, 4), 'vm', 'xo')], st)
        A("s_lshl_b32 s26, s16, 13")
        A("v_add_u32 v10, s26, v1")
        A("s_lshl_b32 s26, s17, 13\ns_add_u32 s26, s26, %d" % (2 * KC * 1024))
        A("v_add_u32 v11, s26, v1")
        A("v_add_u32 v12, 0x10000, v10")
        A("v_add_u32 v13, 0x10000, v11")
        def reads(c, s_, k):
            o = (c % NBUF) * BUFSZ + s_ * 1024
            A("ds_read_b128 %s, v%d offset:%d" % (vr(FR + k * FSET, 4), 10 if o < 65536 else 12, o % 65536))
            A("ds_read_b128 %s, v%d offset:%d" % (vr(FR + k * FSET + 4, 4), 11 if o < 65536 else 13, o % 65536))
        for c in range(NC):
            emit([W('vm', ('D', kind, c))], st)
            A("s_barrier")
            if c + NBUF - 1 < NC:
                emit(self.dma(c + NBUF - 1), st)
            reads(c, 0, 0)
            reads(c, 1, 1)
            sd = list(side.get(c, []))
            for s_ in range(KC):
                k = s_ % NSET
                if s_ + 2 < KC:
                    reads(c, s_ + 2, (s_ + 2) % NSET)
                A("s_waitcnt lgkmcnt(%d)" % (min(KC - 1 - s_, 2) * 2))
                A("v_mfma_f32_32x32x16_bf16 %s, %s, %s, %s" % (vr(ACC, 16), vr(FR + k * FSET + 4, 4), vr(FR + k * FSET, 4), "0" if (c == 0 and s_ == 0) else vr(ACC, 16)))
                take = -(-len(sd) // (KC - s_))
                emit(sd[:take], st)
                del sd[:take]
        A("s_nop 15")
        A("s_nop 3")
        T0, T1 = 6, 7
        if xin is not None:
            emit([W('vm', 'xo')], st)
        XS = XO if xin is not None else X1R
        acc = ACC
        for i in range(8):
            A("v_lshlrev_b32 v%d, 16, v%d" % (T0, XS + i))
            A("v_and_b32 v%d, 0xffff0000, v%d" % (T1, XS + i))
            A("v_add_f32 v%d, v%d, v%d" % (acc + 2 * i, acc + 2 * i, T0))
            A("v_add_f32 v%d, v%d, v%d" % (acc + 2 * i + 1, acc + 2 * i + 1, T1))
        for i in range(8):
            A("v_cvt_pk_bf16_f32 v%d, v%d, v%d" % (X1R + i, acc + 2 * i, acc + 2 * i + 1))
        if kind == 'w2f':
            A("s_mov_b32 s42, %d\ns_mov_b32 s43, 0x00020000" % (2048 * 512 * 2))
            A("s_lshl_b32 s30, s18, 5")
            A("v_add_u32 v%d, s30, v4" % T0)
            A("v_lshlrev_b32 v%d, 10, v%d" % (T0, T0))
            A("v_lshl_add_u32 v%d, v5, 3, v%d" % (T0, T0))
            A("s_lshl_b32 s31, s19, 6")
            for g in range(4):
                A("buffer_store_dwordx2 %s, v%d, s[40:43], s31 offen offset:%d" % (vr(X1R + 2 * g, 2), T0, 16 * g))
        else:
            A("s_add_u32 s21, s20, %d" % xout)
            emit([I("buffer_store_dwordx4 %s, v1, s[4:7], s21 offen%s" % (vr(X1R, 4), sc), 'vm'),
                  I("buffer_store_dwordx4 %s, v1, s[4:7], s21 offen offset:1024%s" % (vr(X1R + 4, 4), sc), 'vm')], st)
            stats_of_packed([X1R + i for i in range(8)], XO + 8, XO + 9, T0, T1)
            A("v_lshlrev_b32 v%d, 4, v4" % T0)
            A("s_lshl_b32 s30, s18, 3\ns_lshr_b32 s31, s19, 1\ns_add_u32 s30, s30, s31\ns_lshl_b32 s30, s30, 9\ns_and_b32 s31, s19, 1\ns_lshl_b32 s31, s31, 3\ns_add_u32 s31, s31, s30\ns_add_u32 s31, s31, %d" % stats_out)
            emit([I("buffer_store_dwordx2 %s, v%d, s[4:7], s31 offen%s" % (vr(XO + 8, 2), T0, sc), 'vm')], st)

def phase_res(kind, xin, stats_in, st, sync=None, sc="", lsc="", endlab=None, pre_epi=None):
    NH = 6 if kind == 'qkv' else 7
    tagname = newlab(kind)
    A("s_lshl_b32 s8, s60, 2")
    A("s_mul_i32 s9, s61, %d\ns_add_u32 s9, s9, s62\ns_lshl_b32 s9, s9, 2" % NH)
    A("s_add_u32 s19, s9, s3")
    ACC = 16; AF = 80; CSR = 112; BR = 128; STF = 144; TMP = 152; STL = 168; TK = 184
    PD = int(os.environ.get("PD", "2"))
    A("s_add_u32 s10, s8, s3\ns_lshl_b32 s10, s10, 15\ns_add_u32 s10, s10, %d" % xin)
    A("s_lshl_b32 s12, s3, 15")
    def a_loads(c):
        seq = [I("s_add_u32 m0, s12, %d" % (c * 4096)), I("s_nop 0")]
        for q in range(4):
            seq.append(I("buffer_load_dwordx4 v1, s[4:7], s10 offen offset:%d%s lds" % (1024 * q, lsc), 'vm', ('A', c)))
        seq += L("s_add_u32 s10, s10, 4096")
        return seq
    cs_l = []
    cs_l += L("v_lshlrev_b32 v14, 6, v5\ns_lshl_b32 s22, s19, 7\ns_add_u32 s22, s22, %d" % (CS_QKV if kind == 'qkv' else CS_W1))
    for q in range(4):
        cs_l.append(I("buffer_load_dwordx4 %s, v14, s[4:7], s22 offen offset:%d" % (vr(CSR + 4 * q, 4), 16 * q), 'vm', 'misc'))
    if kind == 'qkv':
        cs_l += L("v_bfe_u32 v15, v4, 2, 1\nv_lshlrev_b32 v15, 4, v15\nv_lshrrev_b32 v3, 3, v4\nv_lshl_add_u32 v15, v3, 2, v15\nv_and_b32 v3, 3, v4\nv_add_u32 v15, v15, v3\nv_lshlrev_b32 v15, 2, v15")
        cs_l.append(I("buffer_load_dword v%d, v15, s[4:7], s22 offen" % BR, 'vm', 'misc'))
    else:
        cs_l += L("s_lshl_b32 s23, s19, 7\ns_add_u32 s23, s23, %d" % B1F)
        for q in range(4):
            cs_l.append(I("buffer_load_dwordx4 %s, v14, s[4:7], s23 offen offset:%d" % (vr(BR + 4 * q, 4), 16 * q), 'vm', 'misc'))
    st_l = L("s_add_u32 s21, s8, s3\ns_lshl_b32 s21, s21, 12\ns_add_u32 s21, s21, %d" % stats_in)
    for q in range(4):
        st_l.append(I("buffer_load_dwordx4 %s, v1, s[4:7], s21 offen offset:%d%s" % (vr(STL + 4 * q, 4), 1024 * q, lsc), 'vm', 'misc'))
    misc = st_l + cs_l
    if sync is None:
        bpre_setup(kind)
        def chunk_loads(c):
            return a_loads(c) + bpre_chunk(c)
    else:
        sync()
        chunk_loads = a_loads
        PD = int(os.environ.get("PD2", "4"))
    for c in range(PD):
        emit(chunk_loads(c), st)
    A("v_add_u32 v11, 0x10000, v1")
    SCR = 131072
    A("s_lshl_b32 s26, s3, 8")
    A("v_lshlrev_b32 v12, 3, v4")
    A("v_add_u32 v13, %d, v12" % SCR)
    A("v_add_u32 v12, s26, v13")
    def stats_stream():
        seq = [W('vm', 'misc')]
        b = STL
        for p in range(1, 8):
            seq.append(I("v_add_f32 v%d, v%d, v%d" % (b, b, b + 2 * p)))
            seq.append(I("v_add_f32 v%d, v%d, v%d" % (b + 1, b + 1, b + 2 * p + 1)))
        seq += s_cross_half_add(b, b + 2)
        seq += s_cross_half_add(b + 1, b + 2)
        seq += L("v_mul_f32 v%d, %s, v%d" % (b, f32(1.0 / 512), b))
        seq += L("v_mul_f32 v%d, %s, v%d" % (b + 1, f32(1.0 / 512), b + 1))
        seq += L("v_fma_f32 v%d, -v%d, v%d, v%d" % (b + 1, b, b, b + 1))
        seq += L("v_max_f32 v%d, 0, v%d" % (b + 1, b + 1))
        seq += L("v_add_f32 v%d, %s, v%d" % (b + 1, f32(1e-5), b + 1))
        seq += L("v_rsq_f32 v%d, v%d\ns_nop 0" % (b + 1, b + 1))
        seq += L("v_mul_f32 v%d, v%d, v%d" % (b, b, b + 1))
        seq.append(I("ds_write_b64 v12, %s" % vr(b, 2), 'lg', 'sw'))
        return seq
    def run(orient, epi, st):
        def rd(g):
            seq = []
            c = g >> 2
            if g % 4 == 0:
                seq.append(W('vm', ('A', c)))
                if c == 7:
                    seq.append(W('lg', 'sw'))
                seq.append(I("s_barrier"))
                if c == 7 and orient == 1:
                    for t in range(4):
                        seq.append(I("ds_read_b64 %s, v13 offset:%d" % (vr(STF + 2 * t, 2), 256 * t), 'lg', 'sr'))
            for mi in range(4):
                o = mi * 32768 + g * 1024
                seq.append(I("ds_read_b128 %s, v%d offset:%d" % (vr(AF + 16 * (g & 1) + 4 * mi, 4), 1 if o < 65536 else 11, o % 65536), 'lg', ('R', g, mi)))
            return seq
        side = {}
        for c in range(8):
            side[c] = chunk_loads(c + PD) if c + PD < 8 else []
        side[1] = side[1] + list(misc)
        side[5] = side[5] + stats_stream()
        emit(rd(0), st)
        for g in range(32):
            c = g >> 2
            seq = []
            if g + 1 < 32:
                seq += rd(g + 1)
            if g % 4 == 0:
                seq.append(W('vm', ('B', c)))
            sd = side.get(c, [])
            for mi in range(4):
                seq.append(W('lg', ('R', g, mi)))
                acc = ACC + 16 * mi
                a_, b_ = "a[%d:%d]" % (4 * g, 4 * g + 3), vr(AF + 16 * (g & 1) + 4 * mi, 4)
                if orient == 2:
                    a_, b_ = b_, a_
                seq.append(I("v_mfma_f32_32x32x16_bf16 %s, %s, %s, %s" % (vr(acc, 16), a_, b_, "0" if g == 0 else vr(acc, 16))))
                slot = (g % 4) * 4 + mi
                take = -(-len(sd) // (14 - slot)) if slot < 14 else len(sd)
                seq += sd[:take]
                del sd[:take]
            emit(seq, st)
        if pre_epi is not None:
            pre_epi()
        A("s_nop 15")
        A("s_nop 3")
        for mi in range(4):
            emit(epi(mi), st)
    T0, T1, T2, T3 = 6, 7, 8, 9
    if kind == 'qkv':
        A("s_cmp_ge_u32 s9, 32")
        A("s_cbranch_scc1 %s_v" % tagname)
        A("s_cmp_lt_u32 s9, 16")
        A("s_cselect_b32 s27, %s, 1.0" % f32(0.25 * LOG2E))
        A("s_mov_b32 s28, %d\ns_mov_b32 s29, %d" % (QF, KF - 32 * 64 * 1024))
        A("s_cselect_b32 s28, s28, s29")
        A("s_lshl_b32 s30, s19, 7\ns_add_u32 s30, s30, s8\ns_lshl_b32 s30, s30, 10\ns_add_u32 s30, s30, s28\ns_add_u32 s31, s30, 65536")
        def epi_qk(mi):
            acc = ACC + 16 * mi
            seq = [W('lg', 'sr')] + L("v_mul_f32 v%d, s27, v%d\nv_mul_f32 v%d, s27, v%d" % (T0, STF + 2 * mi + 1, T1, STF + 2 * mi))
            for i in range(0, 16, 2):
                seq += L("v_pk_mul_f32 %s, %s, %s op_sel:[0,0] op_sel_hi:[1,0]" % (vr(acc + i, 2), vr(acc + i, 2), vr(T0, 2)))
                seq += L("v_pk_fma_f32 %s, %s, %s, %s op_sel:[1,0,0] op_sel_hi:[1,1,1] neg_lo:[1,0,0] neg_hi:[1,0,0]" % (vr(acc + i, 2), vr(T0, 2), vr(CSR + i, 2), vr(acc + i, 2)))
            for i in range(8):
                seq += L("v_cvt_pk_bf16_f32 v%d, v%d, v%d" % (acc + i, acc + 2 * i, acc + 2 * i + 1))
            seq.append(I("buffer_store_dwordx4 %s, v1, s[4:7], s30 offen offset:%d" % (vr(acc, 4), 1024 * mi), 'vm'))
            seq.append(I("buffer_store_dwordx4 %s, v1, s[4:7], s31 offen offset:%d" % (vr(acc + 4, 4), 1024 * mi), 'vm'))
            return seq
        run(1, epi_qk, st.copy())
        A("s_branch %s" % endlab)
        A.label("%s_v" % tagname)
        A("v_lshlrev_b32 v%d, 5, v5" % T1)
        A("v_add_u32 v%d, %d, v%d" % (T1, SCR, T1))
        A("v_lshrrev_b32 v%d, 4, v4" % T2)
        A("v_lshlrev_b32 v%d, 16, v%d" % (T2, T2))
        A("v_and_b32 v%d, 15, v4" % T3)
        A("v_lshl_add_u32 v%d, v5, 4, v%d" % (T3, T3))
        A("v_lshl_add_u32 v%d, v%d, 4, v%d" % (T2, T3, T2))
        A("s_sub_u32 s30, s19, 32\ns_lshl_b32 s30, s30, 7\ns_add_u32 s30, s30, s8\ns_lshl_b32 s30, s30, 10\ns_add_u32 s30, s30, %d" % VF)
        def epi_v(mi):
            acc = ACC + 16 * mi
            seq = []
            for g in range(4):
                seq.append(I("ds_read_b128 %s, v%d offset:%d" % (vr(TK + 8 * g, 4), T1, 256 * mi + 64 * g), 'lg'))
                seq.append(I("ds_read_b128 %s, v%d offset:%d" % (vr(TK + 8 * g + 4, 4), T1, 256 * mi + 64 * g + 16), 'lg', ('tk', mi)))
            seq.append(W('lg', ('tk', mi)))
            for i in range(16):
                g, r = i >> 2, i & 3
                mr = TK + 8 * g + 2 * r
                seq += L("v_mul_f32 v%d, v%d, v%d" % (acc + i, acc + i, mr + 1))
                seq += L("v_fma_f32 v%d, -v%d, v%d, v%d" % (acc + i, mr, BR, acc + i))
            for i in range(8):
                seq += L("v_cvt_pk_bf16_f32 v%d, v%d, v%d" % (acc + i, acc + 2 * i, acc + 2 * i + 1))
            seq.append(I("buffer_store_dwordx4 %s, v%d, s[4:7], s30 offen offset:%d" % (vr(acc, 4), T2, 1024 * mi), 'vm'))
            seq.append(I("buffer_store_dwordx4 %s, v%d, s[4:7], s30 offen offset:%d" % (vr(acc + 4, 4), T2, 1024 * mi + 512), 'vm'))
            return seq
        run(2, epi_v, st.copy())
    else:
        A("s_mul_i32 s30, s8, 112\ns_lshl_b32 s31, s19, 1\ns_add_u32 s30, s30, s31\ns_lshl_b32 s30, s30, 10\ns_add_u32 s30, s30, %d" % HF)
        A("s_mov_b32 s32, %s\ns_mov_b32 s33, %s\ns_mov_b32 s34, 2.0\ns_mov_b32 s35, 2.0\ns_mov_b32 s36, -2.0\ns_mov_b32 s37, -2.0" % (f32(LOG2E), f32(LOG2E)))
        def epi_w1(mi):
            acc = ACC + 16 * mi
            b = STF + 2 * mi
            seq = [W('lg', 'sr')]
            for i0 in range(0, 16, 8):
                tt = [TMP + 4 * k for k in range(4)]
                for k in range(4):
                    i = i0 + 2 * k
                    seq += L("v_pk_fma_f32 %s, %s, %s, %s op_sel:[0,0,0] op_sel_hi:[0,1,1] neg_lo:[1,0,0] neg_hi:[1,0,0]" % (vr(tt[k], 2), vr(b, 2), vr(CSR + i, 2), vr(BR + i, 2)))
                    seq += L("v_pk_fma_f32 %s, %s, %s, %s op_sel:[0,1,0] op_sel_hi:[1,1,1]" % (vr(acc + i, 2), vr(acc + i, 2), vr(b, 2), vr(tt[k], 2)))
                    seq += L("v_pk_mul_f32 %s, %s, s[32:33]" % (vr(tt[k], 2), vr(acc + i, 2)))
                for k in range(4):
                    seq += L("v_exp_f32 v%d, v%d\nv_exp_f32 v%d, v%d" % (tt[k], tt[k], tt[k] + 1, tt[k] + 1))
                for k in range(4):
                    seq += L("v_pk_add_f32 %s, %s, s[34:35]" % (vr(tt[k] + 2, 2), vr(tt[k], 2)))
                    seq += L("v_pk_fma_f32 %s, %s, %s, s[34:35]" % (vr(tt[k], 2), vr(tt[k], 2), vr(tt[k] + 2, 2)))
                for k in range(4):
                    seq += L("v_rcp_f32 v%d, v%d\nv_rcp_f32 v%d, v%d" % (tt[k], tt[k], tt[k] + 1, tt[k] + 1))
                for k in range(4):
                    i = i0 + 2 * k
                    seq += L("v_pk_mul_f32 %s, %s, %s" % (vr(tt[k], 2), vr(acc + i, 2), vr(tt[k], 2)))
                for k in range(4):
                    i = i0 + 2 * k
                    seq += L("v_pk_fma_f32 %s, %s, s[36:37], %s" % (vr(acc + i, 2), vr(tt[k], 2), vr(acc + i, 2)))
            for i in range(8):
                seq += L("v_cvt_pk_bf16_f32 v%d, v%d, v%d" % (acc + i, acc + 2 * i, acc + 2 * i + 1))
            seq.append(I("buffer_store_dwordx4 %s, v1, s[4:7], s30 offen%s" % (vr(acc, 4), sc), 'vm'))
            seq.append(I("buffer_store_dwordx4 %s, v1, s[4:7], s30 offen offset:1024%s" % (vr(acc + 4, 4), sc), 'vm'))
            seq.append(I("s_add_u32 s30, s30, %d" % (112 * 1024)))
            return seq
        run(1, epi_w1, st)

def gen_qkv0():
    name = "qkv_kernel"
    kernel_begin(name)
    common_prologue(name, 256)
    decode_wg()
    A("s_cmp_ge_u32 s62, 6")
    A("s_cbranch_scc1 L_%s_end" % name)
    phase_res('qkv', XF, STATS, St(), endlab="L_%s_fin" % name)
    kernel_end(name, NVALL, agpr=128)
    return 256, 131072 + 1024

def gen_chain(name, last):
    kernel_begin(name)
    common_prologue(name, 256, "s_load_dwordx2 s[40:41], s[0:1], 56" if last else "")
    decode_wg()
    xin = X2F if last else XF
    SC = " sc1"
    LSC = os.environ.get("LSC", " sc1")
    st = St()
    r1 = Ring('wo', st)
    r1.setup()
    r1.pre('all')
    bpre_setup('w1')
    r1.body(xin, X1F, STATS1, sc=SC, side={c: bpre_chunk(2 * c) + bpre_chunk(2 * c + 1) for c in range(4)})
    stamp(1)
    publish(0)
    stamp(2)
    st2 = St(); st2.tag = {k: -1 for k in st.tag}
    r2 = Ring('w2f' if last else 'w2', st2, lsc=LSC)
    lskip = newlab("skipw1"); ljoin = newlab("joinw1")
    A("s_cmp_ge_u32 s62, 7")
    A("s_cbranch_scc1 %s" % lskip)
    def pre_epi():
        stamp(4)
        A("s_barrier")
        r2.setup()
        r2.pre('w')
    def aw0():
        await_flags(0, 0xffff)
        stamp(3)
    phase_res('w1', X1F, STATS1, st2, sync=aw0, sc=SC, lsc=LSC, pre_epi=pre_epi)
    stamp(5)
    publish(1)
    A("s_branch %s" % ljoin)
    A.label(lskip)
    r2.setup()
    r2.pre('w')
    A.label(ljoin)
    stamp(6)
    await_flags(1, 0x7f7f)
    stamp(7)
    st3 = St()
    r2.st = st3
    r2.pre('a')
    side = {}
    if not last:
        bpre_setup('qkv')
        side = {6 + c: bpre_chunk(c) for c in range(8)}
    r2.body(None, X2F, STATS2, sc=SC, side=side)
    if not last:
        publish(2)
        A("s_cmp_ge_u32 s62, 6")
        A("s_cbranch_scc1 L_%s_end" % name)
        st4 = St(); st4.tag = {k: -1 for k in st3.tag}
        phase_res('qkv', X2F, STATS2, st4, sync=lambda: await_flags(2, 0xffff), lsc=LSC, endlab="L_%s_fin" % name)
    kernel_end(name, NVALL, agpr=128)
    return 256, 131072 + 1024

def gen_attn():
    name = "attn_kernel"
    kernel_begin(name)
    common_prologue(name, 256)
    A("v_and_b32 v4, 31, v2")
    A("v_lshrrev_b32 v5, 5, v2")
    A("s_and_b32 s8, s2, 7\ns_lshr_b32 s9, s2, 3\ns_lshl_b32 s8, s8, 2\ns_and_b32 s10, s9, 3\ns_add_u32 s8, s8, s10\ns_lshr_b32 s9, s9, 2")
    A("s_and_b32 s24, s3, 7\ns_lshr_b32 s25, s3, 3")
    A("s_cmp_lg_u32 s2, 0")
    A("s_cbranch_scc1 L_attn_nz")
    A("s_cmp_ge_u32 s3, 6")
    A("s_cbranch_scc1 L_attn_nz")
    A("v_mov_b32 v8, 0\nv_mov_b32 v9, 0\nv_mov_b32 v10, 0\nv_mov_b32 v11, 0")
    A("s_lshl_b32 s26, s3, 10\ns_add_u32 s26, s26, %d" % FLAGS)
    A("buffer_store_dwordx4 v[8:11], v1, s[4:7], s26 offen")
    A("s_nop 1")
    A.label("L_attn_nz")
    A("s_lshl_b32 s9, s9, 3\ns_add_u32 s9, s9, s24")
    Q = 8; NEG = 12; S0 = 28; S1 = 44; P = 60; K0 = 68; K1 = 72; V0 = 76; V1 = 84; O = 92
    SS = (S0, S1); KK = (K0, K1); VV = (V0, V1)
    SCR = 131072 + 4096
    A("s_lshl_b32 s10, s8, 6\ns_add_u32 s11, s10, s9\ns_lshl_b32 s11, s11, 10\ns_add_u32 s11, s11, %d" % QF)
    A("buffer_load_dwordx4 %s, v1, s[4:7], s11 offen" % vr(Q, 4))
    A("s_lshl_b32 s10, s10, 10")
    A("s_add_u32 s12, s10, %d" % KF)
    A("s_add_u32 s13, s10, %d" % VF)
    A("s_lshl_b32 s14, s25, 5\ns_add_u32 s14, s14, s24\ns_lshl_b32 s14, s14, 10")
    A("s_add_u32 s15, s12, s14")
    A("s_add_u32 s16, s13, s14")
    A("s_mov_b32 m0, s14")
    A("s_nop 0")
    A("buffer_load_dwordx4 v1, s[4:7], s15 offen lds")
    A("s_add_u32 m0, s14, 0x10000")
    A("s_nop 0")
    A("buffer_load_dwordx4 v1, s[4:7], s16 offen lds")
    A("v_and_b32 v6, 27, v4")
    A("v_cmp_eq_u32 vcc, 16, v6")
    A("v_mov_b32 v7, 0x3f803f80")
    A("s_nop 1")
    A("v_cndmask_b32 v6, 0, v7, vcc")
    for i in range(16):
        A("v_mov_b32 v%d, v6" % (V0 + i))
    A("s_mov_b32 s20, 0xffff\ns_mov_b32 s21, 0xffff")
    A("s_mov_b32 s22, 0")
    A("s_lshl_b32 s26, s25, 15")
    A("s_waitcnt vmcnt(0)")
    A("s_barrier")
    stamp(1)
    A("s_mul_i32 s14, s24, 3\ns_add_u32 s14, s14, 8\ns_lshl_b32 s17, s25, 5\ns_add_u32 s14, s14, s17\ns_lshl_b32 s14, s14, 10")
    A("s_add_u32 s15, s12, s14")
    A("s_add_u32 s16, s13, s14")
    A("s_mov_b32 m0, s14")
    A("s_nop 0")
    for q in range(3):
        A("buffer_load_dwordx4 v1, s[4:7], s15 offen offset:%d lds" % (1024 * q))
    A("s_add_u32 m0, s14, 0x10000")
    A("s_nop 0")
    for q in range(3):
        A("buffer_load_dwordx4 v1, s[4:7], s16 offen offset:%d lds" % (1024 * q))
    A("ds_read_b128 %s, v1" % vr(K0, 4))
    A("s_waitcnt lgkmcnt(0)")
    A("v_mfma_f32_32x32x16_bf16 %s, %s, %s, 0" % (vr(S0, 16), vr(K0, 4), vr(Q, 4)))
    A("s_nop 15")
    A("s_nop 3")
    def max16(dst, S, init=False):
        if init:
            A("v_max3_f32 v%d, v%d, v%d, v%d" % (dst, S, S + 1, S + 2))
            A("v_max_f32 v%d, v%d, v%d" % (dst, dst, S + 3))
            rest = list(range(4, 16))
        else:
            rest = list(range(0, 16))
        for i in range(0, len(rest), 2):
            A("v_max3_f32 v%d, v%d, v%d, v%d" % (dst, dst, S + rest[i], S + rest[i + 1]))
    max16(6, S0, True)
    A.label("L_attn_setneg")
    A("v_mov_b32 v7, v6")
    A("s_nop 1")
    A("v_permlane32_swap_b32 v6, v7")
    A("s_nop 1")
    A("v_max_f32 v6, v6, v7")
    A("v_sub_f32 v%d, 0, v6" % NEG)
    for i in range(1, 16):
        A("v_mov_b32 v%d, v%d" % (NEG + i, NEG))
    A("v_add_u32 v2, s26, v1")
    A("v_lshl_add_u32 v3, v5, 4, v4")
    A("v_lshlrev_b32 v3, 4, v3")
    A("v_add_u32 v3, 0x10000, v3")
    A("v_add_u32 v3, s26, v3")
    for i in range(16):
        A("v_mov_b32 v%d, 0" % (O + i))
    def vread(p, off):
        A("s_mov_b64 exec, s[20:21]")
        A("ds_read_b128 %s, v3 offset:%d" % (vr(VV[p], 4), off))
        A("ds_read_b128 %s, v3 offset:%d" % (vr(VV[p] + 4, 4), off + 512))
        A("s_mov_b64 exec, -1")
    A("ds_read_b128 %s, v2" % vr(K0, 4))
    vread(0, 0)
    A("s_waitcnt lgkmcnt(0)")
    A("v_mfma_f32_32x32x16_bf16 %s, %s, %s, %s" % (vr(S0, 16), vr(K0, 4), vr(Q, 4), vr(NEG, 16)))
    A("ds_read_b128 %s, v2 offset:1024" % vr(K1, 4))
    vread(1, 1024)
    A("s_nop 7")
    def body():
        for p in range(2):
            S = SS[p]
            A("s_waitcnt lgkmcnt(2)")
            A("v_mfma_f32_32x32x16_bf16 %s, %s, %s, %s" % (vr(SS[1 - p], 16), vr(KK[1 - p], 4), vr(Q, 4), vr(NEG, 16)))
            A("ds_read_b128 %s, v2 offset:%d" % (vr(KK[p], 4), 2048 + 1024 * p))
            for i in range(8):
                A("v_exp_f32 v%d, v%d" % (S + i, S + i))
            for i in range(4):
                A("v_cvt_pk_bf16_f32 v%d, v%d, v%d" % (P + i, S + 2 * i, S + 2 * i + 1))
            for i in range(8, 10):
                A("v_exp_f32 v%d, v%d" % (S + i, S + i))
            A("v_mfma_f32_32x32x16_bf16 %s, %s, %s, %s" % (vr(O, 16), vr(VV[p], 4), vr(P, 4), vr(O, 16)))
            for i in range(10, 16):
                A("v_exp_f32 v%d, v%d" % (S + i, S + i))
            for i in range(4):
                A("v_cvt_pk_bf16_f32 v%d, v%d, v%d" % (P + 4 + i, S + 8 + 2 * i, S + 8 + 2 * i + 1))
            if p == 1:
                A("v_add_u32 v2, 2048, v2")
                A("s_sub_u32 s23, s23, 1")
            else:
                A("s_nop 1")
            A("v_mfma_f32_32x32x16_bf16 %s, %s, %s, %s" % (vr(O, 16), vr(VV[p] + 4, 4), vr(P + 4, 4), vr(O, 16)))
            vread(p, 2048 + 1024 * p)
        A("v_add_u32 v3, 2048, v3")
        A("s_cmp_lg_u32 s23, 0")
    A("s_cmp_lg_u32 s22, 0")
    A("s_cbranch_scc0 L_attn_phA")
    A("s_mov_b32 s23, 32")
    A("s_branch L_attn_loopB")
    A.label("L_attn_phA")
    A("s_mov_b32 s23, 3")
    A.label("L_attn_loopA")
    body()
    A("s_cbranch_scc1 L_attn_loopA")
    stamp(2)
    A("s_waitcnt vmcnt(0)")
    A("s_barrier")
    stamp(3)
    A("s_mov_b32 s23, 13")
    A.label("L_attn_loopB")
    body()
    A("s_cbranch_scc1 L_attn_loopB")
    A("s_waitcnt lgkmcnt(0)")
    A("s_nop 15")
    A("s_nop 3")
    A("s_cmp_lg_u32 s22, 0")
    A("s_cbranch_scc1 L_attn_fin")
    A("s_mul_i32 s27, s24, %d" % (9 * 256))
    A("v_lshrrev_b32 v6, 2, v1")
    A("v_add_u32 v6, s27, v6")
    A("v_add_u32 v6, %d, v6" % SCR)
    A("s_cmp_eq_u32 s25, 0")
    A("s_cbranch_scc1 L_attn_lo")
    for i in range(9):
        A("ds_write_b32 v6, v%d offset:%d" % (O + i, 256 * i))
    A("s_waitcnt lgkmcnt(0)")
    A("s_barrier")
    A("s_branch L_%s_end" % name)
    A.label("L_attn_lo")
    A("s_barrier")
    for i in range(9):
        A("ds_read_b32 v%d, v6 offset:%d" % (S0 + i, 256 * i))
    A("s_waitcnt lgkmcnt(0)")
    for i in range(9):
        A("v_add_f32 v%d, v%d, v%d" % (O + i, O + i, S0 + i))
    A("v_cmp_gt_f32 vcc, 0x5f800000, v%d" % (O + 8))
    A("s_nop 3")
    A("s_cmp_eq_u64 vcc, exec")
    A("s_cbranch_scc1 L_attn_fin")
    A("s_mov_b32 s22, 1")
    A("v_mov_b32 v2, v1")
    A("v_mov_b32 v6, 0xff800000")
    A("s_mov_b32 s23, 64")
    A.label("L_attn_maxp")
    A("ds_read_b128 %s, v2" % vr(K0, 4))
    A("s_waitcnt lgkmcnt(0)")
    A("v_mfma_f32_32x32x16_bf16 %s, %s, %s, 0" % (vr(S0, 16), vr(K0, 4), vr(Q, 4)))
    A("s_nop 15")
    A("s_nop 3")
    max16(6, S0, False)
    A("v_add_u32 v2, 1024, v2")
    A("s_sub_u32 s23, s23, 1")
    A("s_cmp_lg_u32 s23, 0")
    A("s_cbranch_scc1 L_attn_maxp")
    A("s_branch L_attn_setneg")
    A.label("L_attn_fin")
    A("v_rcp_f32 v6, v%d" % (O + 8))
    A("s_nop 0")
    for i in range(8):
        A("v_mul_f32 v%d, v%d, v6" % (O + i, O + i))
    for i in range(4):
        A("v_cvt_pk_bf16_f32 v%d, v%d, v%d" % (O + i, O + 2 * i, O + 2 * i + 1))
    A("s_lshl_b32 s10, s9, 5\ns_add_u32 s10, s10, s8\ns_lshl_b32 s10, s10, 10\ns_add_u32 s10, s10, %d" % OF)
    A("buffer_store_dwordx4 %s, v1, s[4:7], s10 offen" % vr(O, 4))
    kernel_end(name, 112)
    return 256, SCR + 8 * 9 * 256

def main():
    A.raw(".amdgcn_target \"amdgcn-amd-amdhsa--gfx950\"")
    A.raw(".text")
    gen_prep()
    g = {}
    g['qkv'] = gen_qkv0()
    g['attn'] = gen_attn()
    g['chain1'] = gen_chain("chain1_kernel", False)
    g['chain2'] = gen_chain("chain2_kernel", True)
    hdr = []
    hdr.append("; @launch kernel=prep_kernel grid=(240,1,1) block=(256,1,1) lds=512")
    seq = ['qkv', 'attn', 'chain1', 'attn', 'chain2']
    for k in seq:
        nwg, lds = g[k]
        hdr.append("; @launch kernel=%s_kernel grid=(%d,1,1) block=(%d,1,1) lds=%d" % (k, nwg, 1024 if k == 'attn' else 256, lds))
    out = "\n".join(hdr) + "\n" + A.text()
    out += ".section .rodata,\"a\"\n"
    for (name, vgpr, sgpr, agpr) in kernels:
        v = (vgpr + 3) // 4 * 4
        out += ".p2align 6\n.amdhsa_kernel %s\n" % name
        out += "  .amdhsa_next_free_vgpr %d\n  .amdhsa_next_free_sgpr %d\n  .amdhsa_accum_offset %d\n" % (v + agpr, sgpr, v)
        out += "  .amdhsa_group_segment_fixed_size 0\n  .amdhsa_kernarg_size 80\n  .amdhsa_user_sgpr_count 2\n"
        out += "  .amdhsa_user_sgpr_kernarg_segment_ptr 1\n  .amdhsa_system_sgpr_workgroup_id_x 1\n.end_amdhsa_kernel\n"
    path = sys.argv[1] if len(sys.argv) > 1 else "cdna_kernels/%s.s" % NAME
    open(path, "w").write(out)
    print("wrote", path, len(out), "bytes")

if __name__ == "__main__":
    main()
```

```python
import sys, struct

NAME = "interleave_layers__softmax_full_mha__dense_activation_mish__prompt"
KB = 1024
_off = 0
def alloc(n):
    global _off
    o = _off
    _off += (n + 4095) // 4096 * 4096
    return o

WQKV_F = alloc(48 * 32 * KB)
WO_F   = alloc(16 * 32 * KB)
W1_F   = alloc(56 * 32 * KB)
W2_F   = alloc(16 * 112 * KB)
CS_QKV = alloc(48 * 128)
CS_W1  = alloc(56 * 128)
B1F    = alloc(56 * 128)
XF     = alloc(64 * 32 * KB)
STATS  = alloc(2048 * 128)
QF     = alloc(32 * 64 * KB)
KF     = alloc(32 * 64 * KB)
VF     = alloc(32 * 64 * KB)
OF     = alloc(64 * 32 * KB)
HF     = alloc(64 * 112 * KB)
X1F    = alloc(64 * 32 * KB)
X2F    = alloc(64 * 32 * KB)
STATS1 = alloc(2048 * 128)
STATS2 = alloc(2048 * 128)
FLAGS  = alloc(3 * 2048)
WS_SIZE = 268435456

def f32(x):
    return "0x%08x" % struct.unpack("<I", struct.pack("<f", x))[0]

LOG2E = 1.4426950408889634

class Asm:
    def __init__(self):
        self.lines = []
    def __call__(self, s):
        for l in s.strip("\n").split("\n"):
            self.lines.append("    " + l.strip())
    def label(self, l):
        self.lines.append(l + ":")
    def raw(self, s):
        self.lines.append(s)
    def text(self):
        return "\n".join(self.lines) + "\n"

A = Asm()
kernels = []

def vr(b, n):
    return "v[%d:%d]" % (b, b + n - 1)

import os
PROF = int(os.environ.get("PROF", "0"))
DIAG = int(os.environ.get("DIAG", "0"))
PRIO = int(os.environ.get("PRIO", "1"))
PROF_OFF = 128 * 1024 * 1024
_kid = [0]
def stamp(i):
    if PROF:
        A("s_memtime s[%d:%d]" % (72 + 2 * i, 73 + 2 * i))
        if i == 0:
            A("s_memrealtime s[92:93]")
def stamp_flush():
    if not PROF:
        return
    A("s_memtime s[88:89]")
    A("s_memrealtime s[94:95]")
    A("s_waitcnt vmcnt(0) lgkmcnt(0)")
    A("s_mov_b64 exec, 1")
    for i in range(24):
        A("v_mov_b32 v%d, s%d" % (8 + i, 72 + i))
    A("s_lshl_b32 s96, s2, 4\ns_add_u32 s96, s96, s3\ns_lshl_b32 s96, s96, 7\ns_add_u32 s96, s96, %d" % (PROF_OFF + _kid[0] * 1024 * 1024))
    A("v_mov_b32 v40, 0")
    for q in range(6):
        A("buffer_store_dwordx4 v[%d:%d], v40, s[4:7], s96 offen offset:%d" % (8 + 4 * q, 11 + 4 * q, 16 * q))
    _kid[0] += 1

def kernel_begin(name):
    A.raw(".globl %s" % name)
    A.raw(".p2align 8")
    A.raw(".type %s,@function" % name)
    A.label(name)

def kernel_end(name, vgpr, sgpr=100, agpr=0):
    A.label("L_%s_fin" % name)
    stamp_flush()
    A.label("L_%s_end" % name)
    A("s_endpgm")
    kernels.append((name, vgpr, sgpr, agpr))

def common_prologue(name, nwg, extra_loads=""):
    A("s_cmp_ge_u32 s2, %d" % nwg)
    A("s_cbranch_scc1 L_%s_end" % name)
    A("s_load_dwordx2 s[4:5], s[0:1], 72")
    if extra_loads:
        A(extra_loads)
    A("v_and_b32 v2, 63, v0")
    A("v_lshrrev_b32 v3, 6, v0")
    A("v_lshlrev_b32 v1, 4, v2")
    A("v_readfirstlane_b32 s3, v3")
    A("s_mov_b32 s6, 0x%x" % WS_SIZE)
    A("s_mov_b32 s7, 0x00020000")
    A("s_waitcnt lgkmcnt(0)")
    stamp(0)

def cross_half_add(va, vt):
    A("v_mov_b32 v%d, v%d" % (vt, va))
    A("s_nop 1")
    A("v_permlane32_swap_b32 v%d, v%d" % (va, vt))
    A("s_nop 1")
    A("v_add_f32 v%d, v%d, v%d" % (va, va, vt))

def stats_of_packed(regs, vsum, vsq, vt0, vt1):
    first = True
    for r in regs:
        A("v_lshlrev_b32 v%d, 16, v%d" % (vt0, r))
        A("v_and_b32 v%d, 0xffff0000, v%d" % (vt1, r))
        if first:
            A("v_add_f32 v%d, v%d, v%d" % (vsum, vt0, vt1))
            A("v_mul_f32 v%d, v%d, v%d" % (vsq, vt0, vt0))
            first = False
        else:
            A("v_add_f32 v%d, v%d, v%d" % (vsum, vsum, vt0))
            A("v_add_f32 v%d, v%d, v%d" % (vsum, vsum, vt1))
            A("v_fmac_f32 v%d, v%d, v%d" % (vsq, vt0, vt0))
        A("v_fmac_f32 v%d, v%d, v%d" % (vsq, vt1, vt1))
    cross_half_add(vsum, vt0)
    cross_half_add(vsq, vt0)

def gen_prep():
    name = "prep_kernel"
    kernel_begin(name)
    common_prologue(name, 240,
        "s_load_dwordx4 s[8:11], s[0:1], 0\n"
        "s_load_dwordx2 s[12:13], s[0:1], 16\n"
        "s_load_dwordx4 s[16:19], s[0:1], 32\n"
        "s_load_dwordx2 s[20:21], s[0:1], 48")
    A("v_and_b32 v4, 31, v2")
    A("v_lshrrev_b32 v5, 5, v2")
    A("s_mov_b32 s27, 0x00020000")
    A("s_cmp_ge_u32 s2, 176")
    A("s_cbranch_scc1 L_prep_x")
    A("s_lshl_b32 s30, s3, 3")
    A("s_cmp_ge_u32 s2, 48")
    A("s_cbranch_scc1 L_prep_r1")
    A("s_mov_b32 s24, s10\ns_mov_b32 s25, s11\ns_mov_b32 s26, %d" % (512 * 1536 * 2))
    A("s_mov_b32 s28, 3072\ns_mov_b32 s29, s2")
    A("s_lshl_b32 s31, s29, 5\ns_add_u32 s31, s31, s30\ns_lshl_b32 s31, s31, 10\ns_add_u32 s31, s31, %d" % WQKV_F)
    A("s_lshl_b32 s32, s29, 7\ns_add_u32 s32, s32, %d" % CS_QKV)
    A("s_mov_b32 s33, 1")
    A("s_branch L_prep_w")
    A.label("L_prep_r1")
    A("s_cmp_ge_u32 s2, 64")
    A("s_cbranch_scc1 L_prep_r2")
    A("s_mov_b32 s24, s12\ns_mov_b32 s25, s13\ns_mov_b32 s26, %d" % (512 * 512 * 2))
    A("s_mov_b32 s28, 1024\ns_sub_u32 s29, s2, 48")
    A("s_lshl_b32 s31, s29, 5\ns_add_u32 s31, s31, s30\ns_lshl_b32 s31, s31, 10\ns_add_u32 s31, s31, %d" % WO_F)
    A("s_mov_b32 s32, 0\ns_mov_b32 s33, 0")
    A("s_branch L_prep_w")
    A.label("L_prep_r2")
    A("s_cmp_ge_u32 s2, 120")
    A("s_cbranch_scc1 L_prep_r3")
    A("s_mov_b32 s24, s16\ns_mov_b32 s25, s17\ns_mov_b32 s26, %d" % (512 * 1792 * 2))
    A("s_mov_b32 s28, 3584\ns_sub_u32 s29, s2, 64")
    A("s_lshl_b32 s31, s29, 5\ns_add_u32 s31, s31, s30\ns_lshl_b32 s31, s31, 10\ns_add_u32 s31, s31, %d" % W1_F)
    A("s_lshl_b32 s32, s29, 7\ns_add_u32 s32, s32, %d" % CS_W1)
    A("s_mov_b32 s33, 2")
    A("s_branch L_prep_w")
    A.label("L_prep_r3")
    A("s_mov_b32 s24, s20\ns_mov_b32 s25, s21\ns_mov_b32 s26, %d" % (1792 * 512 * 2))
    A("s_mov_b32 s28, 1024")
    A("s_sub_u32 s34, s2, 120\ns_lshl_b32 s34, s34, 2\ns_add_u32 s34, s34, s3")
    A("s_and_b32 s29, s34, 15\ns_lshr_b32 s30, s34, 4\ns_lshl_b32 s30, s30, 3")
    A("s_mul_i32 s31, s29, 112\ns_add_u32 s31, s31, s30\ns_lshl_b32 s31, s31, 10\ns_add_u32 s31, s31, %d" % W2_F)
    A("s_mov_b32 s32, 0\ns_mov_b32 s33, 0")
    A.label("L_prep_w")
    A("s_lshl_b32 s34, s28, 2")
    A("v_mul_lo_u32 v6, v5, s34")
    A("s_lshl_b32 s35, s29, 5")
    A("v_add_u32 v7, s35, v4")
    A("v_lshl_add_u32 v10, v7, 1, v6")
    for idx, jj in enumerate((0, 1, 2, 3, 8, 9, 10, 11)):
        if idx == 0:
            continue
        A("s_mul_i32 s34, s28, %d" % jj)
        A("v_add_u32 v%d, s34, v10" % (10 + idx))
    A("s_lshl_b32 s34, s28, 4")
    A("s_mul_i32 s35, s30, s34")
    LD = 64
    for s in range(8):
        for j in range(8):
            A("buffer_load_ushort v%d, v%d, s[24:27], s35 offen" % (LD + 8 * s + j, 10 + j))
        if s < 7:
            A("s_add_u32 s35, s35, s34")
    A("s_add_u32 s36, s31, 4096")
    PK = 32
    for s in range(8):
        A("s_waitcnt vmcnt(%d)" % (56 - 8 * s + s))
        for q in range(4):
            A("v_lshl_or_b32 v%d, v%d, 16, v%d" % (PK + 4 * s + q, LD + 8 * s + 2 * q + 1, LD + 8 * s + 2 * q))
        A("buffer_store_dwordx4 %s, v1, s[4:7], s%d offen offset:%d" % (vr(PK + 4 * s, 4), 31 if s < 4 else 36, (s % 4) * 1024))
    A("s_cmp_eq_u32 s33, 0")
    A("s_cbranch_scc1 L_%s_end" % name)
    for i in range(64):
        A("v_lshlrev_b32 v%d, 16, v%d" % (LD + i, LD + i))
    A("v_add_f32 v20, v%d, v%d" % (LD, LD + 1))
    for i in range(2, 64):
        A("v_add_f32 v20, v20, v%d" % (LD + i))
    cross_half_add(20, 21)
    A("s_lshl_b32 s34, s3, 7")
    A("v_lshlrev_b32 v22, 2, v4")
    A("v_add_u32 v22, s34, v22")
    A("ds_write_b32 v22, v20")
    A("s_waitcnt lgkmcnt(0)")
    A("s_barrier")
    A("s_cmp_lg_u32 s3, 0")
    A("s_cbranch_scc1 L_%s_end" % name)
    A("v_lshlrev_b32 v22, 2, v4")
    A("ds_read_b32 v23, v22")
    A("ds_read_b32 v24, v22 offset:128")
    A("ds_read_b32 v25, v22 offset:256")
    A("ds_read_b32 v26, v22 offset:384")
    A("v_bfe_u32 v27, v4, 2, 1")
    A("v_lshlrev_b32 v27, 4, v27")
    A("v_lshrrev_b32 v28, 3, v4")
    A("v_lshl_add_u32 v27, v28, 2, v27")
    A("v_and_b32 v28, 3, v4")
    A("v_add_u32 v27, v27, v28")
    A("v_lshlrev_b32 v27, 2, v27")
    A("s_waitcnt lgkmcnt(0)")
    A("v_add_f32 v23, v23, v24")
    A("v_add_f32 v25, v25, v26")
    A("v_add_f32 v23, v23, v25")
    A("buffer_store_dword v23, v27, s[4:7], s32 offen")
    A("s_cmp_lg_u32 s33, 2")
    A("s_cbranch_scc1 L_%s_end" % name)
    A("s_mov_b32 s40, s18\ns_mov_b32 s41, s19\ns_mov_b32 s42, %d\ns_mov_b32 s43, 0x00020000" % (1792 * 2))
    A("v_lshlrev_b32 v7, 1, v7")
    A("buffer_load_ushort v29, v7, s[40:43], 0 offen")
    A("s_lshl_b32 s34, s29, 7\ns_add_u32 s34, s34, %d" % B1F)
    A("s_waitcnt vmcnt(0)")
    A("v_lshlrev_b32 v29, 16, v29")
    A("buffer_store_dword v29, v27, s[4:7], s34 offen")
    A("s_branch L_%s_end" % name)
    A.label("L_prep_x")
    A("s_mov_b32 s24, s8\ns_mov_b32 s25, s9\ns_mov_b32 s26, %d" % (2048 * 512 * 2))
    A("s_sub_u32 s29, s2, 176")
    A("s_lshl_b32 s34, s29, 5")
    A("v_add_u32 v6, s34, v4")
    A("v_lshlrev_b32 v7, 10, v6")
    A("v_lshl_add_u32 v7, v5, 3, v7")
    A("s_lshl_b32 s35, s3, 8")
    for s in range(8):
        A("buffer_load_dwordx2 %s, v7, s[24:27], s35 offen offset:%d" % (vr(PK + 4 * s, 2), 32 * s))
        A("buffer_load_dwordx2 %s, v7, s[24:27], s35 offen offset:%d" % (vr(PK + 4 * s + 2, 2), 32 * s + 16))
    A("s_lshl_b32 s31, s29, 5\ns_lshl_b32 s34, s3, 3\ns_add_u32 s31, s31, s34\ns_lshl_b32 s31, s31, 10\ns_add_u32 s31, s31, %d" % XF)
    A("s_add_u32 s36, s31, 4096")
    A("v_lshlrev_b32 v8, 4, v4")
    A("s_lshl_b32 s37, s29, 3\ns_lshl_b32 s38, s3, 1\ns_add_u32 s37, s37, s38\ns_lshl_b32 s37, s37, 9\ns_add_u32 s37, s37, %d" % STATS)
    A("s_waitcnt vmcnt(0)")
    for s in range(8):
        A("buffer_store_dwordx4 %s, v1, s[4:7], s%d offen offset:%d" % (vr(PK + 4 * s, 4), 31 if s < 4 else 36, (s % 4) * 1024))
    for q in range(4):
        stats_of_packed([PK + 8 * q + i for i in range(8)], 20 + 2 * q, 21 + 2 * q, 12, 13)
        A("buffer_store_dwordx2 %s, v8, s[4:7], s37 offen offset:%d" % (vr(20 + 2 * q, 2), 512 * (q >> 1) + 8 * (q & 1)))
    kernel_end(name, 128)

class St:
    def __init__(self):
        self.n = {'vm': 0, 'lg': 0}
        self.tag = {}
    def copy(self):
        o = St(); o.n = dict(self.n); o.tag = dict(self.tag); return o

def I(text, cls=None, tag=None):
    return ('i', text, cls, tag)
def W(cls, tag):
    return ('w', cls, tag)

def emit(seq, st):
    for it in seq:
        if it[0] == 'i':
            _, text, cls, tag = it
            A(text)
            if cls:
                if tag is not None:
                    st.tag[tag] = st.n[cls]
                st.n[cls] += 1
        else:
            _, cls, tag = it
            n = st.n[cls] - st.tag[tag] - 1
            if cls == 'vm':
                A("s_waitcnt vmcnt(%d)" % min(n, 63))
            else:
                A("s_waitcnt lgkmcnt(%d)" % min(n, 15))

def L(txt):
    return [I(t.strip()) for t in txt.strip().split("\n")]

def s_cross_half_add(va, vt):
    return L("v_mov_b32 v%d, v%d\ns_nop 1\nv_permlane32_swap_b32 v%d, v%d\ns_nop 1\nv_add_f32 v%d, v%d, v%d" % (vt, va, va, vt, va, va, vt))


NBUF = int(os.environ.get("NBUF", "4"))
BUFSZ = 32768
X1R = 216
NVALL = 224

def decode_wg():
    A("v_and_b32 v4, 31, v2")
    A("v_lshrrev_b32 v5, 5, v2")
    A("s_and_b32 s61, s2, 7\ns_lshr_b32 s62, s2, 3\ns_lshr_b32 s60, s61, 1\ns_lshl_b32 s60, s60, 2\ns_and_b32 s63, s62, 3\ns_add_u32 s60, s60, s63\ns_lshr_b32 s62, s62, 2\ns_and_b32 s61, s61, 1")

_lab = [0]
def newlab(p):
    _lab[0] += 1
    return "L_%s_%d" % (p, _lab[0])

def publish(phase):
    A("s_waitcnt vmcnt(0)")
    A("s_barrier")
    l = newlab("pub")
    A("s_cmp_lg_u32 s3, 0")
    A("s_cbranch_scc1 %s" % l)
    A("s_lshl_b32 s64, s60, 7\ns_lshl_b32 s65, s61, 5\ns_add_u32 s64, s64, s65\ns_lshl_b32 s65, s62, 2\ns_add_u32 s64, s64, s65\ns_add_u32 s64, s64, %d" % (FLAGS + phase * 2048))
    A("v_mov_b32 v2, 0")
    A("v_mov_b32 v3, 1")
    A("s_mov_b64 exec, 1")
    A("buffer_store_dword v3, v2, s[4:7], s64 offen sc1")
    A("s_mov_b64 exec, -1")
    A.label(l)

def await_flags(phase, mask):
    l = newlab("aw"); lp = newlab("poll"); ld = newlab("done")
    A("s_cmp_lg_u32 s3, 0")
    A("s_cbranch_scc1 %s" % l)
    A("s_lshl_b32 s64, s60, 7\ns_add_u32 s64, s64, %d" % (FLAGS + phase * 2048))
    A("v_lshrrev_b32 v2, 2, v1")
    A("v_and_b32 v2, 60, v2")
    A("s_mov_b32 s66, 0x20000")
    A.label(lp)
    A("buffer_load_dword v3, v2, s[4:7], s64 offen sc1")
    A("s_waitcnt vmcnt(0)")
    A("v_cmp_eq_u32 vcc, 1, v3")
    A("s_nop 3")
    A("s_and_b32 s65, vcc_lo, 0x%x" % mask)
    A("s_cmp_eq_u32 s65, 0x%x" % mask)
    A("s_cbranch_scc1 %s" % ld)
    A("s_sleep 1")
    A("s_sub_u32 s66, s66, 1")
    A("s_cmp_lg_u32 s66, 0")
    A("s_cbranch_scc1 %s" % lp)
    A.label(ld)
    A.label(l)
    A("s_barrier")

def bpre_setup(kind):
    WOFF = WQKV_F if kind == 'qkv' else W1_F
    NH = 6 if kind == 'qkv' else 7
    A("s_mul_i32 s70, s61, %d\ns_add_u32 s70, s70, s62\ns_lshl_b32 s70, s70, 2\ns_add_u32 s70, s70, s3\ns_lshl_b32 s70, s70, 15\ns_add_u32 s70, s70, %d" % (NH, WOFF))
def bpre_chunk(c):
    seq = []
    for q in range(4):
        s_ = 4 * c + q
        seq.append(I("buffer_load_dwordx4 a[%d:%d], v1, s[4:7], s70 offen offset:%d" % (4 * s_, 4 * s_ + 3, 1024 * q), 'vm', ('B', c)))
    seq += L("s_add_u32 s70, s70, 4096")
    return seq

class Ring:
    def __init__(self, kind, st, lsc=""):
        self.kind = kind; self.st = st; self.lsc = lsc
        self.KC = 8
        self.KS = 32 if kind == 'wo' else 112
        self.NC = self.KS // self.KC
        self.NPRE = min(NBUF - 1, self.NC)
    def setup(self):
        kind, KS = self.kind, self.KS
        ACT = OF if kind == 'wo' else HF
        WOFF = WO_F if kind == 'wo' else W2_F
        A("s_lshr_b32 s44, s62, 2\ns_lshl_b32 s44, s44, 1\ns_lshl_b32 s45, s60, 2\ns_add_u32 s44, s44, s45")
        A("s_and_b32 s45, s62, 3\ns_lshl_b32 s46, s61, 2\ns_add_u32 s45, s45, s46\ns_lshl_b32 s45, s45, 1")
        A("s_and_b32 s46, s3, 1")
        A("s_mov_b32 s47, %d\ns_mov_b32 s48, %d" % (ACT, WOFF))
        A("s_cmp_lt_u32 s3, 2")
        A("s_cselect_b32 s49, s44, s45")
        A("s_cselect_b32 s47, s47, s48")
        A("s_add_u32 s49, s49, s46")
        A("s_mul_i32 s49, s49, %d" % (KS * 1024))
        A("s_add_u32 s50, s47, s49")
        A("s_add_u32 s51, s50, 4096")
        A("s_lshl_b32 s52, s3, 13")
        A("s_add_u32 s53, s52, 4096")
    def dma(self, c):
        bo = (c % NBUF) * BUFSZ
        seq = []
        for u in range(2):
            seq += L("s_add_u32 m0, s%d, %d\ns_nop 0" % (52 + u, bo))
            for q in range(4):
                seq.append(I("buffer_load_dwordx4 v1, s[4:7], s%d offen offset:%d%s lds" % (50 + u, 1024 * q, self.lsc), 'vm', ('D', self.kind, c)))
        seq += L("s_add_u32 s50, s50, %d\ns_add_u32 s51, s51, %d" % (self.KC * 1024, self.KC * 1024))
        return seq
    def pre(self, which):
        seq = []
        for c in range(self.NPRE):
            seq += self.dma(c)
        if which == 'all':
            emit(seq, self.st)
        else:
            l = newlab("pre")
            A("s_cmp_%s_u32 s3, 2" % ("lt" if which == 'w' else "ge"))
            A("s_cbranch_scc1 %s" % l)
            emit(seq, self.st if which == 'a' else self.st.copy())
            A.label(l)
    def body(self, xin, xout, stats_out, sc="", side=None):
        kind, st, KC, NC = self.kind, self.st, self.KC, self.NC
        side = side or {}
        A("s_lshr_b32 s16, s3, 1\ns_and_b32 s17, s3, 1")
        A("s_add_u32 s18, s16, s44\ns_add_u32 s19, s17, s45")
        ACC = 16; FR = 32; FSET = 8; NSET = 3; XO = 56
        A("s_lshl_b32 s20, s18, 5\ns_lshl_b32 s21, s19, 1\ns_add_u32 s20, s20, s21\ns_lshl_b32 s20, s20, 10")
        if xin is not None:
            A("s_add_u32 s21, s20, %d" % xin)
            emit([I("buffer_load_dwordx4 %s, v1, s[4:7], s21 offen" % vr(XO, 4), 'vm'),
                  I("buffer_load_dwordx4 %s, v1, s[4:7], s21 offen offset:1024" % vr(XO + 4, 4), 'vm', 'xo')], st)
        A("s_lshl_b32 s26, s16, 13")
        A("v_add_u32 v10, s26, v1")
        A("s_lshl_b32 s26, s17, 13\ns_add_u32 s26, s26, %d" % (2 * KC * 1024))
        A("v_add_u32 v11, s26, v1")
        A("v_add_u32 v12, 0x10000, v10")
        A("v_add_u32 v13, 0x10000, v11")
        def reads(c, s_, k):
            o = (c % NBUF) * BUFSZ + s_ * 1024
            A("ds_read_b128 %s, v%d offset:%d" % (vr(FR + k * FSET, 4), 10 if o < 65536 else 12, o % 65536))
            A("ds_read_b128 %s, v%d offset:%d" % (vr(FR + k * FSET + 4, 4), 11 if o < 65536 else 13, o % 65536))
        for c in range(NC):
            emit([W('vm', ('D', kind, c))], st)
            A("s_barrier")
            if c + NBUF - 1 < NC:
                emit(self.dma(c + NBUF - 1), st)
            reads(c, 0, 0)
            reads(c, 1, 1)
            sd = list(side.get(c, []))
            for s_ in range(KC):
                k = s_ % NSET
                if s_ + 2 < KC:
                    reads(c, s_ + 2, (s_ + 2) % NSET)
                A("s_waitcnt lgkmcnt(%d)" % (min(KC - 1 - s_, 2) * 2))
                A("v_mfma_f32_32x32x16_bf16 %s, %s, %s, %s" % (vr(ACC, 16), vr(FR + k * FSET + 4, 4), vr(FR + k * FSET, 4), "0" if (c == 0 and s_ == 0) else vr(ACC, 16)))
                take = -(-len(sd) // (KC - s_))
                emit(sd[:take], st)
                del sd[:take]
        A("s_nop 15")
        A("s_nop 3")
        T0, T1 = 6, 7
        if xin is not None:
            emit([W('vm', 'xo')], st)
        XS = XO if xin is not None else X1R
        acc = ACC
        for i in range(8):
            A("v_lshlrev_b32 v%d, 16, v%d" % (T0, XS + i))
            A("v_and_b32 v%d, 0xffff0000, v%d" % (T1, XS + i))
            A("v_add_f32 v%d, v%d, v%d" % (acc + 2 * i, acc + 2 * i, T0))
            A("v_add_f32 v%d, v%d, v%d" % (acc + 2 * i + 1, acc + 2 * i + 1, T1))
        for i in range(8):
            A("v_cvt_pk_bf16_f32 v%d, v%d, v%d" % (X1R + i, acc + 2 * i, acc + 2 * i + 1))
        if kind == 'w2f':
            A("s_mov_b32 s42, %d\ns_mov_b32 s43, 0x00020000" % (2048 * 512 * 2))
            A("s_lshl_b32 s30, s18, 5")
            A("v_add_u32 v%d, s30, v4" % T0)
            A("v_lshlrev_b32 v%d, 10, v%d" % (T0, T0))
            A("v_lshl_add_u32 v%d, v5, 3, v%d" % (T0, T0))
            A("s_lshl_b32 s31, s19, 6")
            for g in range(4):
                A("buffer_store_dwordx2 %s, v%d, s[40:43], s31 offen offset:%d" % (vr(X1R + 2 * g, 2), T0, 16 * g))
        else:
            A("s_add_u32 s21, s20, %d" % xout)
            emit([I("buffer_store_dwordx4 %s, v1, s[4:7], s21 offen%s" % (vr(X1R, 4), sc), 'vm'),
                  I("buffer_store_dwordx4 %s, v1, s[4:7], s21 offen offset:1024%s" % (vr(X1R + 4, 4), sc), 'vm')], st)
            stats_of_packed([X1R + i for i in range(8)], XO + 8, XO + 9, T0, T1)
            A("v_lshlrev_b32 v%d, 4, v4" % T0)
            A("s_lshl_b32 s30, s18, 3\ns_lshr_b32 s31, s19, 1\ns_add_u32 s30, s30, s31\ns_lshl_b32 s30, s30, 9\ns_and_b32 s31, s19, 1\ns_lshl_b32 s31, s31, 3\ns_add_u32 s31, s31, s30\ns_add_u32 s31, s31, %d" % stats_out)
            emit([I("buffer_store_dwordx2 %s, v%d, s[4:7], s31 offen%s" % (vr(XO + 8, 2), T0, sc), 'vm')], st)

def phase_res(kind, xin, stats_in, st, sync=None, sc="", lsc="", endlab=None, pre_epi=None):
    NH = 6 if kind == 'qkv' else 7
    tagname = newlab(kind)
    A("s_lshl_b32 s8, s60, 2")
    A("s_mul_i32 s9, s61, %d\ns_add_u32 s9, s9, s62\ns_lshl_b32 s9, s9, 2" % NH)
    A("s_add_u32 s19, s9, s3")
    ACC = 16; AF = 80; CSR = 112; BR = 128; STF = 144; TMP = 152; STL = 168; TK = 184
    PD = int(os.environ.get("PD", "2"))
    A("s_add_u32 s10, s8, s3\ns_lshl_b32 s10, s10, 15\ns_add_u32 s10, s10, %d" % xin)
    A("s_lshl_b32 s12, s3, 15")
    def a_loads(c):
        seq = [I("s_add_u32 m0, s12, %d" % (c * 4096)), I("s_nop 0")]
        for q in range(4):
            seq.append(I("buffer_load_dwordx4 v1, s[4:7], s10 offen offset:%d%s lds" % (1024 * q, lsc), 'vm', ('A', c)))
        seq += L("s_add_u32 s10, s10, 4096")
        return seq
    cs_l = []
    cs_l += L("v_lshlrev_b32 v14, 6, v5\ns_lshl_b32 s22, s19, 7\ns_add_u32 s22, s22, %d" % (CS_QKV if kind == 'qkv' else CS_W1))
    for q in range(4):
        cs_l.append(I("buffer_load_dwordx4 %s, v14, s[4:7], s22 offen offset:%d" % (vr(CSR + 4 * q, 4), 16 * q), 'vm', 'misc'))
    if kind == 'qkv':
        cs_l += L("v_bfe_u32 v15, v4, 2, 1\nv_lshlrev_b32 v15, 4, v15\nv_lshrrev_b32 v3, 3, v4\nv_lshl_add_u32 v15, v3, 2, v15\nv_and_b32 v3, 3, v4\nv_add_u32 v15, v15, v3\nv_lshlrev_b32 v15, 2, v15")
        cs_l.append(I("buffer_load_dword v%d, v15, s[4:7], s22 offen" % BR, 'vm', 'misc'))
    else:
        cs_l += L("s_lshl_b32 s23, s19, 7\ns_add_u32 s23, s23, %d" % B1F)
        for q in range(4):
            cs_l.append(I("buffer_load_dwordx4 %s, v14, s[4:7], s23 offen offset:%d" % (vr(BR + 4 * q, 4), 16 * q), 'vm', 'misc'))
    st_l = L("s_add_u32 s21, s8, s3\ns_lshl_b32 s21, s21, 12\ns_add_u32 s21, s21, %d" % stats_in)
    for q in range(4):
        st_l.append(I("buffer_load_dwordx4 %s, v1, s[4:7], s21 offen offset:%d%s" % (vr(STL + 4 * q, 4), 1024 * q, lsc), 'vm', 'misc'))
    misc = st_l + cs_l
    if sync is None:
        bpre_setup(kind)
        def chunk_loads(c):
            return a_loads(c) + bpre_chunk(c)
    else:
        sync()
        chunk_loads = a_loads
        PD = int(os.environ.get("PD2", "4"))
    for c in range(PD):
        emit(chunk_loads(c), st)
    A("v_add_u32 v11, 0x10000, v1")
    SCR = 131072
    A("s_lshl_b32 s26, s3, 8")
    A("v_lshlrev_b32 v12, 3, v4")
    A("v_add_u32 v13, %d, v12" % SCR)
    A("v_add_u32 v12, s26, v13")
    def stats_stream():
        seq = [W('vm', 'misc')]
        b = STL
        for p in range(1, 8):
            seq.append(I("v_add_f32 v%d, v%d, v%d" % (b, b, b + 2 * p)))
            seq.append(I("v_add_f32 v%d, v%d, v%d" % (b + 1, b + 1, b + 2 * p + 1)))
        seq += s_cross_half_add(b, b + 2)
        seq += s_cross_half_add(b + 1, b + 2)
        seq += L("v_mul_f32 v%d, %s, v%d" % (b, f32(1.0 / 512), b))
        seq += L("v_mul_f32 v%d, %s, v%d" % (b + 1, f32(1.0 / 512), b + 1))
        seq += L("v_fma_f32 v%d, -v%d, v%d, v%d" % (b + 1, b, b, b + 1))
        seq += L("v_max_f32 v%d, 0, v%d" % (b + 1, b + 1))
        seq += L("v_add_f32 v%d, %s, v%d" % (b + 1, f32(1e-5), b + 1))
        seq += L("v_rsq_f32 v%d, v%d\ns_nop 0" % (b + 1, b + 1))
        seq += L("v_mul_f32 v%d, v%d, v%d" % (b, b, b + 1))
        seq.append(I("ds_write_b64 v12, %s" % vr(b, 2), 'lg', 'sw'))
        return seq
    def run(orient, epi, st):
        def rd(g):
            seq = []
            c = g >> 2
            if g % 4 == 0:
                seq.append(W('vm', ('A', c)))
                if c == 7:
                    seq.append(W('lg', 'sw'))
                seq.append(I("s_barrier"))
                if c == 7 and orient == 1:
                    for t in range(4):
                        seq.append(I("ds_read_b64 %s, v13 offset:%d" % (vr(STF + 2 * t, 2), 256 * t), 'lg', 'sr'))
            for mi in range(4):
                o = mi * 32768 + g * 1024
                seq.append(I("ds_read_b128 %s, v%d offset:%d" % (vr(AF + 16 * (g & 1) + 4 * mi, 4), 1 if o < 65536 else 11, o % 65536), 'lg', ('R', g, mi)))
            return seq
        side = {}
        for c in range(8):
            side[c] = chunk_loads(c + PD) if c + PD < 8 else []
        side[1] = side[1] + list(misc)
        side[5] = side[5] + stats_stream()
        emit(rd(0), st)
        for g in range(32):
            c = g >> 2
            seq = []
            if g + 1 < 32:
                seq += rd(g + 1)
            if g % 4 == 0:
                seq.append(W('vm', ('B', c)))
            sd = side.get(c, [])
            for mi in range(4):
                seq.append(W('lg', ('R', g, mi)))
                acc = ACC + 16 * mi
                a_, b_ = "a[%d:%d]" % (4 * g, 4 * g + 3), vr(AF + 16 * (g & 1) + 4 * mi, 4)
                if orient == 2:
                    a_, b_ = b_, a_
                seq.append(I("v_mfma_f32_32x32x16_bf16 %s, %s, %s, %s" % (vr(acc, 16), a_, b_, "0" if g == 0 else vr(acc, 16))))
                slot = (g % 4) * 4 + mi
                take = -(-len(sd) // (14 - slot)) if slot < 14 else len(sd)
                seq += sd[:take]
                del sd[:take]
            emit(seq, st)
        if pre_epi is not None:
            pre_epi()
        A("s_nop 15")
        A("s_nop 3")
        for mi in range(4):
            emit(epi(mi), st)
    T0, T1, T2, T3 = 6, 7, 8, 9
    if kind == 'qkv':
        A("s_cmp_ge_u32 s9, 32")
        A("s_cbranch_scc1 %s_v" % tagname)
        A("s_cmp_lt_u32 s9, 16")
        A("s_cselect_b32 s27, %s, 1.0" % f32(0.25 * LOG2E))
        A("s_mov_b32 s28, %d\ns_mov_b32 s29, %d" % (QF, KF - 32 * 64 * 1024))
        A("s_cselect_b32 s28, s28, s29")
        A("s_lshl_b32 s30, s19, 7\ns_add_u32 s30, s30, s8\ns_lshl_b32 s30, s30, 10\ns_add_u32 s30, s30, s28\ns_add_u32 s31, s30, 65536")
        def epi_qk(mi):
            acc = ACC + 16 * mi
            seq = [W('lg', 'sr')] + L("v_mul_f32 v%d, s27, v%d\nv_mul_f32 v%d, s27, v%d" % (T0, STF + 2 * mi + 1, T1, STF + 2 * mi))
            for i in range(0, 16, 2):
                seq += L("v_pk_mul_f32 %s, %s, %s op_sel:[0,0] op_sel_hi:[1,0]" % (vr(acc + i, 2), vr(acc + i, 2), vr(T0, 2)))
                seq += L("v_pk_fma_f32 %s, %s, %s, %s op_sel:[1,0,0] op_sel_hi:[1,1,1] neg_lo:[1,0,0] neg_hi:[1,0,0]" % (vr(acc + i, 2), vr(T0, 2), vr(CSR + i, 2), vr(acc + i, 2)))
            for i in range(8):
                seq += L("v_cvt_pk_bf16_f32 v%d, v%d, v%d" % (acc + i, acc + 2 * i, acc + 2 * i + 1))
            seq.append(I("buffer_store_dwordx4 %s, v1, s[4:7], s30 offen offset:%d" % (vr(acc, 4), 1024 * mi), 'vm'))
            seq.append(I("buffer_store_dwordx4 %s, v1, s[4:7], s31 offen offset:%d" % (vr(acc + 4, 4), 1024 * mi), 'vm'))
            return seq
        run(1, epi_qk, st.copy())
        A("s_branch %s" % endlab)
        A.label("%s_v" % tagname)
        A("v_lshlrev_b32 v%d, 5, v5" % T1)
        A("v_add_u32 v%d, %d, v%d" % (T1, SCR, T1))
        A("v_lshrrev_b32 v%d, 4, v4" % T2)
        A("v_lshlrev_b32 v%d, 16, v%d" % (T2, T2))
        A("v_and_b32 v%d, 15, v4" % T3)
        A("v_lshl_add_u32 v%d, v5, 4, v%d" % (T3, T3))
        A("v_lshl_add_u32 v%d, v%d, 4, v%d" % (T2, T3, T2))
        A("s_sub_u32 s30, s19, 32\ns_lshl_b32 s30, s30, 7\ns_add_u32 s30, s30, s8\ns_lshl_b32 s30, s30, 10\ns_add_u32 s30, s30, %d" % VF)
        def epi_v(mi):
            acc = ACC + 16 * mi
            seq = []
            for g in range(4):
                seq.append(I("ds_read_b128 %s, v%d offset:%d" % (vr(TK + 8 * g, 4), T1, 256 * mi + 64 * g), 'lg'))
                seq.append(I("ds_read_b128 %s, v%d offset:%d" % (vr(TK + 8 * g + 4, 4), T1, 256 * mi + 64 * g + 16), 'lg', ('tk', mi)))
            seq.append(W('lg', ('tk', mi)))
            for i in range(16):
                g, r = i >> 2, i & 3
                mr = TK + 8 * g + 2 * r
                seq += L("v_mul_f32 v%d, v%d, v%d" % (acc + i, acc + i, mr + 1))
                seq += L("v_fma_f32 v%d, -v%d, v%d, v%d" % (acc + i, mr, BR, acc + i))
            for i in range(8):
                seq += L("v_cvt_pk_bf16_f32 v%d, v%d, v%d" % (acc + i, acc + 2 * i, acc + 2 * i + 1))
            seq.append(I("buffer_store_dwordx4 %s, v%d, s[4:7], s30 offen offset:%d" % (vr(acc, 4), T2, 1024 * mi), 'vm'))
            seq.append(I("buffer_store_dwordx4 %s, v%d, s[4:7], s30 offen offset:%d" % (vr(acc + 4, 4), T2, 1024 * mi + 512), 'vm'))
            return seq
        run(2, epi_v, st.copy())
    else:
        A("s_mul_i32 s30, s8, 112\ns_lshl_b32 s31, s19, 1\ns_add_u32 s30, s30, s31\ns_lshl_b32 s30, s30, 10\ns_add_u32 s30, s30, %d" % HF)
        A("s_mov_b32 s32, %s\ns_mov_b32 s33, %s\ns_mov_b32 s34, 2.0\ns_mov_b32 s35, 2.0\ns_mov_b32 s36, -2.0\ns_mov_b32 s37, -2.0" % (f32(LOG2E), f32(LOG2E)))
        def epi_w1(mi):
            acc = ACC + 16 * mi
            b = STF + 2 * mi
            seq = [W('lg', 'sr')]
            for i0 in range(0, 16, 8):
                tt = [TMP + 4 * k for k in range(4)]
                for k in range(4):
                    i = i0 + 2 * k
                    seq += L("v_pk_fma_f32 %s, %s, %s, %s op_sel:[0,0,0] op_sel_hi:[0,1,1] neg_lo:[1,0,0] neg_hi:[1,0,0]" % (vr(tt[k], 2), vr(b, 2), vr(CSR + i, 2), vr(BR + i, 2)))
                    seq += L("v_pk_fma_f32 %s, %s, %s, %s op_sel:[0,1,0] op_sel_hi:[1,1,1]" % (vr(acc + i, 2), vr(acc + i, 2), vr(b, 2), vr(tt[k], 2)))
                    seq += L("v_pk_mul_f32 %s, %s, s[32:33]" % (vr(tt[k], 2), vr(acc + i, 2)))
                for k in range(4):
                    seq += L("v_exp_f32 v%d, v%d\nv_exp_f32 v%d, v%d" % (tt[k], tt[k], tt[k] + 1, tt[k] + 1))
                for k in range(4):
                    seq += L("v_pk_add_f32 %s, %s, s[34:35]" % (vr(tt[k] + 2, 2), vr(tt[k], 2)))
                    seq += L("v_pk_fma_f32 %s, %s, %s, s[34:35]" % (vr(tt[k], 2), vr(tt[k], 2), vr(tt[k] + 2, 2)))
                for k in range(4):
                    seq += L("v_rcp_f32 v%d, v%d\nv_rcp_f32 v%d, v%d" % (tt[k], tt[k], tt[k] + 1, tt[k] + 1))
                for k in range(4):
                    i = i0 + 2 * k
                    seq += L("v_pk_mul_f32 %s, %s, %s" % (vr(tt[k], 2), vr(acc + i, 2), vr(tt[k], 2)))
                for k in range(4):
                    i = i0 + 2 * k
                    seq += L("v_pk_fma_f32 %s, %s, s[36:37], %s" % (vr(acc + i, 2), vr(tt[k], 2), vr(acc + i, 2)))
            for i in range(8):
                seq += L("v_cvt_pk_bf16_f32 v%d, v%d, v%d" % (acc + i, acc + 2 * i, acc + 2 * i + 1))
            seq.append(I("buffer_store_dwordx4 %s, v1, s[4:7], s30 offen%s" % (vr(acc, 4), sc), 'vm'))
            seq.append(I("buffer_store_dwordx4 %s, v1, s[4:7], s30 offen offset:1024%s" % (vr(acc + 4, 4), sc), 'vm'))
            seq.append(I("s_add_u32 s30, s30, %d" % (112 * 1024)))
            return seq
        run(1, epi_w1, st)

def gen_qkv0():
    name = "qkv_kernel"
    kernel_begin(name)
    common_prologue(name, 256)
    decode_wg()
    A("s_cmp_ge_u32 s62, 6")
    A("s_cbranch_scc1 L_%s_end" % name)
    phase_res('qkv', XF, STATS, St(), endlab="L_%s_fin" % name)
    kernel_end(name, NVALL, agpr=128)
    return 256, 131072 + 1024

def gen_chain(name, last):
    kernel_begin(name)
    common_prologue(name, 256, "s_load_dwordx2 s[40:41], s[0:1], 56" if last else "")
    decode_wg()
    xin = X2F if last else XF
    SC = " sc1"
    LSC = os.environ.get("LSC", " sc1")
    st = St()
    r1 = Ring('wo', st)
    r1.setup()
    r1.pre('all')
    bpre_setup('w1')
    r1.body(xin, X1F, STATS1, sc=SC, side={c: bpre_chunk(2 * c) + bpre_chunk(2 * c + 1) for c in range(4)})
    stamp(1)
    publish(0)
    stamp(2)
    st2 = St(); st2.tag = {k: -1 for k in st.tag}
    r2 = Ring('w2f' if last else 'w2', st2, lsc=LSC)
    lskip = newlab("skipw1"); ljoin = newlab("joinw1")
    A("s_cmp_ge_u32 s62, 7")
    A("s_cbranch_scc1 %s" % lskip)
    def pre_epi():
        stamp(4)
        A("s_barrier")
        r2.setup()
        r2.pre('w')
    def aw0():
        await_flags(0, 0xffff)
        stamp(3)
    phase_res('w1', X1F, STATS1, st2, sync=aw0, sc=SC, lsc=LSC, pre_epi=pre_epi)
    stamp(5)
    publish(1)
    A("s_branch %s" % ljoin)
    A.label(lskip)
    r2.setup()
    r2.pre('w')
    A.label(ljoin)
    stamp(6)
    await_flags(1, 0x7f7f)
    stamp(7)
    st3 = St()
    r2.st = st3
    r2.pre('a')
    side = {}
    if not last:
        bpre_setup('qkv')
        side = {6 + c: bpre_chunk(c) for c in range(8)}
    r2.body(None, X2F, STATS2, sc=SC, side=side)
    if not last:
        publish(2)
        A("s_cmp_ge_u32 s62, 6")
        A("s_cbranch_scc1 L_%s_end" % name)
        st4 = St(); st4.tag = {k: -1 for k in st3.tag}
        phase_res('qkv', X2F, STATS2, st4, sync=lambda: await_flags(2, 0xffff), lsc=LSC, endlab="L_%s_fin" % name)
    kernel_end(name, NVALL, agpr=128)
    return 256, 131072 + 1024

def gen_attn():
    name = "attn_kernel"
    kernel_begin(name)
    common_prologue(name, 256)
    A("v_and_b32 v4, 31, v2")
    A("v_lshrrev_b32 v5, 5, v2")
    A("s_and_b32 s8, s2, 7\ns_lshr_b32 s9, s2, 3\ns_lshl_b32 s8, s8, 2\ns_and_b32 s10, s9, 3\ns_add_u32 s8, s8, s10\ns_lshr_b32 s9, s9, 2")
    A("s_and_b32 s24, s3, 7\ns_lshr_b32 s25, s3, 3")
    A("s_cmp_lg_u32 s2, 0")
    A("s_cbranch_scc1 L_attn_nz")
    A("s_cmp_ge_u32 s3, 6")
    A("s_cbranch_scc1 L_attn_nz")
    A("v_mov_b32 v8, 0\nv_mov_b32 v9, 0\nv_mov_b32 v10, 0\nv_mov_b32 v11, 0")
    A("s_lshl_b32 s26, s3, 10\ns_add_u32 s26, s26, %d" % FLAGS)
    A("buffer_store_dwordx4 v[8:11], v1, s[4:7], s26 offen")
    A("s_nop 1")
    A.label("L_attn_nz")
    A("s_lshl_b32 s9, s9, 3\ns_add_u32 s9, s9, s24")
    Q = 8; NEG = 12; S0 = 28; S1 = 44; P = 60; K0 = 68; K1 = 72; V0 = 76; V1 = 84; O = 92
    SS = (S0, S1); KK = (K0, K1); VV = (V0, V1)
    SCR = 131072 + 4096
    A("s_lshl_b32 s10, s8, 6\ns_add_u32 s11, s10, s9\ns_lshl_b32 s11, s11, 10\ns_add_u32 s11, s11, %d" % QF)
    A("buffer_load_dwordx4 %s, v1, s[4:7], s11 offen" % vr(Q, 4))
    A("s_lshl_b32 s10, s10, 10")
    A("s_add_u32 s12, s10, %d" % KF)
    A("s_add_u32 s13, s10, %d" % VF)
    A("s_lshl_b32 s14, s25, 5\ns_add_u32 s14, s14, s24\ns_lshl_b32 s14, s14, 10")
    A("s_add_u32 s15, s12, s14")
    A("s_add_u32 s16, s13, s14")
    A("s_mov_b32 m0, s14")
    A("s_nop 0")
    A("buffer_load_dwordx4 v1, s[4:7], s15 offen lds")
    A("s_add_u32 m0, s14, 0x10000")
    A("s_nop 0")
    A("buffer_load_dwordx4 v1, s[4:7], s16 offen lds")
    A("v_and_b32 v6, 27, v4")
    A("v_cmp_eq_u32 vcc, 16, v6")
    A("v_mov_b32 v7, 0x3f803f80")
    A("s_nop 1")
    A("v_cndmask_b32 v6, 0, v7, vcc")
    for i in range(16):
        A("v_mov_b32 v%d, v6" % (V0 + i))
    A("s_mov_b32 s20, 0xffff\ns_mov_b32 s21, 0xffff")
    A("s_mov_b32 s22, 0")
    A("s_lshl_b32 s26, s25, 15")
    A("s_waitcnt vmcnt(0)")
    A("s_barrier")
    stamp(1)
    A("s_mul_i32 s14, s24, 3\ns_add_u32 s14, s14, 8\ns_lshl_b32 s17, s25, 5\ns_add_u32 s14, s14, s17\ns_lshl_b32 s14, s14, 10")
    A("s_add_u32 s15, s12, s14")
    A("s_add_u32 s16, s13, s14")
    A("s_mov_b32 m0, s14")
    A("s_nop 0")
    for q in range(3):
        A("buffer_load_dwordx4 v1, s[4:7], s15 offen offset:%d lds" % (1024 * q))
    A("s_add_u32 m0, s14, 0x10000")
    A("s_nop 0")
    for q in range(3):
        A("buffer_load_dwordx4 v1, s[4:7], s16 offen offset:%d lds" % (1024 * q))
    A("ds_read_b128 %s, v1" % vr(K0, 4))
    A("s_waitcnt lgkmcnt(0)")
    A("v_mfma_f32_32x32x16_bf16 %s, %s, %s, 0" % (vr(S0, 16), vr(K0, 4), vr(Q, 4)))
    A("s_nop 15")
    A("s_nop 3")
    def max16(dst, S, init=False):
        if init:
            A("v_max3_f32 v%d, v%d, v%d, v%d" % (dst, S, S + 1, S + 2))
            A("v_max_f32 v%d, v%d, v%d" % (dst, dst, S + 3))
            rest = list(range(4, 16))
        else:
            rest = list(range(0, 16))
        for i in range(0, len(rest), 2):
            A("v_max3_f32 v%d, v%d, v%d, v%d" % (dst, dst, S + rest[i], S + rest[i + 1]))
    max16(6, S0, True)
    A.label("L_attn_setneg")
    A("v_mov_b32 v7, v6")
    A("s_nop 1")
    A("v_permlane32_swap_b32 v6, v7")
    A("s_nop 1")
    A("v_max_f32 v6, v6, v7")
    A("v_sub_f32 v%d, 0, v6" % NEG)
    for i in range(1, 16):
        A("v_mov_b32 v%d, v%d" % (NEG + i, NEG))
    A("v_add_u32 v2, s26, v1")
    A("v_lshl_add_u32 v3, v5, 4, v4")
    A("v_lshlrev_b32 v3, 4, v3")
    A("v_add_u32 v3, 0x10000, v3")
    A("v_add_u32 v3, s26, v3")
    for i in range(16):
        A("v_mov_b32 v%d, 0" % (O + i))
    def vread(p, off):
        A("s_mov_b64 exec, s[20:21]")
        A("ds_read_b128 %s, v3 offset:%d" % (vr(VV[p], 4), off))
        A("ds_read_b128 %s, v3 offset:%d" % (vr(VV[p] + 4, 4), off + 512))
        A("s_mov_b64 exec, -1")
    A("ds_read_b128 %s, v2" % vr(K0, 4))
    vread(0, 0)
    A("s_waitcnt lgkmcnt(0)")
    A("v_mfma_f32_32x32x16_bf16 %s, %s, %s, %s" % (vr(S0, 16), vr(K0, 4), vr(Q, 4), vr(NEG, 16)))
    A("ds_read_b128 %s, v2 offset:1024" % vr(K1, 4))
    vread(1, 1024)
    A("s_nop 7")
    def body():
        for p in range(2):
            S = SS[p]
            A("s_waitcnt lgkmcnt(2)")
            A("v_mfma_f32_32x32x16_bf16 %s, %s, %s, %s" % (vr(SS[1 - p], 16), vr(KK[1 - p], 4), vr(Q, 4), vr(NEG, 16)))
            A("ds_read_b128 %s, v2 offset:%d" % (vr(KK[p], 4), 2048 + 1024 * p))
            for i in range(8):
                A("v_exp_f32 v%d, v%d" % (S + i, S + i))
            for i in range(4):
                A("v_cvt_pk_bf16_f32 v%d, v%d, v%d" % (P + i, S + 2 * i, S + 2 * i + 1))
            for i in range(8, 10):
                A("v_exp_f32 v%d, v%d" % (S + i, S + i))
            A("v_mfma_f32_32x32x16_bf16 %s, %s, %s, %s" % (vr(O, 16), vr(VV[p], 4), vr(P, 4), vr(O, 16)))
            for i in range(10, 16):
                A("v_exp_f32 v%d, v%d" % (S + i, S + i))
            for i in range(4):
                A("v_cvt_pk_bf16_f32 v%d, v%d, v%d" % (P + 4 + i, S + 8 + 2 * i, S + 8 + 2 * i + 1))
            if p == 1:
                A("v_add_u32 v2, 2048, v2")
                A("s_sub_u32 s23, s23, 1")
            else:
                A("s_nop 1")
            if DIAG != 1:
                A("v_mfma_f32_32x32x16_bf16 %s, %s, %s, %s" % (vr(O, 16), vr(VV[p] + 4, 4), vr(P + 4, 4), vr(O, 16)))
            if DIAG != 2:
                vread(p, 2048 + 1024 * p)
            else:
                A("ds_read_b32 v110, v3\nds_read_b32 v111, v3")
        A("v_add_u32 v3, 2048, v3")
        A("s_cmp_lg_u32 s23, 0")
    A("s_cmp_lg_u32 s22, 0")
    A("s_cbranch_scc0 L_attn_phA")
    A("s_mov_b32 s23, 32")
    A("s_branch L_attn_loopB")
    A.label("L_attn_phA")
    if PRIO:
        for p_ in (3, 2, 1):
            A("s_setprio %d" % p_)
            body()
    else:
        A("s_mov_b32 s23, 3")
        A.label("L_attn_loopA")
        body()
        A("s_cbranch_scc1 L_attn_loopA")
    stamp(2)
    A("s_waitcnt vmcnt(0)")
    A("s_barrier")
    stamp(3)
    if PRIO:
        for seg, (p_, n_) in enumerate(((3, 3), (2, 4), (1, 3))):
            A("s_setprio %d" % p_)
            A("s_mov_b32 s23, %d" % n_)
            A.label("L_attn_loopS%d" % seg)
            body()
            A("s_cbranch_scc1 L_attn_loopS%d" % seg)
        A("s_setprio 0")
        A("s_mov_b32 s23, 3")
    else:
        A("s_mov_b32 s23, 13")
    A.label("L_attn_loopB")
    body()
    A("s_cbranch_scc1 L_attn_loopB")
    A("s_waitcnt lgkmcnt(0)")
    A("s_nop 15")
    A("s_nop 3")
    A("s_cmp_lg_u32 s22, 0")
    A("s_cbranch_scc1 L_attn_fin")
    A("s_mul_i32 s27, s24, %d" % (9 * 256))
    A("v_lshrrev_b32 v6, 2, v1")
    A("v_add_u32 v6, s27, v6")
    A("v_add_u32 v6, %d, v6" % SCR)
    A("s_cmp_eq_u32 s25, 0")
    A("s_cbranch_scc1 L_attn_lo")
    for i in range(9):
        A("ds_write_b32 v6, v%d offset:%d" % (O + i, 256 * i))
    A("s_waitcnt lgkmcnt(0)")
    A("s_barrier")
    A("s_branch L_%s_end" % name)
    A.label("L_attn_lo")
    A("s_barrier")
    for i in range(9):
        A("ds_read_b32 v%d, v6 offset:%d" % (S0 + i, 256 * i))
    A("s_waitcnt lgkmcnt(0)")
    for i in range(9):
        A("v_add_f32 v%d, v%d, v%d" % (O + i, O + i, S0 + i))
    A("v_cmp_gt_f32 vcc, 0x5f800000, v%d" % (O + 8))
    A("s_nop 3")
    A("s_cmp_eq_u64 vcc, exec")
    A("s_cbranch_scc1 L_attn_fin")
    A("s_mov_b32 s22, 1")
    A("v_mov_b32 v2, v1")
    A("v_mov_b32 v6, 0xff800000")
    A("s_mov_b32 s23, 64")
    A.label("L_attn_maxp")
    A("ds_read_b128 %s, v2" % vr(K0, 4))
    A("s_waitcnt lgkmcnt(0)")
    A("v_mfma_f32_32x32x16_bf16 %s, %s, %s, 0" % (vr(S0, 16), vr(K0, 4), vr(Q, 4)))
    A("s_nop 15")
    A("s_nop 3")
    max16(6, S0, False)
    A("v_add_u32 v2, 1024, v2")
    A("s_sub_u32 s23, s23, 1")
    A("s_cmp_lg_u32 s23, 0")
    A("s_cbranch_scc1 L_attn_maxp")
    A("s_branch L_attn_setneg")
    A.label("L_attn_fin")
    A("v_rcp_f32 v6, v%d" % (O + 8))
    A("s_nop 0")
    for i in range(8):
        A("v_mul_f32 v%d, v%d, v6" % (O + i, O + i))
    for i in range(4):
        A("v_cvt_pk_bf16_f32 v%d, v%d, v%d" % (O + i, O + 2 * i, O + 2 * i + 1))
    A("s_lshl_b32 s10, s9, 5\ns_add_u32 s10, s10, s8\ns_lshl_b32 s10, s10, 10\ns_add_u32 s10, s10, %d" % OF)
    A("buffer_store_dwordx4 %s, v1, s[4:7], s10 offen" % vr(O, 4))
    kernel_end(name, 112)
    return 256, SCR + 8 * 9 * 256

def main():
    A.raw(".amdgcn_target \"amdgcn-amd-amdhsa--gfx950\"")
    A.raw(".text")
    gen_prep()
    g = {}
    g['qkv'] = gen_qkv0()
    g['attn'] = gen_attn()
    g['chain1'] = gen_chain("chain1_kernel", False)
    g['chain2'] = gen_chain("chain2_kernel", True)
    hdr = []
    hdr.append("; @launch kernel=prep_kernel grid=(240,1,1) block=(256,1,1) lds=512")
    seq = ['qkv', 'attn', 'chain1', 'attn', 'chain2']
    for k in seq:
        nwg, lds = g[k]
        hdr.append("; @launch kernel=%s_kernel grid=(%d,1,1) block=(%d,1,1) lds=%d" % (k, nwg, 1024 if k == 'attn' else 256, lds))
    out = "\n".join(hdr) + "\n" + A.text()
    out += ".section .rodata,\"a\"\n"
    for (name, vgpr, sgpr, agpr) in kernels:
        v = (vgpr + 3) // 4 * 4
        out += ".p2align 6\n.amdhsa_kernel %s\n" % name
        out += "  .amdhsa_next_free_vgpr %d\n  .amdhsa_next_free_sgpr %d\n  .amdhsa_accum_offset %d\n" % (v + agpr, sgpr, v)
        out += "  .amdhsa_group_segment_fixed_size 0\n  .amdhsa_kernarg_size 80\n  .amdhsa_user_sgpr_count 2\n"
        out += "  .amdhsa_user_sgpr_kernarg_segment_ptr 1\n  .amdhsa_system_sgpr_workgroup_id_x 1\n.end_amdhsa_kernel\n"
    path = sys.argv[1] if len(sys.argv) > 1 else "cdna_kernels/%s.s" % NAME
    open(path, "w").write(out)
    print("wrote", path, len(out), "bytes")

if __name__ == "__main__":
    main()
```

```python
import sys, struct

NAME = "interleave_layers__softmax_full_mha__dense_activation_mish__prompt"
KB = 1024
_off = 0
def alloc(n):
    global _off
    o = _off
    _off += (n + 4095) // 4096 * 4096
    return o

WQKV_F = alloc(48 * 32 * KB)
WO_F   = alloc(16 * 32 * KB)
W1_F   = alloc(56 * 32 * KB)
W2_F   = alloc(16 * 112 * KB)
CS_QKV = alloc(48 * 128)
CS_W1  = alloc(56 * 128)
B1F    = alloc(56 * 128)
XF     = alloc(64 * 32 * KB)
STATS  = alloc(2048 * 128)
QF     = alloc(32 * 64 * KB)
KF     = alloc(32 * 64 * KB)
VF     = alloc(32 * 64 * KB)
OF     = alloc(64 * 32 * KB)
HF     = alloc(64 * 112 * KB)
X1F    = alloc(64 * 32 * KB)
X2F    = alloc(64 * 32 * KB)
STATS1 = alloc(2048 * 128)
STATS2 = alloc(2048 * 128)
FLAGS  = alloc(3 * 2048)
WS_SIZE = 268435456

def f32(x):
    return "0x%08x" % struct.unpack("<I", struct.pack("<f", x))[0]

LOG2E = 1.4426950408889634

class Asm:
    def __init__(self):
        self.lines = []
    def __call__(self, s):
        for l in s.strip("\n").split("\n"):
            self.lines.append("    " + l.strip())
    def label(self, l):
        self.lines.append(l + ":")
    def raw(self, s):
        self.lines.append(s)
    def text(self):
        return "\n".join(self.lines) + "\n"

A = Asm()
kernels = []

def vr(b, n):
    return "v[%d:%d]" % (b, b + n - 1)

import os
PROF = int(os.environ.get("PROF", "0"))
DIAG = int(os.environ.get("DIAG", "0"))
PRIO = int(os.environ.get("PRIO", "1"))
PROF_OFF = 128 * 1024 * 1024
_kid = [0]
def stamp(i):
    if PROF:
        A("s_memtime s[%d:%d]" % (72 + 2 * i, 73 + 2 * i))
        if i == 0:
            A("s_memrealtime s[92:93]")
def stamp_flush():
    if not PROF:
        return
    A("s_memtime s[88:89]")
    A("s_memrealtime s[94:95]")
    A("s_waitcnt vmcnt(0) lgkmcnt(0)")
    A("s_mov_b64 exec, 1")
    for i in range(24):
        A("v_mov_b32 v%d, s%d" % (8 + i, 72 + i))
    A("s_lshl_b32 s96, s2, 4\ns_add_u32 s96, s96, s3\ns_lshl_b32 s96, s96, 7\ns_add_u32 s96, s96, %d" % (PROF_OFF + _kid[0] * 1024 * 1024))
    A("v_mov_b32 v40, 0")
    for q in range(6):
        A("buffer_store_dwordx4 v[%d:%d], v40, s[4:7], s96 offen offset:%d" % (8 + 4 * q, 11 + 4 * q, 16 * q))
    _kid[0] += 1

def kernel_begin(name):
    A.raw(".globl %s" % name)
    A.raw(".p2align 8")
    A.raw(".type %s,@function" % name)
    A.label(name)

def kernel_end(name, vgpr, sgpr=100, agpr=0):
    A.label("L_%s_fin" % name)
    stamp_flush()
    A.label("L_%s_end" % name)
    A("s_endpgm")
    kernels.append((name, vgpr, sgpr, agpr))

def common_prologue(name, nwg, extra_loads=""):
    A("s_cmp_ge_u32 s2, %d" % nwg)
    A("s_cbranch_scc1 L_%s_end" % name)
    A("s_load_dwordx2 s[4:5], s[0:1], 72")
    if extra_loads:
        A(extra_loads)
    A("v_and_b32 v2, 63, v0")
    A("v_lshrrev_b32 v3, 6, v0")
    A("v_lshlrev_b32 v1, 4, v2")
    A("v_readfirstlane_b32 s3, v3")
    A("s_mov_b32 s6, 0x%x" % WS_SIZE)
    A("s_mov_b32 s7, 0x00020000")
    A("s_waitcnt lgkmcnt(0)")
    stamp(0)

def cross_half_add(va, vt):
    A("v_mov_b32 v%d, v%d" % (vt, va))
    A("s_nop 1")
    A("v_permlane32_swap_b32 v%d, v%d" % (va, vt))
    A("s_nop 1")
    A("v_add_f32 v%d, v%d, v%d" % (va, va, vt))

def stats_of_packed(regs, vsum, vsq, vt0, vt1):
    first = True
    for r in regs:
        A("v_lshlrev_b32 v%d, 16, v%d" % (vt0, r))
        A("v_and_b32 v%d, 0xffff0000, v%d" % (vt1, r))
        if first:
            A("v_add_f32 v%d, v%d, v%d" % (vsum, vt0, vt1))
            A("v_mul_f32 v%d, v%d, v%d" % (vsq, vt0, vt0))
            first = False
        else:
            A("v_add_f32 v%d, v%d, v%d" % (vsum, vsum, vt0))
            A("v_add_f32 v%d, v%d, v%d" % (vsum, vsum, vt1))
            A("v_fmac_f32 v%d, v%d, v%d" % (vsq, vt0, vt0))
        A("v_fmac_f32 v%d, v%d, v%d" % (vsq, vt1, vt1))
    cross_half_add(vsum, vt0)
    cross_half_add(vsq, vt0)

def gen_prep():
    name = "prep_kernel"
    kernel_begin(name)
    common_prologue(name, 240,
        "s_load_dwordx4 s[8:11], s[0:1], 0\n"
        "s_load_dwordx2 s[12:13], s[0:1], 16\n"
        "s_load_dwordx4 s[16:19], s[0:1], 32\n"
        "s_load_dwordx2 s[20:21], s[0:1], 48")
    A("v_and_b32 v4, 31, v2")
    A("v_lshrrev_b32 v5, 5, v2")
    A("s_mov_b32 s27, 0x00020000")
    A("s_cmp_ge_u32 s2, 176")
    A("s_cbranch_scc1 L_prep_x")
    A("s_lshl_b32 s30, s3, 3")
    A("s_cmp_ge_u32 s2, 48")
    A("s_cbranch_scc1 L_prep_r1")
    A("s_mov_b32 s24, s10\ns_mov_b32 s25, s11\ns_mov_b32 s26, %d" % (512 * 1536 * 2))
    A("s_mov_b32 s28, 3072\ns_mov_b32 s29, s2")
    A("s_lshl_b32 s31, s29, 5\ns_add_u32 s31, s31, s30\ns_lshl_b32 s31, s31, 10\ns_add_u32 s31, s31, %d" % WQKV_F)
    A("s_lshl_b32 s32, s29, 7\ns_add_u32 s32, s32, %d" % CS_QKV)
    A("s_mov_b32 s33, 1")
    A("s_branch L_prep_w")
    A.label("L_prep_r1")
    A("s_cmp_ge_u32 s2, 64")
    A("s_cbranch_scc1 L_prep_r2")
    A("s_mov_b32 s24, s12\ns_mov_b32 s25, s13\ns_mov_b32 s26, %d" % (512 * 512 * 2))
    A("s_mov_b32 s28, 1024\ns_sub_u32 s29, s2, 48")
    A("s_lshl_b32 s31, s29, 5\ns_add_u32 s31, s31, s30\ns_lshl_b32 s31, s31, 10\ns_add_u32 s31, s31, %d" % WO_F)
    A("s_mov_b32 s32, 0\ns_mov_b32 s33, 0")
    A("s_branch L_prep_w")
    A.label("L_prep_r2")
    A("s_cmp_ge_u32 s2, 120")
    A("s_cbranch_scc1 L_prep_r3")
    A("s_mov_b32 s24, s16\ns_mov_b32 s25, s17\ns_mov_b32 s26, %d" % (512 * 1792 * 2))
    A("s_mov_b32 s28, 3584\ns_sub_u32 s29, s2, 64")
    A("s_lshl_b32 s31, s29, 5\ns_add_u32 s31, s31, s30\ns_lshl_b32 s31, s31, 10\ns_add_u32 s31, s31, %d" % W1_F)
    A("s_lshl_b32 s32, s29, 7\ns_add_u32 s32, s32, %d" % CS_W1)
    A("s_mov_b32 s33, 2")
    A("s_branch L_prep_w")
    A.label("L_prep_r3")
    A("s_mov_b32 s24, s20\ns_mov_b32 s25, s21\ns_mov_b32 s26, %d" % (1792 * 512 * 2))
    A("s_mov_b32 s28, 1024")
    A("s_sub_u32 s34, s2, 120\ns_lshl_b32 s34, s34, 2\ns_add_u32 s34, s34, s3")
    A("s_and_b32 s29, s34, 15\ns_lshr_b32 s30, s34, 4\ns_lshl_b32 s30, s30, 3")
    A("s_mul_i32 s31, s29, 112\ns_add_u32 s31, s31, s30\ns_lshl_b32 s31, s31, 10\ns_add_u32 s31, s31, %d" % W2_F)
    A("s_mov_b32 s32, 0\ns_mov_b32 s33, 0")
    A.label("L_prep_w")
    A("s_lshl_b32 s34, s28, 2")
    A("v_mul_lo_u32 v6, v5, s34")
    A("s_lshl_b32 s35, s29, 5")
    A("v_add_u32 v7, s35, v4")
    A("v_lshl_add_u32 v10, v7, 1, v6")
    for idx, jj in enumerate((0, 1, 2, 3, 8, 9, 10, 11)):
        if idx == 0:
            continue
        A("s_mul_i32 s34, s28, %d" % jj)
        A("v_add_u32 v%d, s34, v10" % (10 + idx))
    A("s_lshl_b32 s34, s28, 4")
    A("s_mul_i32 s35, s30, s34")
    LD = 64
    for s in range(8):
        for j in range(8):
            A("buffer_load_ushort v%d, v%d, s[24:27], s35 offen" % (LD + 8 * s + j, 10 + j))
        if s < 7:
            A("s_add_u32 s35, s35, s34")
    A("s_add_u32 s36, s31, 4096")
    PK = 32
    for s in range(8):
        A("s_waitcnt vmcnt(%d)" % (56 - 8 * s + s))
        for q in range(4):
            A("v_lshl_or_b32 v%d, v%d, 16, v%d" % (PK + 4 * s + q, LD + 8 * s + 2 * q + 1, LD + 8 * s + 2 * q))
        A("buffer_store_dwordx4 %s, v1, s[4:7], s%d offen offset:%d" % (vr(PK + 4 * s, 4), 31 if s < 4 else 36, (s % 4) * 1024))
    A("s_cmp_eq_u32 s33, 0")
    A("s_cbranch_scc1 L_%s_end" % name)
    for i in range(64):
        A("v_lshlrev_b32 v%d, 16, v%d" % (LD + i, LD + i))
    A("v_add_f32 v20, v%d, v%d" % (LD, LD + 1))
    for i in range(2, 64):
        A("v_add_f32 v20, v20, v%d" % (LD + i))
    cross_half_add(20, 21)
    A("s_lshl_b32 s34, s3, 7")
    A("v_lshlrev_b32 v22, 2, v4")
    A("v_add_u32 v22, s34, v22")
    A("ds_write_b32 v22, v20")
    A("s_waitcnt lgkmcnt(0)")
    A("s_barrier")
    A("s_cmp_lg_u32 s3, 0")
    A("s_cbranch_scc1 L_%s_end" % name)
    A("v_lshlrev_b32 v22, 2, v4")
    A("ds_read_b32 v23, v22")
    A("ds_read_b32 v24, v22 offset:128")
    A("ds_read_b32 v25, v22 offset:256")
    A("ds_read_b32 v26, v22 offset:384")
    A("v_bfe_u32 v27, v4, 2, 1")
    A("v_lshlrev_b32 v27, 4, v27")
    A("v_lshrrev_b32 v28, 3, v4")
    A("v_lshl_add_u32 v27, v28, 2, v27")
    A("v_and_b32 v28, 3, v4")
    A("v_add_u32 v27, v27, v28")
    A("v_lshlrev_b32 v27, 2, v27")
    A("s_waitcnt lgkmcnt(0)")
    A("v_add_f32 v23, v23, v24")
    A("v_add_f32 v25, v25, v26")
    A("v_add_f32 v23, v23, v25")
    A("buffer_store_dword v23, v27, s[4:7], s32 offen")
    A("s_cmp_lg_u32 s33, 2")
    A("s_cbranch_scc1 L_%s_end" % name)
    A("s_mov_b32 s40, s18\ns_mov_b32 s41, s19\ns_mov_b32 s42, %d\ns_mov_b32 s43, 0x00020000" % (1792 * 2))
    A("v_lshlrev_b32 v7, 1, v7")
    A("buffer_load_ushort v29, v7, s[40:43], 0 offen")
    A("s_lshl_b32 s34, s29, 7\ns_add_u32 s34, s34, %d" % B1F)
    A("s_waitcnt vmcnt(0)")
    A("v_lshlrev_b32 v29, 16, v29")
    A("buffer_store_dword v29, v27, s[4:7], s34 offen")
    A("s_branch L_%s_end" % name)
    A.label("L_prep_x")
    A("s_mov_b32 s24, s8\ns_mov_b32 s25, s9\ns_mov_b32 s26, %d" % (2048 * 512 * 2))
    A("s_sub_u32 s29, s2, 176")
    A("s_lshl_b32 s34, s29, 5")
    A("v_add_u32 v6, s34, v4")
    A("v_lshlrev_b32 v7, 10, v6")
    A("v_lshl_add_u32 v7, v5, 3, v7")
    A("s_lshl_b32 s35, s3, 8")
    for s in range(8):
        A("buffer_load_dwordx2 %s, v7, s[24:27], s35 offen offset:%d" % (vr(PK + 4 * s, 2), 32 * s))
        A("buffer_load_dwordx2 %s, v7, s[24:27], s35 offen offset:%d" % (vr(PK + 4 * s + 2, 2), 32 * s + 16))
    A("s_lshl_b32 s31, s29, 5\ns_lshl_b32 s34, s3, 3\ns_add_u32 s31, s31, s34\ns_lshl_b32 s31, s31, 10\ns_add_u32 s31, s31, %d" % XF)
    A("s_add_u32 s36, s31, 4096")
    A("v_lshlrev_b32 v8, 4, v4")
    A("s_lshl_b32 s37, s29, 3\ns_lshl_b32 s38, s3, 1\ns_add_u32 s37, s37, s38\ns_lshl_b32 s37, s37, 9\ns_add_u32 s37, s37, %d" % STATS)
    A("s_waitcnt vmcnt(0)")
    for s in range(8):
        A("buffer_store_dwordx4 %s, v1, s[4:7], s%d offen offset:%d" % (vr(PK + 4 * s, 4), 31 if s < 4 else 36, (s % 4) * 1024))
    for q in range(4):
        stats_of_packed([PK + 8 * q + i for i in range(8)], 20 + 2 * q, 21 + 2 * q, 12, 13)
        A("buffer_store_dwordx2 %s, v8, s[4:7], s37 offen offset:%d" % (vr(20 + 2 * q, 2), 512 * (q >> 1) + 8 * (q & 1)))
    kernel_end(name, 128)

class St:
    def __init__(self):
        self.n = {'vm': 0, 'lg': 0}
        self.tag = {}
    def copy(self):
        o = St(); o.n = dict(self.n); o.tag = dict(self.tag); return o

def I(text, cls=None, tag=None):
    return ('i', text, cls, tag)
def W(cls, tag):
    return ('w', cls, tag)

def emit(seq, st):
    for it in seq:
        if it[0] == 'i':
            _, text, cls, tag = it
            A(text)
            if cls:
                if tag is not None:
                    st.tag[tag] = st.n[cls]
                st.n[cls] += 1
        else:
            _, cls, tag = it
            n = st.n[cls] - st.tag[tag] - 1
            if cls == 'vm':
                A("s_waitcnt vmcnt(%d)" % min(n, 63))
            else:
                A("s_waitcnt lgkmcnt(%d)" % min(n, 15))

def L(txt):
    return [I(t.strip()) for t in txt.strip().split("\n")]

def s_cross_half_add(va, vt):
    return L("v_mov_b32 v%d, v%d\ns_nop 1\nv_permlane32_swap_b32 v%d, v%d\ns_nop 1\nv_add_f32 v%d, v%d, v%d" % (vt, va, va, vt, va, va, vt))


NBUF = int(os.environ.get("NBUF", "4"))
BUFSZ = 32768
X1R = 216
NVALL = 224

def decode_wg():
    A("v_and_b32 v4, 31, v2")
    A("v_lshrrev_b32 v5, 5, v2")
    A("s_and_b32 s61, s2, 7\ns_lshr_b32 s62, s2, 3\ns_lshr_b32 s60, s61, 1\ns_lshl_b32 s60, s60, 2\ns_and_b32 s63, s62, 3\ns_add_u32 s60, s60, s63\ns_lshr_b32 s62, s62, 2\ns_and_b32 s61, s61, 1")

_lab = [0]
def newlab(p):
    _lab[0] += 1
    return "L_%s_%d" % (p, _lab[0])

def publish(phase):
    A("s_waitcnt vmcnt(0)")
    A("s_barrier")
    l = newlab("pub")
    A("s_cmp_lg_u32 s3, 0")
    A("s_cbranch_scc1 %s" % l)
    A("s_lshl_b32 s64, s60, 7\ns_lshl_b32 s65, s61, 5\ns_add_u32 s64, s64, s65\ns_lshl_b32 s65, s62, 2\ns_add_u32 s64, s64, s65\ns_add_u32 s64, s64, %d" % (FLAGS + phase * 2048))
    A("v_mov_b32 v2, 0")
    A("v_mov_b32 v3, 1")
    A("s_mov_b64 exec, 1")
    A("buffer_store_dword v3, v2, s[4:7], s64 offen sc1")
    A("s_mov_b64 exec, -1")
    A.label(l)

def await_flags(phase, mask):
    l = newlab("aw"); lp = newlab("poll"); ld = newlab("done")
    A("s_cmp_lg_u32 s3, 0")
    A("s_cbranch_scc1 %s" % l)
    A("s_lshl_b32 s64, s60, 7\ns_add_u32 s64, s64, %d" % (FLAGS + phase * 2048))
    A("v_lshrrev_b32 v2, 2, v1")
    A("v_and_b32 v2, 60, v2")
    A("s_mov_b32 s66, 0x20000")
    NP = int(os.environ.get("NPOLL", "1"))
    regs = [3, 14, 15][:NP]
    for r in regs[:-1]:
        A("buffer_load_dword v%d, v2, s[4:7], s64 offen sc1" % r)
        A("s_sleep 4")
    A.label(lp)
    for k in range(NP):
        A("buffer_load_dword v%d, v2, s[4:7], s64 offen sc1" % regs[(k + NP - 1) % NP])
        A("s_waitcnt vmcnt(%d)" % (NP - 1))
        A("v_cmp_eq_u32 vcc, 1, v%d" % regs[k])
        A("s_nop 3")
        A("s_and_b32 s65, vcc_lo, 0x%x" % mask)
        A("s_cmp_eq_u32 s65, 0x%x" % mask)
        A("s_cbranch_scc1 %s" % ld)
    A("s_sub_u32 s66, s66, 1")
    A("s_cmp_lg_u32 s66, 0")
    A("s_cbranch_scc1 %s" % lp)
    A.label(ld)
    A("s_waitcnt vmcnt(0)")
    A.label(l)
    A("s_barrier")

def bpre_setup(kind):
    WOFF = WQKV_F if kind == 'qkv' else W1_F
    NH = 6 if kind == 'qkv' else 7
    A("s_mul_i32 s70, s61, %d\ns_add_u32 s70, s70, s62\ns_lshl_b32 s70, s70, 2\ns_add_u32 s70, s70, s3\ns_lshl_b32 s70, s70, 15\ns_add_u32 s70, s70, %d" % (NH, WOFF))
def bpre_chunk(c):
    seq = []
    for q in range(4):
        s_ = 4 * c + q
        seq.append(I("buffer_load_dwordx4 a[%d:%d], v1, s[4:7], s70 offen offset:%d" % (4 * s_, 4 * s_ + 3, 1024 * q), 'vm', ('B', c)))
    seq += L("s_add_u32 s70, s70, 4096")
    return seq

class Ring:
    def __init__(self, kind, st, lsc=""):
        self.kind = kind; self.st = st; self.lsc = lsc
        self.KC = 8
        self.KS = 32 if kind == 'wo' else 112
        self.NC = self.KS // self.KC
        self.NPRE = min(NBUF - 1, self.NC)
    def setup(self):
        kind, KS = self.kind, self.KS
        ACT = OF if kind == 'wo' else HF
        WOFF = WO_F if kind == 'wo' else W2_F
        A("s_lshr_b32 s44, s62, 2\ns_lshl_b32 s44, s44, 1\ns_lshl_b32 s45, s60, 2\ns_add_u32 s44, s44, s45")
        A("s_and_b32 s45, s62, 3\ns_lshl_b32 s46, s61, 2\ns_add_u32 s45, s45, s46\ns_lshl_b32 s45, s45, 1")
        A("s_and_b32 s46, s3, 1")
        A("s_mov_b32 s47, %d\ns_mov_b32 s48, %d" % (ACT, WOFF))
        A("s_cmp_lt_u32 s3, 2")
        A("s_cselect_b32 s49, s44, s45")
        A("s_cselect_b32 s47, s47, s48")
        A("s_add_u32 s49, s49, s46")
        A("s_mul_i32 s49, s49, %d" % (KS * 1024))
        A("s_add_u32 s50, s47, s49")
        A("s_add_u32 s51, s50, 4096")
        A("s_lshl_b32 s52, s3, 13")
        A("s_add_u32 s53, s52, 4096")
    def dma(self, c):
        bo = (c % NBUF) * BUFSZ
        seq = []
        for u in range(2):
            seq += L("s_add_u32 m0, s%d, %d\ns_nop 0" % (52 + u, bo))
            for q in range(4):
                seq.append(I("buffer_load_dwordx4 v1, s[4:7], s%d offen offset:%d%s lds" % (50 + u, 1024 * q, self.lsc), 'vm', ('D', self.kind, c)))
        seq += L("s_add_u32 s50, s50, %d\ns_add_u32 s51, s51, %d" % (self.KC * 1024, self.KC * 1024))
        return seq
    def pre(self, which):
        seq = []
        for c in range(self.NPRE):
            seq += self.dma(c)
        if which == 'all':
            emit(seq, self.st)
        else:
            l = newlab("pre")
            A("s_cmp_%s_u32 s3, 2" % ("lt" if which == 'w' else "ge"))
            A("s_cbranch_scc1 %s" % l)
            emit(seq, self.st if which == 'a' else self.st.copy())
            A.label(l)
    def body(self, xin, xout, stats_out, sc="", side=None):
        kind, st, KC, NC = self.kind, self.st, self.KC, self.NC
        side = side or {}
        A("s_lshr_b32 s16, s3, 1\ns_and_b32 s17, s3, 1")
        A("s_add_u32 s18, s16, s44\ns_add_u32 s19, s17, s45")
        ACC = 16; FR = 32; FSET = 8; NSET = 3; XO = 56
        A("s_lshl_b32 s20, s18, 5\ns_lshl_b32 s21, s19, 1\ns_add_u32 s20, s20, s21\ns_lshl_b32 s20, s20, 10")
        if xin is not None:
            A("s_add_u32 s21, s20, %d" % xin)
            emit([I("buffer_load_dwordx4 %s, v1, s[4:7], s21 offen" % vr(XO, 4), 'vm'),
                  I("buffer_load_dwordx4 %s, v1, s[4:7], s21 offen offset:1024" % vr(XO + 4, 4), 'vm', 'xo')], st)
        A("s_lshl_b32 s26, s16, 13")
        A("v_add_u32 v10, s26, v1")
        A("s_lshl_b32 s26, s17, 13\ns_add_u32 s26, s26, %d" % (2 * KC * 1024))
        A("v_add_u32 v11, s26, v1")
        A("v_add_u32 v12, 0x10000, v10")
        A("v_add_u32 v13, 0x10000, v11")
        def reads(c, s_, k):
            o = (c % NBUF) * BUFSZ + s_ * 1024
            A("ds_read_b128 %s, v%d offset:%d" % (vr(FR + k * FSET, 4), 10 if o < 65536 else 12, o % 65536))
            A("ds_read_b128 %s, v%d offset:%d" % (vr(FR + k * FSET + 4, 4), 11 if o < 65536 else 13, o % 65536))
        for c in range(NC):
            emit([W('vm', ('D', kind, c))], st)
            A("s_barrier")
            if c + NBUF - 1 < NC:
                emit(self.dma(c + NBUF - 1), st)
            reads(c, 0, 0)
            reads(c, 1, 1)
            sd = list(side.get(c, []))
            for s_ in range(KC):
                k = s_ % NSET
                if s_ + 2 < KC:
                    reads(c, s_ + 2, (s_ + 2) % NSET)
                A("s_waitcnt lgkmcnt(%d)" % (min(KC - 1 - s_, 2) * 2))
                A("v_mfma_f32_32x32x16_bf16 %s, %s, %s, %s" % (vr(ACC, 16), vr(FR + k * FSET + 4, 4), vr(FR + k * FSET, 4), "0" if (c == 0 and s_ == 0) else vr(ACC, 16)))
                take = -(-len(sd) // (KC - s_))
                emit(sd[:take], st)
                del sd[:take]
        A("s_nop 15")
        A("s_nop 3")
        T0, T1 = 6, 7
        if xin is not None:
            emit([W('vm', 'xo')], st)
        XS = XO if xin is not None else X1R
        acc = ACC
        for i in range(8):
            A("v_lshlrev_b32 v%d, 16, v%d" % (T0, XS + i))
            A("v_and_b32 v%d, 0xffff0000, v%d" % (T1, XS + i))
            A("v_add_f32 v%d, v%d, v%d" % (acc + 2 * i, acc + 2 * i, T0))
            A("v_add_f32 v%d, v%d, v%d" % (acc + 2 * i + 1, acc + 2 * i + 1, T1))
        for i in range(8):
            A("v_cvt_pk_bf16_f32 v%d, v%d, v%d" % (X1R + i, acc + 2 * i, acc + 2 * i + 1))
        if kind == 'w2f':
            A("s_mov_b32 s42, %d\ns_mov_b32 s43, 0x00020000" % (2048 * 512 * 2))
            A("s_lshl_b32 s30, s18, 5")
            A("v_add_u32 v%d, s30, v4" % T0)
            A("v_lshlrev_b32 v%d, 10, v%d" % (T0, T0))
            A("v_lshl_add_u32 v%d, v5, 3, v%d" % (T0, T0))
            A("s_lshl_b32 s31, s19, 6")
            for g in range(4):
                A("buffer_store_dwordx2 %s, v%d, s[40:43], s31 offen offset:%d" % (vr(X1R + 2 * g, 2), T0, 16 * g))
        else:
            A("s_add_u32 s21, s20, %d" % xout)
            emit([I("buffer_store_dwordx4 %s, v1, s[4:7], s21 offen%s" % (vr(X1R, 4), sc), 'vm'),
                  I("buffer_store_dwordx4 %s, v1, s[4:7], s21 offen offset:1024%s" % (vr(X1R + 4, 4), sc), 'vm')], st)
            stats_of_packed([X1R + i for i in range(8)], XO + 8, XO + 9, T0, T1)
            A("v_lshlrev_b32 v%d, 4, v4" % T0)
            A("s_lshl_b32 s30, s18, 3\ns_lshr_b32 s31, s19, 1\ns_add_u32 s30, s30, s31\ns_lshl_b32 s30, s30, 9\ns_and_b32 s31, s19, 1\ns_lshl_b32 s31, s31, 3\ns_add_u32 s31, s31, s30\ns_add_u32 s31, s31, %d" % stats_out)
            emit([I("buffer_store_dwordx2 %s, v%d, s[4:7], s31 offen%s" % (vr(XO + 8, 2), T0, sc), 'vm')], st)

def phase_res(kind, xin, stats_in, st, sync=None, sc="", lsc="", endlab=None, pre_epi=None):
    NH = 6 if kind == 'qkv' else 7
    tagname = newlab(kind)
    A("s_lshl_b32 s8, s60, 2")
    A("s_mul_i32 s9, s61, %d\ns_add_u32 s9, s9, s62\ns_lshl_b32 s9, s9, 2" % NH)
    A("s_add_u32 s19, s9, s3")
    ACC = 16; AF = 80; CSR = 112; BR = 128; STF = 144; TMP = 152; STL = 168; TK = 184
    PD = int(os.environ.get("PD", "2"))
    A("s_add_u32 s10, s8, s3\ns_lshl_b32 s10, s10, 15\ns_add_u32 s10, s10, %d" % xin)
    A("s_lshl_b32 s12, s3, 15")
    def a_loads(c):
        seq = [I("s_add_u32 m0, s12, %d" % (c * 4096)), I("s_nop 0")]
        for q in range(4):
            seq.append(I("buffer_load_dwordx4 v1, s[4:7], s10 offen offset:%d%s lds" % (1024 * q, lsc), 'vm', ('A', c)))
        seq += L("s_add_u32 s10, s10, 4096")
        return seq
    cs_l = []
    cs_l += L("v_lshlrev_b32 v14, 6, v5\ns_lshl_b32 s22, s19, 7\ns_add_u32 s22, s22, %d" % (CS_QKV if kind == 'qkv' else CS_W1))
    for q in range(4):
        cs_l.append(I("buffer_load_dwordx4 %s, v14, s[4:7], s22 offen offset:%d" % (vr(CSR + 4 * q, 4), 16 * q), 'vm', 'misc'))
    if kind == 'qkv':
        cs_l += L("v_bfe_u32 v15, v4, 2, 1\nv_lshlrev_b32 v15, 4, v15\nv_lshrrev_b32 v3, 3, v4\nv_lshl_add_u32 v15, v3, 2, v15\nv_and_b32 v3, 3, v4\nv_add_u32 v15, v15, v3\nv_lshlrev_b32 v15, 2, v15")
        cs_l.append(I("buffer_load_dword v%d, v15, s[4:7], s22 offen" % BR, 'vm', 'misc'))
    else:
        cs_l += L("s_lshl_b32 s23, s19, 7\ns_add_u32 s23, s23, %d" % B1F)
        for q in range(4):
            cs_l.append(I("buffer_load_dwordx4 %s, v14, s[4:7], s23 offen offset:%d" % (vr(BR + 4 * q, 4), 16 * q), 'vm', 'misc'))
    st_l = L("s_add_u32 s21, s8, s3\ns_lshl_b32 s21, s21, 12\ns_add_u32 s21, s21, %d" % stats_in)
    for q in range(4):
        st_l.append(I("buffer_load_dwordx4 %s, v1, s[4:7], s21 offen offset:%d%s" % (vr(STL + 4 * q, 4), 1024 * q, lsc), 'vm', 'misc'))
    misc = st_l + cs_l
    if sync is None:
        bpre_setup(kind)
        def chunk_loads(c):
            return a_loads(c) + bpre_chunk(c)
    else:
        sync()
        chunk_loads = a_loads
        PD = int(os.environ.get("PD2", "4"))
    for c in range(PD):
        emit(chunk_loads(c), st)
    A("v_add_u32 v11, 0x10000, v1")
    SCR = 131072
    A("s_lshl_b32 s26, s3, 8")
    A("v_lshlrev_b32 v12, 3, v4")
    A("v_add_u32 v13, %d, v12" % SCR)
    A("v_add_u32 v12, s26, v13")
    def stats_stream():
        seq = [W('vm', 'misc')]
        b = STL
        for p in range(1, 8):
            seq.append(I("v_add_f32 v%d, v%d, v%d" % (b, b, b + 2 * p)))
            seq.append(I("v_add_f32 v%d, v%d, v%d" % (b + 1, b + 1, b + 2 * p + 1)))
        seq += s_cross_half_add(b, b + 2)
        seq += s_cross_half_add(b + 1, b + 2)
        seq += L("v_mul_f32 v%d, %s, v%d" % (b, f32(1.0 / 512), b))
        seq += L("v_mul_f32 v%d, %s, v%d" % (b + 1, f32(1.0 / 512), b + 1))
        seq += L("v_fma_f32 v%d, -v%d, v%d, v%d" % (b + 1, b, b, b + 1))
        seq += L("v_max_f32 v%d, 0, v%d" % (b + 1, b + 1))
        seq += L("v_add_f32 v%d, %s, v%d" % (b + 1, f32(1e-5), b + 1))
        seq += L("v_rsq_f32 v%d, v%d\ns_nop 0" % (b + 1, b + 1))
        seq += L("v_mul_f32 v%d, v%d, v%d" % (b, b, b + 1))
        seq.append(I("ds_write_b64 v12, %s" % vr(b, 2), 'lg', 'sw'))
        return seq
    def run(orient, epi, st):
        def rd(g):
            seq = []
            c = g >> 2
            if g % 4 == 0:
                seq.append(W('vm', ('A', c)))
                if c == 7:
                    seq.append(W('lg', 'sw'))
                seq.append(I("s_barrier"))
                if c == 7 and orient == 1:
                    for t in range(4):
                        seq.append(I("ds_read_b64 %s, v13 offset:%d" % (vr(STF + 2 * t, 2), 256 * t), 'lg', 'sr'))
            for mi in range(4):
                o = mi * 32768 + g * 1024
                seq.append(I("ds_read_b128 %s, v%d offset:%d" % (vr(AF + 16 * (g & 1) + 4 * mi, 4), 1 if o < 65536 else 11, o % 65536), 'lg', ('R', g, mi)))
            return seq
        side = {}
        for c in range(8):
            side[c] = chunk_loads(c + PD) if c + PD < 8 else []
        side[1] = side[1] + list(misc)
        side[5] = side[5] + stats_stream()
        emit(rd(0), st)
        for g in range(32):
            c = g >> 2
            seq = []
            if g + 1 < 32:
                seq += rd(g + 1)
            if g % 4 == 0:
                seq.append(W('vm', ('B', c)))
            sd = side.get(c, [])
            for mi in range(4):
                seq.append(W('lg', ('R', g, mi)))
                acc = ACC + 16 * mi
                a_, b_ = "a[%d:%d]" % (4 * g, 4 * g + 3), vr(AF + 16 * (g & 1) + 4 * mi, 4)
                if orient == 2:
                    a_, b_ = b_, a_
                seq.append(I("v_mfma_f32_32x32x16_bf16 %s, %s, %s, %s" % (vr(acc, 16), a_, b_, "0" if g == 0 else vr(acc, 16))))
                slot = (g % 4) * 4 + mi
                take = -(-len(sd) // (14 - slot)) if slot < 14 else len(sd)
                seq += sd[:take]
                del sd[:take]
            emit(seq, st)
        if pre_epi is not None:
            pre_epi()
        A("s_nop 15")
        A("s_nop 3")
        for mi in range(4):
            emit(epi(mi), st)
    T0, T1, T2, T3 = 6, 7, 8, 9
    if kind == 'qkv':
        A("s_cmp_ge_u32 s9, 32")
        A("s_cbranch_scc1 %s_v" % tagname)
        A("s_cmp_lt_u32 s9, 16")
        A("s_cselect_b32 s27, %s, 1.0" % f32(0.25 * LOG2E))
        A("s_mov_b32 s28, %d\ns_mov_b32 s29, %d" % (QF, KF - 32 * 64 * 1024))
        A("s_cselect_b32 s28, s28, s29")
        A("s_lshl_b32 s30, s19, 7\ns_add_u32 s30, s30, s8\ns_lshl_b32 s30, s30, 10\ns_add_u32 s30, s30, s28\ns_add_u32 s31, s30, 65536")
        def epi_qk(mi):
            acc = ACC + 16 * mi
            seq = [W('lg', 'sr')] + L("v_mul_f32 v%d, s27, v%d\nv_mul_f32 v%d, s27, v%d" % (T0, STF + 2 * mi + 1, T1, STF + 2 * mi))
            for i in range(0, 16, 2):
                seq += L("v_pk_mul_f32 %s, %s, %s op_sel:[0,0] op_sel_hi:[1,0]" % (vr(acc + i, 2), vr(acc + i, 2), vr(T0, 2)))
                seq += L("v_pk_fma_f32 %s, %s, %s, %s op_sel:[1,0,0] op_sel_hi:[1,1,1] neg_lo:[1,0,0] neg_hi:[1,0,0]" % (vr(acc + i, 2), vr(T0, 2), vr(CSR + i, 2), vr(acc + i, 2)))
            for i in range(8):
                seq += L("v_cvt_pk_bf16_f32 v%d, v%d, v%d" % (acc + i, acc + 2 * i, acc + 2 * i + 1))
            seq.append(I("buffer_store_dwordx4 %s, v1, s[4:7], s30 offen offset:%d" % (vr(acc, 4), 1024 * mi), 'vm'))
            seq.append(I("buffer_store_dwordx4 %s, v1, s[4:7], s31 offen offset:%d" % (vr(acc + 4, 4), 1024 * mi), 'vm'))
            return seq
        run(1, epi_qk, st.copy())
        A("s_branch %s" % endlab)
        A.label("%s_v" % tagname)
        A("v_lshlrev_b32 v%d, 5, v5" % T1)
        A("v_add_u32 v%d, %d, v%d" % (T1, SCR, T1))
        A("v_lshrrev_b32 v%d, 4, v4" % T2)
        A("v_lshlrev_b32 v%d, 16, v%d" % (T2, T2))
        A("v_and_b32 v%d, 15, v4" % T3)
        A("v_lshl_add_u32 v%d, v5, 4, v%d" % (T3, T3))
        A("v_lshl_add_u32 v%d, v%d, 4, v%d" % (T2, T3, T2))
        A("s_sub_u32 s30, s19, 32\ns_lshl_b32 s30, s30, 7\ns_add_u32 s30, s30, s8\ns_lshl_b32 s30, s30, 10\ns_add_u32 s30, s30, %d" % VF)
        def epi_v(mi):
            acc = ACC + 16 * mi
            seq = []
            for g in range(4):
                seq.append(I("ds_read_b128 %s, v%d offset:%d" % (vr(TK + 8 * g, 4), T1, 256 * mi + 64 * g), 'lg'))
                seq.append(I("ds_read_b128 %s, v%d offset:%d" % (vr(TK + 8 * g + 4, 4), T1, 256 * mi + 64 * g + 16), 'lg', ('tk', mi)))
            seq.append(W('lg', ('tk', mi)))
            for i in range(16):
                g, r = i >> 2, i & 3
                mr = TK + 8 * g + 2 * r
                seq += L("v_mul_f32 v%d, v%d, v%d" % (acc + i, acc + i, mr + 1))
                seq += L("v_fma_f32 v%d, -v%d, v%d, v%d" % (acc + i, mr, BR, acc + i))
            for i in range(8):
                seq += L("v_cvt_pk_bf16_f32 v%d, v%d, v%d" % (acc + i, acc + 2 * i, acc + 2 * i + 1))
            seq.append(I("buffer_store_dwordx4 %s, v%d, s[4:7], s30 offen offset:%d" % (vr(acc, 4), T2, 1024 * mi), 'vm'))
            seq.append(I("buffer_store_dwordx4 %s, v%d, s[4:7], s30 offen offset:%d" % (vr(acc + 4, 4), T2, 1024 * mi + 512), 'vm'))
            return seq
        run(2, epi_v, st.copy())
    else:
        A("s_mul_i32 s30, s8, 112\ns_lshl_b32 s31, s19, 1\ns_add_u32 s30, s30, s31\ns_lshl_b32 s30, s30, 10\ns_add_u32 s30, s30, %d" % HF)
        A("s_mov_b32 s32, %s\ns_mov_b32 s33, %s\ns_mov_b32 s34, 2.0\ns_mov_b32 s35, 2.0\ns_mov_b32 s36, -2.0\ns_mov_b32 s37, -2.0" % (f32(LOG2E), f32(LOG2E)))
        def epi_w1(mi):
            acc = ACC + 16 * mi
            b = STF + 2 * mi
            seq = [W('lg', 'sr')]
            for i0 in range(0, 16, 8):
                tt = [TMP + 4 * k for k in range(4)]
                for k in range(4):
                    i = i0 + 2 * k
                    seq += L("v_pk_fma_f32 %s, %s, %s, %s op_sel:[0,0,0] op_sel_hi:[0,1,1] neg_lo:[1,0,0] neg_hi:[1,0,0]" % (vr(tt[k], 2), vr(b, 2), vr(CSR + i, 2), vr(BR + i, 2)))
                    seq += L("v_pk_fma_f32 %s, %s, %s, %s op_sel:[0,1,0] op_sel_hi:[1,1,1]" % (vr(acc + i, 2), vr(acc + i, 2), vr(b, 2), vr(tt[k], 2)))
                    seq += L("v_pk_mul_f32 %s, %s, s[32:33]" % (vr(tt[k], 2), vr(acc + i, 2)))
                for k in range(4):
                    seq += L("v_exp_f32 v%d, v%d\nv_exp_f32 v%d, v%d" % (tt[k], tt[k], tt[k] + 1, tt[k] + 1))
                for k in range(4):
                    seq += L("v_pk_add_f32 %s, %s, s[34:35]" % (vr(tt[k] + 2, 2), vr(tt[k], 2)))
                    seq += L("v_pk_fma_f32 %s, %s, %s, s[34:35]" % (vr(tt[k], 2), vr(tt[k], 2), vr(tt[k] + 2, 2)))
                for k in range(4):
                    seq += L("v_rcp_f32 v%d, v%d\nv_rcp_f32 v%d, v%d" % (tt[k], tt[k], tt[k] + 1, tt[k] + 1))
                for k in range(4):
                    i = i0 + 2 * k
                    seq += L("v_pk_mul_f32 %s, %s, %s" % (vr(tt[k], 2), vr(acc + i, 2), vr(tt[k], 2)))
                for k in range(4):
                    i = i0 + 2 * k
                    seq += L("v_pk_fma_f32 %s, %s, s[36:37], %s" % (vr(acc + i, 2), vr(tt[k], 2), vr(acc + i, 2)))
            for i in range(8):
                seq += L("v_cvt_pk_bf16_f32 v%d, v%d, v%d" % (acc + i, acc + 2 * i, acc + 2 * i + 1))
            seq.append(I("buffer_store_dwordx4 %s, v1, s[4:7], s30 offen%s" % (vr(acc, 4), sc), 'vm'))
            seq.append(I("buffer_store_dwordx4 %s, v1, s[4:7], s30 offen offset:1024%s" % (vr(acc + 4, 4), sc), 'vm'))
            seq.append(I("s_add_u32 s30, s30, %d" % (112 * 1024)))
            return seq
        run(1, epi_w1, st)

def gen_qkv0():
    name = "qkv_kernel"
    kernel_begin(name)
    common_prologue(name, 256)
    decode_wg()
    A("s_cmp_ge_u32 s62, 6")
    A("s_cbranch_scc1 L_%s_end" % name)
    phase_res('qkv', XF, STATS, St(), endlab="L_%s_fin" % name)
    kernel_end(name, NVALL, agpr=128)
    return 256, 131072 + 1024

def gen_chain(name, last):
    kernel_begin(name)
    common_prologue(name, 256, "s_load_dwordx2 s[40:41], s[0:1], 56" if last else "")
    decode_wg()
    xin = X2F if last else XF
    SC = " sc1"
    LSC = os.environ.get("LSC", " sc1")
    st = St()
    r1 = Ring('wo', st)
    r1.setup()
    r1.pre('all')
    bpre_setup('w1')
    r1.body(xin, X1F, STATS1, sc=SC, side={c: bpre_chunk(2 * c) + bpre_chunk(2 * c + 1) for c in range(4)})
    stamp(1)
    publish(0)
    stamp(2)
    st2 = St(); st2.tag = {k: -1 for k in st.tag}
    r2 = Ring('w2f' if last else 'w2', st2, lsc=LSC)
    lskip = newlab("skipw1"); ljoin = newlab("joinw1")
    A("s_cmp_ge_u32 s62, 7")
    A("s_cbranch_scc1 %s" % lskip)
    def pre_epi():
        stamp(4)
        A("s_barrier")
        r2.setup()
        r2.pre('w')
    def aw0():
        await_flags(0, 0xffff)
        stamp(3)
    phase_res('w1', X1F, STATS1, st2, sync=aw0, sc=SC, lsc=LSC, pre_epi=pre_epi)
    stamp(5)
    publish(1)
    A("s_branch %s" % ljoin)
    A.label(lskip)
    r2.setup()
    r2.pre('w')
    A.label(ljoin)
    stamp(6)
    await_flags(1, 0x7f7f)
    stamp(7)
    st3 = St()
    r2.st = st3
    r2.pre('a')
    side = {}
    if not last:
        bpre_setup('qkv')
        side = {6 + c: bpre_chunk(c) for c in range(8)}
    r2.body(None, X2F, STATS2, sc=SC, side=side)
    if not last:
        publish(2)
        A("s_cmp_ge_u32 s62, 6")
        A("s_cbranch_scc1 L_%s_end" % name)
        st4 = St(); st4.tag = {k: -1 for k in st3.tag}
        phase_res('qkv', X2F, STATS2, st4, sync=lambda: await_flags(2, 0xffff), lsc=LSC, endlab="L_%s_fin" % name)
    kernel_end(name, NVALL, agpr=128)
    return 256, 131072 + 1024

def gen_attn():
    name = "attn_kernel"
    kernel_begin(name)
    common_prologue(name, 256)
    A("v_and_b32 v4, 31, v2")
    A("v_lshrrev_b32 v5, 5, v2")
    A("s_and_b32 s8, s2, 7\ns_lshr_b32 s9, s2, 3\ns_lshl_b32 s8, s8, 2\ns_and_b32 s10, s9, 3\ns_add_u32 s8, s8, s10\ns_lshr_b32 s9, s9, 2")
    A("s_and_b32 s24, s3, 7\ns_lshr_b32 s25, s3, 3")
    A("s_cmp_lg_u32 s2, 0")
    A("s_cbranch_scc1 L_attn_nz")
    A("s_cmp_ge_u32 s3, 6")
    A("s_cbranch_scc1 L_attn_nz")
    A("v_mov_b32 v8, 0\nv_mov_b32 v9, 0\nv_mov_b32 v10, 0\nv_mov_b32 v11, 0")
    A("s_lshl_b32 s26, s3, 10\ns_add_u32 s26, s26, %d" % FLAGS)
    A("buffer_store_dwordx4 v[8:11], v1, s[4:7], s26 offen")
    A("s_nop 1")
    A.label("L_attn_nz")
    A("s_lshl_b32 s9, s9, 3\ns_add_u32 s9, s9, s24")
    Q = 8; NEG = 12; S0 = 28; S1 = 44; P = 60; K0 = 68; K1 = 72; V0 = 76; V1 = 84; O = 92
    SS = (S0, S1); KK = (K0, K1); VV = (V0, V1)
    SCR = 131072 + 4096
    A("s_lshl_b32 s10, s8, 6\ns_add_u32 s11, s10, s9\ns_lshl_b32 s11, s11, 10\ns_add_u32 s11, s11, %d" % QF)
    A("buffer_load_dwordx4 %s, v1, s[4:7], s11 offen" % vr(Q, 4))
    A("s_lshl_b32 s10, s10, 10")
    A("s_add_u32 s12, s10, %d" % KF)
    A("s_add_u32 s13, s10, %d" % VF)
    A("s_lshl_b32 s14, s25, 5\ns_add_u32 s14, s14, s24\ns_lshl_b32 s14, s14, 10")
    A("s_add_u32 s15, s12, s14")
    A("s_add_u32 s16, s13, s14")
    A("s_mov_b32 m0, s14")
    A("s_nop 0")
    A("buffer_load_dwordx4 v1, s[4:7], s15 offen lds")
    A("s_add_u32 m0, s14, 0x10000")
    A("s_nop 0")
    A("buffer_load_dwordx4 v1, s[4:7], s16 offen lds")
    A("v_and_b32 v6, 27, v4")
    A("v_cmp_eq_u32 vcc, 16, v6")
    A("v_mov_b32 v7, 0x3f803f80")
    A("s_nop 1")
    A("v_cndmask_b32 v6, 0, v7, vcc")
    for i in range(16):
        A("v_mov_b32 v%d, v6" % (V0 + i))
    A("s_mov_b32 s20, 0xffff\ns_mov_b32 s21, 0xffff")
    A("s_mov_b32 s22, 0")
    A("s_lshl_b32 s26, s25, 15")
    A("s_waitcnt vmcnt(0)")
    A("s_barrier")
    stamp(1)
    A("s_mul_i32 s14, s24, 3\ns_add_u32 s14, s14, 8\ns_lshl_b32 s17, s25, 5\ns_add_u32 s14, s14, s17\ns_lshl_b32 s14, s14, 10")
    A("s_add_u32 s15, s12, s14")
    A("s_add_u32 s16, s13, s14")
    A("s_mov_b32 m0, s14")
    A("s_nop 0")
    for q in range(3):
        A("buffer_load_dwordx4 v1, s[4:7], s15 offen offset:%d lds" % (1024 * q))
    A("s_add_u32 m0, s14, 0x10000")
    A("s_nop 0")
    for q in range(3):
        A("buffer_load_dwordx4 v1, s[4:7], s16 offen offset:%d lds" % (1024 * q))
    A("ds_read_b128 %s, v1" % vr(K0, 4))
    A("s_waitcnt lgkmcnt(0)")
    A("v_mfma_f32_32x32x16_bf16 %s, %s, %s, 0" % (vr(S0, 16), vr(K0, 4), vr(Q, 4)))
    A("s_nop 15")
    A("s_nop 3")
    def max16(dst, S, init=False):
        if init:
            A("v_max3_f32 v%d, v%d, v%d, v%d" % (dst, S, S + 1, S + 2))
            A("v_max_f32 v%d, v%d, v%d" % (dst, dst, S + 3))
            rest = list(range(4, 16))
        else:
            rest = list(range(0, 16))
        for i in range(0, len(rest), 2):
            A("v_max3_f32 v%d, v%d, v%d, v%d" % (dst, dst, S + rest[i], S + rest[i + 1]))
    max16(6, S0, True)
    A.label("L_attn_setneg")
    A("v_mov_b32 v7, v6")
    A("s_nop 1")
    A("v_permlane32_swap_b32 v6, v7")
    A("s_nop 1")
    A("v_max_f32 v6, v6, v7")
    A("v_sub_f32 v%d, 0, v6" % NEG)
    for i in range(1, 16):
        A("v_mov_b32 v%d, v%d" % (NEG + i, NEG))
    A("v_add_u32 v2, s26, v1")
    A("v_lshl_add_u32 v3, v5, 4, v4")
    A("v_lshlrev_b32 v3, 4, v3")
    A("v_add_u32 v3, 0x10000, v3")
    A("v_add_u32 v3, s26, v3")
    for i in range(16):
        A("v_mov_b32 v%d, 0" % (O + i))
    def vread(p, off):
        A("s_mov_b64 exec, s[20:21]")
        A("ds_read_b128 %s, v3 offset:%d" % (vr(VV[p], 4), off))
        A("ds_read_b128 %s, v3 offset:%d" % (vr(VV[p] + 4, 4), off + 512))
        A("s_mov_b64 exec, -1")
    A("ds_read_b128 %s, v2" % vr(K0, 4))
    vread(0, 0)
    A("s_waitcnt lgkmcnt(0)")
    A("v_mfma_f32_32x32x16_bf16 %s, %s, %s, %s" % (vr(S0, 16), vr(K0, 4), vr(Q, 4), vr(NEG, 16)))
    A("ds_read_b128 %s, v2 offset:1024" % vr(K1, 4))
    vread(1, 1024)
    A("s_nop 7")
    def body():
        for p in range(2):
            S = SS[p]
            A("s_waitcnt lgkmcnt(2)")
            A("v_mfma_f32_32x32x16_bf16 %s, %s, %s, %s" % (vr(SS[1 - p], 16), vr(KK[1 - p], 4), vr(Q, 4), vr(NEG, 16)))
            A("ds_read_b128 %s, v2 offset:%d" % (vr(KK[p], 4), 2048 + 1024 * p))
            for i in range(8):
                A("v_exp_f32 v%d, v%d" % (S + i, S + i))
            for i in range(4):
                A("v_cvt_pk_bf16_f32 v%d, v%d, v%d" % (P + i, S + 2 * i, S + 2 * i + 1))
            for i in range(8, 10):
                A("v_exp_f32 v%d, v%d" % (S + i, S + i))
            A("v_mfma_f32_32x32x16_bf16 %s, %s, %s, %s" % (vr(O, 16), vr(VV[p], 4), vr(P, 4), vr(O, 16)))
            for i in range(10, 16):
                A("v_exp_f32 v%d, v%d" % (S + i, S + i))
            for i in range(4):
                A("v_cvt_pk_bf16_f32 v%d, v%d, v%d" % (P + 4 + i, S + 8 + 2 * i, S + 8 + 2 * i + 1))
            if p == 1:
                A("v_add_u32 v2, 2048, v2")
                A("s_sub_u32 s23, s23, 1")
            else:
                A("s_nop 1")
            if DIAG != 1:
                A("v_mfma_f32_32x32x16_bf16 %s, %s, %s, %s" % (vr(O, 16), vr(VV[p] + 4, 4), vr(P + 4, 4), vr(O, 16)))
            if DIAG != 2:
                vread(p, 2048 + 1024 * p)
            else:
                A("ds_read_b32 v110, v3\nds_read_b32 v111, v3")
        A("v_add_u32 v3, 2048, v3")
        A("s_cmp_lg_u32 s23, 0")
    A("s_cmp_lg_u32 s22, 0")
    A("s_cbranch_scc0 L_attn_phA")
    A("s_mov_b32 s23, 32")
    A("s_branch L_attn_loopB")
    A.label("L_attn_phA")
    if PRIO:
        for p_ in (3, 2, 1):
            A("s_setprio %d" % p_)
            body()
    else:
        A("s_mov_b32 s23, 3")
        A.label("L_attn_loopA")
        body()
        A("s_cbranch_scc1 L_attn_loopA")
    stamp(2)
    A("s_waitcnt vmcnt(0)")
    A("s_barrier")
    stamp(3)
    if PRIO:
        for seg, (p_, n_) in enumerate(((3, 3), (2, 4), (1, 3))):
            A("s_setprio %d" % p_)
            A("s_mov_b32 s23, %d" % n_)
            A.label("L_attn_loopS%d" % seg)
            body()
            A("s_cbranch_scc1 L_attn_loopS%d" % seg)
        A("s_setprio 0")
        A("s_mov_b32 s23, 3")
    else:
        A("s_mov_b32 s23, 13")
    A.label("L_attn_loopB")
    body()
    A("s_cbranch_scc1 L_attn_loopB")
    A("s_waitcnt lgkmcnt(0)")
    A("s_nop 15")
    A("s_nop 3")
    A("s_cmp_lg_u32 s22, 0")
    A("s_cbranch_scc1 L_attn_fin")
    A("s_mul_i32 s27, s24, %d" % (9 * 256))
    A("v_lshrrev_b32 v6, 2, v1")
    A("v_add_u32 v6, s27, v6")
    A("v_add_u32 v6, %d, v6" % SCR)
    A("s_cmp_eq_u32 s25, 0")
    A("s_cbranch_scc1 L_attn_lo")
    for i in range(9):
        A("ds_write_b32 v6, v%d offset:%d" % (O + i, 256 * i))
    A("s_waitcnt lgkmcnt(0)")
    A("s_barrier")
    A("s_branch L_%s_end" % name)
    A.label("L_attn_lo")
    A("s_barrier")
    for i in range(9):
        A("ds_read_b32 v%d, v6 offset:%d" % (S0 + i, 256 * i))
    A("s_waitcnt lgkmcnt(0)")
    for i in range(9):
        A("v_add_f32 v%d, v%d, v%d" % (O + i, O + i, S0 + i))
    A("v_cmp_gt_f32 vcc, 0x5f800000, v%d" % (O + 8))
    A("s_nop 3")
    A("s_cmp_eq_u64 vcc, exec")
    A("s_cbranch_scc1 L_attn_fin")
    A("s_mov_b32 s22, 1")
    A("v_mov_b32 v2, v1")
    A("v_mov_b32 v6, 0xff800000")
    A("s_mov_b32 s23, 64")
    A.label("L_attn_maxp")
    A("ds_read_b128 %s, v2" % vr(K0, 4))
    A("s_waitcnt lgkmcnt(0)")
    A("v_mfma_f32_32x32x16_bf16 %s, %s, %s, 0" % (vr(S0, 16), vr(K0, 4), vr(Q, 4)))
    A("s_nop 15")
    A("s_nop 3")
    max16(6, S0, False)
    A("v_add_u32 v2, 1024, v2")
    A("s_sub_u32 s23, s23, 1")
    A("s_cmp_lg_u32 s23, 0")
    A("s_cbranch_scc1 L_attn_maxp")
    A("s_branch L_attn_setneg")
    A.label("L_attn_fin")
    A("v_rcp_f32 v6, v%d" % (O + 8))
    A("s_nop 0")
    for i in range(8):
        A("v_mul_f32 v%d, v%d, v6" % (O + i, O + i))
    for i in range(4):
        A("v_cvt_pk_bf16_f32 v%d, v%d, v%d" % (O + i, O + 2 * i, O + 2 * i + 1))
    A("s_lshl_b32 s10, s9, 5\ns_add_u32 s10, s10, s8\ns_lshl_b32 s10, s10, 10\ns_add_u32 s10, s10, %d" % OF)
    A("buffer_store_dwordx4 %s, v1, s[4:7], s10 offen" % vr(O, 4))
    kernel_end(name, 112)
    return 256, SCR + 8 * 9 * 256

def main():
    A.raw(".amdgcn_target \"amdgcn-amd-amdhsa--gfx950\"")
    A.raw(".text")
    gen_prep()
    g = {}
    g['qkv'] = gen_qkv0()
    g['attn'] = gen_attn()
    g['chain1'] = gen_chain("chain1_kernel", False)
    g['chain2'] = gen_chain("chain2_kernel", True)
    hdr = []
    hdr.append("; @launch kernel=prep_kernel grid=(240,1,1) block=(256,1,1) lds=512")
    seq = ['qkv', 'attn', 'chain1', 'attn', 'chain2']
    for k in seq:
        nwg, lds = g[k]
        hdr.append("; @launch kernel=%s_kernel grid=(%d,1,1) block=(%d,1,1) lds=%d" % (k, nwg, 1024 if k == 'attn' else 256, lds))
    out = "\n".join(hdr) + "\n" + A.text()
    out += ".section .rodata,\"a\"\n"
    for (name, vgpr, sgpr, agpr) in kernels:
        v = (vgpr + 3) // 4 * 4
        out += ".p2align 6\n.amdhsa_kernel %s\n" % name
        out += "  .amdhsa_next_free_vgpr %d\n  .amdhsa_next_free_sgpr %d\n  .amdhsa_accum_offset %d\n" % (v + agpr, sgpr, v)
        out += "  .amdhsa_group_segment_fixed_size 0\n  .amdhsa_kernarg_size 80\n  .amdhsa_user_sgpr_count 2\n"
        out += "  .amdhsa_user_sgpr_kernarg_segment_ptr 1\n  .amdhsa_system_sgpr_workgroup_id_x 1\n.end_amdhsa_kernel\n"
    path = sys.argv[1] if len(sys.argv) > 1 else "cdna_kernels/%s.s" % NAME
    open(path, "w").write(out)
    print("wrote", path, len(out), "bytes")

if __name__ == "__main__":
    main()
```

```python
import sys, struct

NAME = "interleave_layers__softmax_full_mha__dense_activation_mish__prompt"
KB = 1024
_off = 0
def alloc(n):
    global _off
    o = _off
    _off += (n + 4095) // 4096 * 4096
    return o

WQKV_F = alloc(48 * 32 * KB)
WO_F   = alloc(16 * 32 * KB)
W1_F   = alloc(56 * 32 * KB)
W2_F   = alloc(16 * 112 * KB)
CS_QKV = alloc(48 * 128)
CS_W1  = alloc(56 * 128)
B1F    = alloc(56 * 128)
XF     = alloc(64 * 32 * KB)
STATS  = alloc(2048 * 128)
QF     = alloc(32 * 64 * KB)
KF     = alloc(32 * 64 * KB)
VF     = alloc(32 * 64 * KB)
OF     = alloc(64 * 32 * KB)
HF     = alloc(64 * 112 * KB)
X1F    = alloc(64 * 32 * KB)
X2F    = alloc(64 * 32 * KB)
STATS1 = alloc(2048 * 128)
STATS2 = alloc(2048 * 128)
FLAGS  = alloc(3 * 2048)
WS_SIZE = 268435456

def f32(x):
    return "0x%08x" % struct.unpack("<I", struct.pack("<f", x))[0]

LOG2E = 1.4426950408889634

class Asm:
    def __init__(self):
        self.lines = []
    def __call__(self, s):
        for l in s.strip("\n").split("\n"):
            self.lines.append("    " + l.strip())
    def label(self, l):
        self.lines.append(l + ":")
    def raw(self, s):
        self.lines.append(s)
    def text(self):
        return "\n".join(self.lines) + "\n"

A = Asm()
kernels = []

def vr(b, n):
    return "v[%d:%d]" % (b, b + n - 1)

import os
PROF = int(os.environ.get("PROF", "0"))
DIAG = int(os.environ.get("DIAG", "0"))
PRIO = int(os.environ.get("PRIO", "1"))
PROF_OFF = 128 * 1024 * 1024
_kid = [0]
def stamp(i):
    if PROF:
        A("s_memtime s[%d:%d]" % (72 + 2 * i, 73 + 2 * i))
        if i == 0:
            A("s_memrealtime s[92:93]")
def stamp_flush():
    if not PROF:
        return
    A("s_memtime s[88:89]")
    A("s_memrealtime s[94:95]")
    A("s_waitcnt vmcnt(0) lgkmcnt(0)")
    A("s_mov_b64 exec, 1")
    for i in range(24):
        A("v_mov_b32 v%d, s%d" % (8 + i, 72 + i))
    A("s_lshl_b32 s96, s2, 4\ns_add_u32 s96, s96, s3\ns_lshl_b32 s96, s96, 7\ns_add_u32 s96, s96, %d" % (PROF_OFF + _kid[0] * 1024 * 1024))
    A("v_mov_b32 v40, 0")
    for q in range(6):
        A("buffer_store_dwordx4 v[%d:%d], v40, s[4:7], s96 offen offset:%d" % (8 + 4 * q, 11 + 4 * q, 16 * q))
    _kid[0] += 1

def kernel_begin(name):
    A.raw(".globl %s" % name)
    A.raw(".p2align 8")
    A.raw(".type %s,@function" % name)
    A.label(name)

def kernel_end(name, vgpr, sgpr=100, agpr=0):
    A.label("L_%s_fin" % name)
    stamp_flush()
    A.label("L_%s_end" % name)
    A("s_endpgm")
    kernels.append((name, vgpr, sgpr, agpr))

def common_prologue(name, nwg, extra_loads=""):
    A("s_cmp_ge_u32 s2, %d" % nwg)
    A("s_cbranch_scc1 L_%s_end" % name)
    A("s_load_dwordx2 s[4:5], s[0:1], 72")
    if extra_loads:
        A(extra_loads)
    A("v_and_b32 v2, 63, v0")
    A("v_lshrrev_b32 v3, 6, v0")
    A("v_lshlrev_b32 v1, 4, v2")
    A("v_readfirstlane_b32 s3, v3")
    A("s_mov_b32 s6, 0x%x" % WS_SIZE)
    A("s_mov_b32 s7, 0x00020000")
    A("s_waitcnt lgkmcnt(0)")
    stamp(0)

def cross_half_add(va, vt):
    A("v_mov_b32 v%d, v%d" % (vt, va))
    A("s_nop 1")
    A("v_permlane32_swap_b32 v%d, v%d" % (va, vt))
    A("s_nop 1")
    A("v_add_f32 v%d, v%d, v%d" % (va, va, vt))

def stats_of_packed(regs, vsum, vsq, vt0, vt1):
    first = True
    for r in regs:
        A("v_lshlrev_b32 v%d, 16, v%d" % (vt0, r))
        A("v_and_b32 v%d, 0xffff0000, v%d" % (vt1, r))
        if first:
            A("v_add_f32 v%d, v%d, v%d" % (vsum, vt0, vt1))
            A("v_mul_f32 v%d, v%d, v%d" % (vsq, vt0, vt0))
            first = False
        else:
            A("v_add_f32 v%d, v%d, v%d" % (vsum, vsum, vt0))
            A("v_add_f32 v%d, v%d, v%d" % (vsum, vsum, vt1))
            A("v_fmac_f32 v%d, v%d, v%d" % (vsq, vt0, vt0))
        A("v_fmac_f32 v%d, v%d, v%d" % (vsq, vt1, vt1))
    cross_half_add(vsum, vt0)
    cross_half_add(vsq, vt0)

PREP_LOADS = ("s_load_dwordx4 s[8:11], s[0:1], 0\n"
        "s_load_dwordx2 s[12:13], s[0:1], 16\n"
        "s_load_dwordx4 s[16:19], s[0:1], 32\n"
        "s_load_dwordx2 s[20:21], s[0:1], 48")
def prep_body(tag, ENDL):
    A("v_lshrrev_b32 v2, 4, v1")
    A("v_and_b32 v4, 31, v2")
    A("v_lshrrev_b32 v5, 5, v2")
    A("s_mov_b32 s27, 0x00020000")
    A("s_cmp_ge_u32 s58, 176")
    A("s_cbranch_scc1 L_prep%s_x" % tag)
    A("s_lshl_b32 s30, s3, 3")
    A("s_cmp_ge_u32 s58, 48")
    A("s_cbranch_scc1 L_prep%s_r1" % tag)
    A("s_mov_b32 s24, s10\ns_mov_b32 s25, s11\ns_mov_b32 s26, %d" % (512 * 1536 * 2))
    A("s_mov_b32 s28, 3072\ns_mov_b32 s29, s58")
    A("s_lshl_b32 s31, s29, 5\ns_add_u32 s31, s31, s30\ns_lshl_b32 s31, s31, 10\ns_add_u32 s31, s31, %d" % WQKV_F)
    A("s_lshl_b32 s32, s29, 7\ns_add_u32 s32, s32, %d" % CS_QKV)
    A("s_mov_b32 s33, 1")
    A("s_branch L_prep%s_w" % tag)
    A.label("L_prep%s_r1" % tag)
    A("s_cmp_ge_u32 s58, 64")
    A("s_cbranch_scc1 L_prep%s_r2" % tag)
    A("s_mov_b32 s24, s12\ns_mov_b32 s25, s13\ns_mov_b32 s26, %d" % (512 * 512 * 2))
    A("s_mov_b32 s28, 1024\ns_sub_u32 s29, s58, 48")
    A("s_lshl_b32 s31, s29, 5\ns_add_u32 s31, s31, s30\ns_lshl_b32 s31, s31, 10\ns_add_u32 s31, s31, %d" % WO_F)
    A("s_mov_b32 s32, 0\ns_mov_b32 s33, 0")
    A("s_branch L_prep%s_w" % tag)
    A.label("L_prep%s_r2" % tag)
    A("s_cmp_ge_u32 s58, 120")
    A("s_cbranch_scc1 L_prep%s_r3" % tag)
    A("s_mov_b32 s24, s16\ns_mov_b32 s25, s17\ns_mov_b32 s26, %d" % (512 * 1792 * 2))
    A("s_mov_b32 s28, 3584\ns_sub_u32 s29, s58, 64")
    A("s_lshl_b32 s31, s29, 5\ns_add_u32 s31, s31, s30\ns_lshl_b32 s31, s31, 10\ns_add_u32 s31, s31, %d" % W1_F)
    A("s_lshl_b32 s32, s29, 7\ns_add_u32 s32, s32, %d" % CS_W1)
    A("s_mov_b32 s33, 2")
    A("s_branch L_prep%s_w" % tag)
    A.label("L_prep%s_r3" % tag)
    A("s_mov_b32 s24, s20\ns_mov_b32 s25, s21\ns_mov_b32 s26, %d" % (1792 * 512 * 2))
    A("s_mov_b32 s28, 1024")
    A("s_sub_u32 s34, s58, 120\ns_lshl_b32 s34, s34, 2\ns_add_u32 s34, s34, s3")
    A("s_and_b32 s29, s34, 15\ns_lshr_b32 s30, s34, 4\ns_lshl_b32 s30, s30, 3")
    A("s_mul_i32 s31, s29, 112\ns_add_u32 s31, s31, s30\ns_lshl_b32 s31, s31, 10\ns_add_u32 s31, s31, %d" % W2_F)
    A("s_mov_b32 s32, 0\ns_mov_b32 s33, 0")
    A.label("L_prep%s_w" % tag)
    A("s_lshl_b32 s34, s28, 2")
    A("v_mul_lo_u32 v6, v5, s34")
    A("s_lshl_b32 s35, s29, 5")
    A("v_add_u32 v7, s35, v4")
    A("v_lshl_add_u32 v10, v7, 1, v6")
    for idx, jj in enumerate((0, 1, 2, 3, 8, 9, 10, 11)):
        if idx == 0:
            continue
        A("s_mul_i32 s34, s28, %d" % jj)
        A("v_add_u32 v%d, s34, v10" % (10 + idx))
    A("s_lshl_b32 s34, s28, 4")
    A("s_mul_i32 s35, s30, s34")
    LD = 64
    for s in range(8):
        for j in range(8):
            A("buffer_load_ushort v%d, v%d, s[24:27], s35 offen" % (LD + 8 * s + j, 10 + j))
        if s < 7:
            A("s_add_u32 s35, s35, s34")
    A("s_add_u32 s36, s31, 4096")
    PK = 32
    for s in range(8):
        A("s_waitcnt vmcnt(%d)" % (56 - 8 * s + s))
        for q in range(4):
            A("v_lshl_or_b32 v%d, v%d, 16, v%d" % (PK + 4 * s + q, LD + 8 * s + 2 * q + 1, LD + 8 * s + 2 * q))
        A("buffer_store_dwordx4 %s, v1, s[4:7], s%d offen offset:%d" % (vr(PK + 4 * s, 4), 31 if s < 4 else 36, (s % 4) * 1024))
    A("s_cmp_eq_u32 s33, 0")
    A("s_cbranch_scc1 %s" % ENDL)
    for i in range(64):
        A("v_lshlrev_b32 v%d, 16, v%d" % (LD + i, LD + i))
    A("v_add_f32 v20, v%d, v%d" % (LD, LD + 1))
    for i in range(2, 64):
        A("v_add_f32 v20, v20, v%d" % (LD + i))
    cross_half_add(20, 21)
    A("s_lshl_b32 s34, s3, 7")
    A("v_lshlrev_b32 v22, 2, v4")
    A("v_add_u32 v22, s34, v22")
    A("ds_write_b32 v22, v20")
    A("s_waitcnt lgkmcnt(0)")
    A("s_barrier")
    A("s_cmp_lg_u32 s3, 0")
    A("s_cbranch_scc1 %s" % ENDL)
    A("v_lshlrev_b32 v22, 2, v4")
    A("ds_read_b32 v23, v22")
    A("ds_read_b32 v24, v22 offset:128")
    A("ds_read_b32 v25, v22 offset:256")
    A("ds_read_b32 v26, v22 offset:384")
    A("v_bfe_u32 v27, v4, 2, 1")
    A("v_lshlrev_b32 v27, 4, v27")
    A("v_lshrrev_b32 v28, 3, v4")
    A("v_lshl_add_u32 v27, v28, 2, v27")
    A("v_and_b32 v28, 3, v4")
    A("v_add_u32 v27, v27, v28")
    A("v_lshlrev_b32 v27, 2, v27")
    A("s_waitcnt lgkmcnt(0)")
    A("v_add_f32 v23, v23, v24")
    A("v_add_f32 v25, v25, v26")
    A("v_add_f32 v23, v23, v25")
    A("buffer_store_dword v23, v27, s[4:7], s32 offen")
    A("s_cmp_lg_u32 s33, 2")
    A("s_cbranch_scc1 %s" % ENDL)
    A("s_mov_b32 s40, s18\ns_mov_b32 s41, s19\ns_mov_b32 s42, %d\ns_mov_b32 s43, 0x00020000" % (1792 * 2))
    A("v_lshlrev_b32 v7, 1, v7")
    A("buffer_load_ushort v29, v7, s[40:43], 0 offen")
    A("s_lshl_b32 s34, s29, 7\ns_add_u32 s34, s34, %d" % B1F)
    A("s_waitcnt vmcnt(0)")
    A("v_lshlrev_b32 v29, 16, v29")
    A("buffer_store_dword v29, v27, s[4:7], s34 offen")
    A("s_branch %s" % ENDL)
    A.label("L_prep%s_x" % tag)
    A("s_mov_b32 s24, s8\ns_mov_b32 s25, s9\ns_mov_b32 s26, %d" % (2048 * 512 * 2))
    A("s_sub_u32 s29, s58, 176")
    A("s_lshl_b32 s34, s29, 5")
    A("v_add_u32 v6, s34, v4")
    A("v_lshlrev_b32 v7, 10, v6")
    A("v_lshl_add_u32 v7, v5, 3, v7")
    A("s_lshl_b32 s35, s3, 8")
    for s in range(8):
        A("buffer_load_dwordx2 %s, v7, s[24:27], s35 offen offset:%d" % (vr(PK + 4 * s, 2), 32 * s))
        A("buffer_load_dwordx2 %s, v7, s[24:27], s35 offen offset:%d" % (vr(PK + 4 * s + 2, 2), 32 * s + 16))
    A("s_lshl_b32 s31, s29, 5\ns_lshl_b32 s34, s3, 3\ns_add_u32 s31, s31, s34\ns_lshl_b32 s31, s31, 10\ns_add_u32 s31, s31, %d" % XF)
    A("s_add_u32 s36, s31, 4096")
    A("v_lshlrev_b32 v8, 4, v4")
    A("s_lshl_b32 s37, s29, 3\ns_lshl_b32 s38, s3, 1\ns_add_u32 s37, s37, s38\ns_lshl_b32 s37, s37, 9\ns_add_u32 s37, s37, %d" % STATS)
    A("s_waitcnt vmcnt(0)")
    for s in range(8):
        A("buffer_store_dwordx4 %s, v1, s[4:7], s%d offen offset:%d" % (vr(PK + 4 * s, 4), 31 if s < 4 else 36, (s % 4) * 1024))
    for q in range(4):
        stats_of_packed([PK + 8 * q + i for i in range(8)], 20 + 2 * q, 21 + 2 * q, 12, 13)
        A("buffer_store_dwordx2 %s, v8, s[4:7], s37 offen offset:%d" % (vr(20 + 2 * q, 2), 512 * (q >> 1) + 8 * (q & 1)))


def gen_prep():
    name = "prep_kernel"
    kernel_begin(name)
    common_prologue(name, 112, PREP_LOADS)
    A("s_add_u32 s58, s2, 128")
    A("s_cmp_lt_u32 s2, 48")
    A("s_cselect_b32 s58, s2, s58")
    prep_body("A", "L_%s_end" % name)
    kernel_end(name, 128)

class St:
    def __init__(self):
        self.n = {'vm': 0, 'lg': 0}
        self.tag = {}
    def copy(self):
        o = St(); o.n = dict(self.n); o.tag = dict(self.tag); return o

def I(text, cls=None, tag=None):
    return ('i', text, cls, tag)
def W(cls, tag):
    return ('w', cls, tag)

def emit(seq, st):
    for it in seq:
        if it[0] == 'i':
            _, text, cls, tag = it
            A(text)
            if cls:
                if tag is not None:
                    st.tag[tag] = st.n[cls]
                st.n[cls] += 1
        else:
            _, cls, tag = it
            n = st.n[cls] - st.tag[tag] - 1
            if cls == 'vm':
                A("s_waitcnt vmcnt(%d)" % min(n, 63))
            else:
                A("s_waitcnt lgkmcnt(%d)" % min(n, 15))

def L(txt):
    return [I(t.strip()) for t in txt.strip().split("\n")]

def s_cross_half_add(va, vt):
    return L("v_mov_b32 v%d, v%d\ns_nop 1\nv_permlane32_swap_b32 v%d, v%d\ns_nop 1\nv_add_f32 v%d, v%d, v%d" % (vt, va, va, vt, va, va, vt))


NBUF = int(os.environ.get("NBUF", "4"))
BUFSZ = 32768
X1R = 216
NVALL = 224

def decode_wg():
    A("v_and_b32 v4, 31, v2")
    A("v_lshrrev_b32 v5, 5, v2")
    A("s_and_b32 s61, s2, 7\ns_lshr_b32 s62, s2, 3\ns_lshr_b32 s60, s61, 1\ns_lshl_b32 s60, s60, 2\ns_and_b32 s63, s62, 3\ns_add_u32 s60, s60, s63\ns_lshr_b32 s62, s62, 2\ns_and_b32 s61, s61, 1")

_lab = [0]
def newlab(p):
    _lab[0] += 1
    return "L_%s_%d" % (p, _lab[0])

def publish(phase):
    A("s_waitcnt vmcnt(0)")
    A("s_barrier")
    l = newlab("pub")
    A("s_cmp_lg_u32 s3, 0")
    A("s_cbranch_scc1 %s" % l)
    A("s_lshl_b32 s64, s60, 7\ns_lshl_b32 s65, s61, 5\ns_add_u32 s64, s64, s65\ns_lshl_b32 s65, s62, 2\ns_add_u32 s64, s64, s65\ns_add_u32 s64, s64, %d" % (FLAGS + phase * 2048))
    A("v_mov_b32 v2, 0")
    A("v_mov_b32 v3, 1")
    A("s_mov_b64 exec, 1")
    A("buffer_store_dword v3, v2, s[4:7], s64 offen sc1")
    A("s_mov_b64 exec, -1")
    A.label(l)

def await_flags(phase, mask):
    l = newlab("aw"); lp = newlab("poll"); ld = newlab("done")
    A("s_cmp_lg_u32 s3, 0")
    A("s_cbranch_scc1 %s" % l)
    A("s_lshl_b32 s64, s60, 7\ns_add_u32 s64, s64, %d" % (FLAGS + phase * 2048))
    A("v_lshrrev_b32 v2, 2, v1")
    A("v_and_b32 v2, 60, v2")
    A("s_mov_b32 s66, 0x20000")
    NP = int(os.environ.get("NPOLL", "1"))
    regs = [3, 14, 15][:NP]
    for r in regs[:-1]:
        A("buffer_load_dword v%d, v2, s[4:7], s64 offen sc1" % r)
        A("s_sleep 4")
    A.label(lp)
    for k in range(NP):
        A("buffer_load_dword v%d, v2, s[4:7], s64 offen sc1" % regs[(k + NP - 1) % NP])
        A("s_waitcnt vmcnt(%d)" % (NP - 1))
        A("v_cmp_eq_u32 vcc, 1, v%d" % regs[k])
        A("s_nop 3")
        A("s_and_b32 s65, vcc_lo, 0x%x" % mask)
        A("s_cmp_eq_u32 s65, 0x%x" % mask)
        A("s_cbranch_scc1 %s" % ld)
    A("s_sub_u32 s66, s66, 1")
    A("s_cmp_lg_u32 s66, 0")
    A("s_cbranch_scc1 %s" % lp)
    A.label(ld)
    A("s_waitcnt vmcnt(0)")
    A.label(l)
    A("s_barrier")

def bpre_setup(kind):
    WOFF = WQKV_F if kind == 'qkv' else W1_F
    NH = 6 if kind == 'qkv' else 7
    A("s_mul_i32 s70, s61, %d\ns_add_u32 s70, s70, s62\ns_lshl_b32 s70, s70, 2\ns_add_u32 s70, s70, s3\ns_lshl_b32 s70, s70, 15\ns_add_u32 s70, s70, %d" % (NH, WOFF))
def bpre_chunk(c):
    seq = []
    for q in range(4):
        s_ = 4 * c + q
        seq.append(I("buffer_load_dwordx4 a[%d:%d], v1, s[4:7], s70 offen offset:%d" % (4 * s_, 4 * s_ + 3, 1024 * q), 'vm', ('B', c)))
    seq += L("s_add_u32 s70, s70, 4096")
    return seq

class Ring:
    def __init__(self, kind, st, lsc=""):
        self.kind = kind; self.st = st; self.lsc = lsc
        self.KC = 8
        self.KS = 32 if kind == 'wo' else 112
        self.NC = self.KS // self.KC
        self.NPRE = min(NBUF - 1, self.NC)
    def setup(self):
        kind, KS = self.kind, self.KS
        ACT = OF if kind == 'wo' else HF
        WOFF = WO_F if kind == 'wo' else W2_F
        A("s_lshr_b32 s44, s62, 2\ns_lshl_b32 s44, s44, 1\ns_lshl_b32 s45, s60, 2\ns_add_u32 s44, s44, s45")
        A("s_and_b32 s45, s62, 3\ns_lshl_b32 s46, s61, 2\ns_add_u32 s45, s45, s46\ns_lshl_b32 s45, s45, 1")
        A("s_and_b32 s46, s3, 1")
        A("s_mov_b32 s47, %d\ns_mov_b32 s48, %d" % (ACT, WOFF))
        A("s_cmp_lt_u32 s3, 2")
        A("s_cselect_b32 s49, s44, s45")
        A("s_cselect_b32 s47, s47, s48")
        A("s_add_u32 s49, s49, s46")
        A("s_mul_i32 s49, s49, %d" % (KS * 1024))
        A("s_add_u32 s50, s47, s49")
        A("s_add_u32 s51, s50, 4096")
        A("s_lshl_b32 s52, s3, 13")
        A("s_add_u32 s53, s52, 4096")
    def dma(self, c):
        bo = (c % NBUF) * BUFSZ
        seq = []
        for u in range(2):
            seq += L("s_add_u32 m0, s%d, %d\ns_nop 0" % (52 + u, bo))
            for q in range(4):
                seq.append(I("buffer_load_dwordx4 v1, s[4:7], s%d offen offset:%d%s lds" % (50 + u, 1024 * q, self.lsc), 'vm', ('D', self.kind, c)))
        seq += L("s_add_u32 s50, s50, %d\ns_add_u32 s51, s51, %d" % (self.KC * 1024, self.KC * 1024))
        return seq
    def pre(self, which):
        seq = []
        for c in range(self.NPRE):
            seq += self.dma(c)
        if which == 'all':
            emit(seq, self.st)
        else:
            l = newlab("pre")
            A("s_cmp_%s_u32 s3, 2" % ("lt" if which == 'w' else "ge"))
            A("s_cbranch_scc1 %s" % l)
            emit(seq, self.st if which == 'a' else self.st.copy())
            A.label(l)
    def body(self, xin, xout, stats_out, sc="", side=None):
        kind, st, KC, NC = self.kind, self.st, self.KC, self.NC
        side = side or {}
        A("s_lshr_b32 s16, s3, 1\ns_and_b32 s17, s3, 1")
        A("s_add_u32 s18, s16, s44\ns_add_u32 s19, s17, s45")
        ACC = 16; FR = 32; FSET = 8; NSET = 3; XO = 56
        A("s_lshl_b32 s20, s18, 5\ns_lshl_b32 s21, s19, 1\ns_add_u32 s20, s20, s21\ns_lshl_b32 s20, s20, 10")
        if xin is not None:
            A("s_add_u32 s21, s20, %d" % xin)
            emit([I("buffer_load_dwordx4 %s, v1, s[4:7], s21 offen" % vr(XO, 4), 'vm'),
                  I("buffer_load_dwordx4 %s, v1, s[4:7], s21 offen offset:1024" % vr(XO + 4, 4), 'vm', 'xo')], st)
        A("s_lshl_b32 s26, s16, 13")
        A("v_add_u32 v10, s26, v1")
        A("s_lshl_b32 s26, s17, 13\ns_add_u32 s26, s26, %d" % (2 * KC * 1024))
        A("v_add_u32 v11, s26, v1")
        A("v_add_u32 v12, 0x10000, v10")
        A("v_add_u32 v13, 0x10000, v11")
        def reads(c, s_, k):
            o = (c % NBUF) * BUFSZ + s_ * 1024
            A("ds_read_b128 %s, v%d offset:%d" % (vr(FR + k * FSET, 4), 10 if o < 65536 else 12, o % 65536))
            A("ds_read_b128 %s, v%d offset:%d" % (vr(FR + k * FSET + 4, 4), 11 if o < 65536 else 13, o % 65536))
        for c in range(NC):
            emit([W('vm', ('D', kind, c))], st)
            A("s_barrier")
            if c + NBUF - 1 < NC:
                emit(self.dma(c + NBUF - 1), st)
            reads(c, 0, 0)
            reads(c, 1, 1)
            sd = list(side.get(c, []))
            for s_ in range(KC):
                k = s_ % NSET
                if s_ + 2 < KC:
                    reads(c, s_ + 2, (s_ + 2) % NSET)
                A("s_waitcnt lgkmcnt(%d)" % (min(KC - 1 - s_, 2) * 2))
                A("v_mfma_f32_32x32x16_bf16 %s, %s, %s, %s" % (vr(ACC, 16), vr(FR + k * FSET + 4, 4), vr(FR + k * FSET, 4), "0" if (c == 0 and s_ == 0) else vr(ACC, 16)))
                take = -(-len(sd) // (KC - s_))
                emit(sd[:take], st)
                del sd[:take]
        A("s_nop 15")
        A("s_nop 3")
        T0, T1 = 6, 7
        if xin is not None:
            emit([W('vm', 'xo')], st)
        XS = XO if xin is not None else X1R
        acc = ACC
        for i in range(8):
            A("v_lshlrev_b32 v%d, 16, v%d" % (T0, XS + i))
            A("v_and_b32 v%d, 0xffff0000, v%d" % (T1, XS + i))
            A("v_add_f32 v%d, v%d, v%d" % (acc + 2 * i, acc + 2 * i, T0))
            A("v_add_f32 v%d, v%d, v%d" % (acc + 2 * i + 1, acc + 2 * i + 1, T1))
        for i in range(8):
            A("v_cvt_pk_bf16_f32 v%d, v%d, v%d" % (X1R + i, acc + 2 * i, acc + 2 * i + 1))
        if kind == 'w2f':
            A("s_mov_b32 s42, %d\ns_mov_b32 s43, 0x00020000" % (2048 * 512 * 2))
            A("s_lshl_b32 s30, s18, 5")
            A("v_add_u32 v%d, s30, v4" % T0)
            A("v_lshlrev_b32 v%d, 10, v%d" % (T0, T0))
            A("v_lshl_add_u32 v%d, v5, 3, v%d" % (T0, T0))
            A("s_lshl_b32 s31, s19, 6")
            for g in range(4):
                A("buffer_store_dwordx2 %s, v%d, s[40:43], s31 offen offset:%d" % (vr(X1R + 2 * g, 2), T0, 16 * g))
        else:
            A("s_add_u32 s21, s20, %d" % xout)
            emit([I("buffer_store_dwordx4 %s, v1, s[4:7], s21 offen%s" % (vr(X1R, 4), sc), 'vm'),
                  I("buffer_store_dwordx4 %s, v1, s[4:7], s21 offen offset:1024%s" % (vr(X1R + 4, 4), sc), 'vm')], st)
            stats_of_packed([X1R + i for i in range(8)], XO + 8, XO + 9, T0, T1)
            A("v_lshlrev_b32 v%d, 4, v4" % T0)
            A("s_lshl_b32 s30, s18, 3\ns_lshr_b32 s31, s19, 1\ns_add_u32 s30, s30, s31\ns_lshl_b32 s30, s30, 9\ns_and_b32 s31, s19, 1\ns_lshl_b32 s31, s31, 3\ns_add_u32 s31, s31, s30\ns_add_u32 s31, s31, %d" % stats_out)
            emit([I("buffer_store_dwordx2 %s, v%d, s[4:7], s31 offen%s" % (vr(XO + 8, 2), T0, sc), 'vm')], st)

def phase_res(kind, xin, stats_in, st, sync=None, sc="", lsc="", endlab=None, pre_epi=None):
    NH = 6 if kind == 'qkv' else 7
    tagname = newlab(kind)
    A("s_lshl_b32 s8, s60, 2")
    A("s_mul_i32 s9, s61, %d\ns_add_u32 s9, s9, s62\ns_lshl_b32 s9, s9, 2" % NH)
    A("s_add_u32 s19, s9, s3")
    ACC = 16; AF = 80; CSR = 112; BR = 128; STF = 144; TMP = 152; STL = 168; TK = 184
    PD = int(os.environ.get("PD", "2"))
    A("s_add_u32 s10, s8, s3\ns_lshl_b32 s10, s10, 15\ns_add_u32 s10, s10, %d" % xin)
    A("s_lshl_b32 s12, s3, 15")
    def a_loads(c):
        seq = [I("s_add_u32 m0, s12, %d" % (c * 4096)), I("s_nop 0")]
        for q in range(4):
            seq.append(I("buffer_load_dwordx4 v1, s[4:7], s10 offen offset:%d%s lds" % (1024 * q, lsc), 'vm', ('A', c)))
        seq += L("s_add_u32 s10, s10, 4096")
        return seq
    cs_l = []
    cs_l += L("v_lshlrev_b32 v14, 6, v5\ns_lshl_b32 s22, s19, 7\ns_add_u32 s22, s22, %d" % (CS_QKV if kind == 'qkv' else CS_W1))
    for q in range(4):
        cs_l.append(I("buffer_load_dwordx4 %s, v14, s[4:7], s22 offen offset:%d" % (vr(CSR + 4 * q, 4), 16 * q), 'vm', 'misc'))
    if kind == 'qkv':
        cs_l += L("v_bfe_u32 v15, v4, 2, 1\nv_lshlrev_b32 v15, 4, v15\nv_lshrrev_b32 v3, 3, v4\nv_lshl_add_u32 v15, v3, 2, v15\nv_and_b32 v3, 3, v4\nv_add_u32 v15, v15, v3\nv_lshlrev_b32 v15, 2, v15")
        cs_l.append(I("buffer_load_dword v%d, v15, s[4:7], s22 offen" % BR, 'vm', 'misc'))
    else:
        cs_l += L("s_lshl_b32 s23, s19, 7\ns_add_u32 s23, s23, %d" % B1F)
        for q in range(4):
            cs_l.append(I("buffer_load_dwordx4 %s, v14, s[4:7], s23 offen offset:%d" % (vr(BR + 4 * q, 4), 16 * q), 'vm', 'misc'))
    st_l = L("s_add_u32 s21, s8, s3\ns_lshl_b32 s21, s21, 12\ns_add_u32 s21, s21, %d" % stats_in)
    for q in range(4):
        st_l.append(I("buffer_load_dwordx4 %s, v1, s[4:7], s21 offen offset:%d%s" % (vr(STL + 4 * q, 4), 1024 * q, lsc), 'vm', 'misc'))
    misc = st_l + cs_l
    if sync is None:
        bpre_setup(kind)
        def chunk_loads(c):
            return a_loads(c) + bpre_chunk(c)
    else:
        sync()
        chunk_loads = a_loads
        PD = int(os.environ.get("PD2", "4"))
    for c in range(PD):
        emit(chunk_loads(c), st)
    A("v_add_u32 v11, 0x10000, v1")
    SCR = 131072
    A("s_lshl_b32 s26, s3, 8")
    A("v_lshlrev_b32 v12, 3, v4")
    A("v_add_u32 v13, %d, v12" % SCR)
    A("v_add_u32 v12, s26, v13")
    def stats_stream():
        seq = [W('vm', 'misc')]
        b = STL
        for p in range(1, 8):
            seq.append(I("v_add_f32 v%d, v%d, v%d" % (b, b, b + 2 * p)))
            seq.append(I("v_add_f32 v%d, v%d, v%d" % (b + 1, b + 1, b + 2 * p + 1)))
        seq += s_cross_half_add(b, b + 2)
        seq += s_cross_half_add(b + 1, b + 2)
        seq += L("v_mul_f32 v%d, %s, v%d" % (b, f32(1.0 / 512), b))
        seq += L("v_mul_f32 v%d, %s, v%d" % (b + 1, f32(1.0 / 512), b + 1))
        seq += L("v_fma_f32 v%d, -v%d, v%d, v%d" % (b + 1, b, b, b + 1))
        seq += L("v_max_f32 v%d, 0, v%d" % (b + 1, b + 1))
        seq += L("v_add_f32 v%d, %s, v%d" % (b + 1, f32(1e-5), b + 1))
        seq += L("v_rsq_f32 v%d, v%d\ns_nop 0" % (b + 1, b + 1))
        seq += L("v_mul_f32 v%d, v%d, v%d" % (b, b, b + 1))
        seq.append(I("ds_write_b64 v12, %s" % vr(b, 2), 'lg', 'sw'))
        return seq
    def run(orient, epi, st):
        def rd(g):
            seq = []
            c = g >> 2
            if g % 4 == 0:
                seq.append(W('vm', ('A', c)))
                if c == 7:
                    seq.append(W('lg', 'sw'))
                seq.append(I("s_barrier"))
                if c == 7 and orient == 1:
                    for t in range(4):
                        seq.append(I("ds_read_b64 %s, v13 offset:%d" % (vr(STF + 2 * t, 2), 256 * t), 'lg', 'sr'))
            for mi in range(4):
                o = mi * 32768 + g * 1024
                seq.append(I("ds_read_b128 %s, v%d offset:%d" % (vr(AF + 16 * (g & 1) + 4 * mi, 4), 1 if o < 65536 else 11, o % 65536), 'lg', ('R', g, mi)))
            return seq
        side = {}
        for c in range(8):
            side[c] = chunk_loads(c + PD) if c + PD < 8 else []
        side[1] = side[1] + list(misc)
        side[5] = side[5] + stats_stream()
        emit(rd(0), st)
        for g in range(32):
            c = g >> 2
            seq = []
            if g + 1 < 32:
                seq += rd(g + 1)
            if g % 4 == 0:
                seq.append(W('vm', ('B', c)))
            sd = side.get(c, [])
            for mi in range(4):
                seq.append(W('lg', ('R', g, mi)))
                acc = ACC + 16 * mi
                a_, b_ = "a[%d:%d]" % (4 * g, 4 * g + 3), vr(AF + 16 * (g & 1) + 4 * mi, 4)
                if orient == 2:
                    a_, b_ = b_, a_
                seq.append(I("v_mfma_f32_32x32x16_bf16 %s, %s, %s, %s" % (vr(acc, 16), a_, b_, "0" if g == 0 else vr(acc, 16))))
                slot = (g % 4) * 4 + mi
                take = -(-len(sd) // (14 - slot)) if slot < 14 else len(sd)
                seq += sd[:take]
                del sd[:take]
            emit(seq, st)
        if pre_epi is not None:
            pre_epi()
        A("s_nop 15")
        A("s_nop 3")
        for mi in range(4):
            emit(epi(mi), st)
    T0, T1, T2, T3 = 6, 7, 8, 9
    if kind == 'qkv':
        A("s_cmp_ge_u32 s9, 32")
        A("s_cbranch_scc1 %s_v" % tagname)
        A("s_cmp_lt_u32 s9, 16")
        A("s_cselect_b32 s27, %s, 1.0" % f32(0.25 * LOG2E))
        A("s_mov_b32 s28, %d\ns_mov_b32 s29, %d" % (QF, KF - 32 * 64 * 1024))
        A("s_cselect_b32 s28, s28, s29")
        A("s_lshl_b32 s30, s19, 7\ns_add_u32 s30, s30, s8\ns_lshl_b32 s30, s30, 10\ns_add_u32 s30, s30, s28\ns_add_u32 s31, s30, 65536")
        def epi_qk(mi):
            acc = ACC + 16 * mi
            seq = [W('lg', 'sr')] + L("v_mul_f32 v%d, s27, v%d\nv_mul_f32 v%d, s27, v%d" % (T0, STF + 2 * mi + 1, T1, STF + 2 * mi))
            for i in range(0, 16, 2):
                seq += L("v_pk_mul_f32 %s, %s, %s op_sel:[0,0] op_sel_hi:[1,0]" % (vr(acc + i, 2), vr(acc + i, 2), vr(T0, 2)))
                seq += L("v_pk_fma_f32 %s, %s, %s, %s op_sel:[1,0,0] op_sel_hi:[1,1,1] neg_lo:[1,0,0] neg_hi:[1,0,0]" % (vr(acc + i, 2), vr(T0, 2), vr(CSR + i, 2), vr(acc + i, 2)))
            for i in range(8):
                seq += L("v_cvt_pk_bf16_f32 v%d, v%d, v%d" % (acc + i, acc + 2 * i, acc + 2 * i + 1))
            seq.append(I("buffer_store_dwordx4 %s, v1, s[4:7], s30 offen offset:%d" % (vr(acc, 4), 1024 * mi), 'vm'))
            seq.append(I("buffer_store_dwordx4 %s, v1, s[4:7], s31 offen offset:%d" % (vr(acc + 4, 4), 1024 * mi), 'vm'))
            return seq
        run(1, epi_qk, st.copy())
        A("s_branch %s" % endlab)
        A.label("%s_v" % tagname)
        A("v_lshlrev_b32 v%d, 5, v5" % T1)
        A("v_add_u32 v%d, %d, v%d" % (T1, SCR, T1))
        A("v_lshrrev_b32 v%d, 4, v4" % T2)
        A("v_lshlrev_b32 v%d, 16, v%d" % (T2, T2))
        A("v_and_b32 v%d, 15, v4" % T3)
        A("v_lshl_add_u32 v%d, v5, 4, v%d" % (T3, T3))
        A("v_lshl_add_u32 v%d, v%d, 4, v%d" % (T2, T3, T2))
        A("s_sub_u32 s30, s19, 32\ns_lshl_b32 s30, s30, 7\ns_add_u32 s30, s30, s8\ns_lshl_b32 s30, s30, 10\ns_add_u32 s30, s30, %d" % VF)
        def epi_v(mi):
            acc = ACC + 16 * mi
            seq = []
            for g in range(4):
                seq.append(I("ds_read_b128 %s, v%d offset:%d" % (vr(TK + 8 * g, 4), T1, 256 * mi + 64 * g), 'lg'))
                seq.append(I("ds_read_b128 %s, v%d offset:%d" % (vr(TK + 8 * g + 4, 4), T1, 256 * mi + 64 * g + 16), 'lg', ('tk', mi)))
            seq.append(W('lg', ('tk', mi)))
            for i in range(16):
                g, r = i >> 2, i & 3
                mr = TK + 8 * g + 2 * r
                seq += L("v_mul_f32 v%d, v%d, v%d" % (acc + i, acc + i, mr + 1))
                seq += L("v_fma_f32 v%d, -v%d, v%d, v%d" % (acc + i, mr, BR, acc + i))
            for i in range(8):
                seq += L("v_cvt_pk_bf16_f32 v%d, v%d, v%d" % (acc + i, acc + 2 * i, acc + 2 * i + 1))
            seq.append(I("buffer_store_dwordx4 %s, v%d, s[4:7], s30 offen offset:%d" % (vr(acc, 4), T2, 1024 * mi), 'vm'))
            seq.append(I("buffer_store_dwordx4 %s, v%d, s[4:7], s30 offen offset:%d" % (vr(acc + 4, 4), T2, 1024 * mi + 512), 'vm'))
            return seq
        run(2, epi_v, st.copy())
    else:
        A("s_mul_i32 s30, s8, 112\ns_lshl_b32 s31, s19, 1\ns_add_u32 s30, s30, s31\ns_lshl_b32 s30, s30, 10\ns_add_u32 s30, s30, %d" % HF)
        A("s_mov_b32 s32, %s\ns_mov_b32 s33, %s\ns_mov_b32 s34, 2.0\ns_mov_b32 s35, 2.0\ns_mov_b32 s36, -2.0\ns_mov_b32 s37, -2.0" % (f32(LOG2E), f32(LOG2E)))
        def epi_w1(mi):
            acc = ACC + 16 * mi
            b = STF + 2 * mi
            seq = [W('lg', 'sr')]
            for i0 in range(0, 16, 8):
                tt = [TMP + 4 * k for k in range(4)]
                for k in range(4):
                    i = i0 + 2 * k
                    seq += L("v_pk_fma_f32 %s, %s, %s, %s op_sel:[0,0,0] op_sel_hi:[0,1,1] neg_lo:[1,0,0] neg_hi:[1,0,0]" % (vr(tt[k], 2), vr(b, 2), vr(CSR + i, 2), vr(BR + i, 2)))
                    seq += L("v_pk_fma_f32 %s, %s, %s, %s op_sel:[0,1,0] op_sel_hi:[1,1,1]" % (vr(acc + i, 2), vr(acc + i, 2), vr(b, 2), vr(tt[k], 2)))
                    seq += L("v_pk_mul_f32 %s, %s, s[32:33]" % (vr(tt[k], 2), vr(acc + i, 2)))
                for k in range(4):
                    seq += L("v_exp_f32 v%d, v%d\nv_exp_f32 v%d, v%d" % (tt[k], tt[k], tt[k] + 1, tt[k] + 1))
                for k in range(4):
                    seq += L("v_pk_add_f32 %s, %s, s[34:35]" % (vr(tt[k] + 2, 2), vr(tt[k], 2)))
                    seq += L("v_pk_fma_f32 %s, %s, %s, s[34:35]" % (vr(tt[k], 2), vr(tt[k], 2), vr(tt[k] + 2, 2)))
                for k in range(4):
                    seq += L("v_rcp_f32 v%d, v%d\nv_rcp_f32 v%d, v%d" % (tt[k], tt[k], tt[k] + 1, tt[k] + 1))
                for k in range(4):
                    i = i0 + 2 * k
                    seq += L("v_pk_mul_f32 %s, %s, %s" % (vr(tt[k], 2), vr(acc + i, 2), vr(tt[k], 2)))
                for k in range(4):
                    i = i0 + 2 * k
                    seq += L("v_pk_fma_f32 %s, %s, s[36:37], %s" % (vr(acc + i, 2), vr(tt[k], 2), vr(acc + i, 2)))
            for i in range(8):
                seq += L("v_cvt_pk_bf16_f32 v%d, v%d, v%d" % (acc + i, acc + 2 * i, acc + 2 * i + 1))
            seq.append(I("buffer_store_dwordx4 %s, v1, s[4:7], s30 offen%s" % (vr(acc, 4), sc), 'vm'))
            seq.append(I("buffer_store_dwordx4 %s, v1, s[4:7], s30 offen offset:1024%s" % (vr(acc + 4, 4), sc), 'vm'))
            seq.append(I("s_add_u32 s30, s30, %d" % (112 * 1024)))
            return seq
        run(1, epi_w1, st)

def gen_qkv0():
    name = "qkv_kernel"
    kernel_begin(name)
    common_prologue(name, 256, PREP_LOADS)
    decode_wg()
    A("s_cmp_ge_u32 s62, 6")
    A("s_cbranch_scc1 L_qkv0_prep")
    phase_res('qkv', XF, STATS, St(), endlab="L_%s_fin" % name)
    A("s_branch L_%s_fin" % name)
    A.label("L_qkv0_prep")
    A("s_sub_u32 s58, s62, 6\ns_lshl_b32 s58, s58, 1\ns_add_u32 s58, s58, s61\ns_lshl_b32 s58, s58, 4\ns_add_u32 s58, s58, s60\ns_add_u32 s58, s58, 48")
    A("s_mov_b32 s59, 0")
    A.label("L_qkv0_task")
    prep_body("B", "L_qkv0_next")
    A.label("L_qkv0_next")
    A("s_waitcnt vmcnt(0) lgkmcnt(0)")
    A("s_barrier")
    A("s_add_u32 s58, s58, 64")
    A("s_add_u32 s59, s59, 1")
    A("s_cmp_lt_u32 s59, 2")
    A("s_cbranch_scc1 L_qkv0_task")
    A("s_branch L_%s_end" % name)
    kernel_end(name, NVALL, agpr=128)
    return 256, 131072 + 1024

def gen_chain(name, last):
    kernel_begin(name)
    common_prologue(name, 256, "s_load_dwordx2 s[40:41], s[0:1], 56" if last else "")
    decode_wg()
    xin = X2F if last else XF
    SC = " sc1"
    LSC = os.environ.get("LSC", " sc1")
    st = St()
    r1 = Ring('wo', st)
    r1.setup()
    r1.pre('all')
    bpre_setup('w1')
    r1.body(xin, X1F, STATS1, sc=SC, side={c: bpre_chunk(2 * c) + bpre_chunk(2 * c + 1) for c in range(4)})
    stamp(1)
    publish(0)
    stamp(2)
    st2 = St(); st2.tag = {k: -1 for k in st.tag}
    r2 = Ring('w2f' if last else 'w2', st2, lsc=LSC)
    lskip = newlab("skipw1"); ljoin = newlab("joinw1")
    A("s_cmp_ge_u32 s62, 7")
    A("s_cbranch_scc1 %s" % lskip)
    def pre_epi():
        stamp(4)
        A("s_barrier")
        r2.setup()
        r2.pre('w')
    def aw0():
        await_flags(0, 0xffff)
        stamp(3)
    phase_res('w1', X1F, STATS1, st2, sync=aw0, sc=SC, lsc=LSC, pre_epi=pre_epi)
    stamp(5)
    publish(1)
    A("s_branch %s" % ljoin)
    A.label(lskip)
    r2.setup()
    r2.pre('w')
    A.label(ljoin)
    stamp(6)
    await_flags(1, 0x7f7f)
    stamp(7)
    st3 = St()
    r2.st = st3
    r2.pre('a')
    side = {}
    if not last:
        bpre_setup('qkv')
        side = {6 + c: bpre_chunk(c) for c in range(8)}
    r2.body(None, X2F, STATS2, sc=SC, side=side)
    if not last:
        publish(2)
        A("s_cmp_ge_u32 s62, 6")
        A("s_cbranch_scc1 L_%s_end" % name)
        st4 = St(); st4.tag = {k: -1 for k in st3.tag}
        phase_res('qkv', X2F, STATS2, st4, sync=lambda: await_flags(2, 0xffff), lsc=LSC, endlab="L_%s_fin" % name)
    kernel_end(name, NVALL, agpr=128)
    return 256, 131072 + 1024

def gen_attn():
    name = "attn_kernel"
    kernel_begin(name)
    common_prologue(name, 256)
    A("v_and_b32 v4, 31, v2")
    A("v_lshrrev_b32 v5, 5, v2")
    A("s_and_b32 s8, s2, 7\ns_lshr_b32 s9, s2, 3\ns_lshl_b32 s8, s8, 2\ns_and_b32 s10, s9, 3\ns_add_u32 s8, s8, s10\ns_lshr_b32 s9, s9, 2")
    A("s_and_b32 s24, s3, 7\ns_lshr_b32 s25, s3, 3")
    A("s_cmp_lg_u32 s2, 0")
    A("s_cbranch_scc1 L_attn_nz")
    A("s_cmp_ge_u32 s3, 6")
    A("s_cbranch_scc1 L_attn_nz")
    A("v_mov_b32 v8, 0\nv_mov_b32 v9, 0\nv_mov_b32 v10, 0\nv_mov_b32 v11, 0")
    A("s_lshl_b32 s26, s3, 10\ns_add_u32 s26, s26, %d" % FLAGS)
    A("buffer_store_dwordx4 v[8:11], v1, s[4:7], s26 offen")
    A("s_nop 1")
    A.label("L_attn_nz")
    A("s_lshl_b32 s9, s9, 3\ns_add_u32 s9, s9, s24")
    Q = 8; NEG = 12; S0 = 28; S1 = 44; P = 60; K0 = 68; K1 = 72; V0 = 76; V1 = 84; O = 92
    SS = (S0, S1); KK = (K0, K1); VV = (V0, V1)
    SCR = 131072 + 4096
    A("s_lshl_b32 s10, s8, 6\ns_add_u32 s11, s10, s9\ns_lshl_b32 s11, s11, 10\ns_add_u32 s11, s11, %d" % QF)
    A("buffer_load_dwordx4 %s, v1, s[4:7], s11 offen" % vr(Q, 4))
    A("s_lshl_b32 s10, s10, 10")
    A("s_add_u32 s12, s10, %d" % KF)
    A("s_add_u32 s13, s10, %d" % VF)
    A("s_lshl_b32 s14, s25, 5\ns_add_u32 s14, s14, s24\ns_lshl_b32 s14, s14, 10")
    A("s_add_u32 s15, s12, s14")
    A("s_add_u32 s16, s13, s14")
    A("s_mov_b32 m0, s14")
    A("s_nop 0")
    A("buffer_load_dwordx4 v1, s[4:7], s15 offen lds")
    A("s_add_u32 m0, s14, 0x10000")
    A("s_nop 0")
    A("buffer_load_dwordx4 v1, s[4:7], s16 offen lds")
    A("v_and_b32 v6, 27, v4")
    A("v_cmp_eq_u32 vcc, 16, v6")
    A("v_mov_b32 v7, 0x3f803f80")
    A("s_nop 1")
    A("v_cndmask_b32 v6, 0, v7, vcc")
    for i in range(16):
        A("v_mov_b32 v%d, v6" % (V0 + i))
    A("s_mov_b32 s20, 0xffff\ns_mov_b32 s21, 0xffff")
    A("s_mov_b32 s22, 0")
    A("s_lshl_b32 s26, s25, 15")
    A("s_waitcnt vmcnt(0)")
    A("s_barrier")
    stamp(1)
    A("s_mul_i32 s14, s24, 3\ns_add_u32 s14, s14, 8\ns_lshl_b32 s17, s25, 5\ns_add_u32 s14, s14, s17\ns_lshl_b32 s14, s14, 10")
    A("s_add_u32 s15, s12, s14")
    A("s_add_u32 s16, s13, s14")
    A("s_mov_b32 m0, s14")
    A("s_nop 0")
    for q in range(3):
        A("buffer_load_dwordx4 v1, s[4:7], s15 offen offset:%d lds" % (1024 * q))
    A("s_add_u32 m0, s14, 0x10000")
    A("s_nop 0")
    for q in range(3):
        A("buffer_load_dwordx4 v1, s[4:7], s16 offen offset:%d lds" % (1024 * q))
    A("ds_read_b128 %s, v1" % vr(K0, 4))
    A("s_waitcnt lgkmcnt(0)")
    A("v_mfma_f32_32x32x16_bf16 %s, %s, %s, 0" % (vr(S0, 16), vr(K0, 4), vr(Q, 4)))
    A("s_nop 15")
    A("s_nop 3")
    def max16(dst, S, init=False):
        if init:
            A("v_max3_f32 v%d, v%d, v%d, v%d" % (dst, S, S + 1, S + 2))
            A("v_max_f32 v%d, v%d, v%d" % (dst, dst, S + 3))
            rest = list(range(4, 16))
        else:
            rest = list(range(0, 16))
        for i in range(0, len(rest), 2):
            A("v_max3_f32 v%d, v%d, v%d, v%d" % (dst, dst, S + rest[i], S + rest[i + 1]))
    max16(6, S0, True)
    A.label("L_attn_setneg")
    A("v_mov_b32 v7, v6")
    A("s_nop 1")
    A("v_permlane32_swap_b32 v6, v7")
    A("s_nop 1")
    A("v_max_f32 v6, v6, v7")
    A("v_sub_f32 v%d, 0, v6" % NEG)
    for i in range(1, 16):
        A("v_mov_b32 v%d, v%d" % (NEG + i, NEG))
    A("v_add_u32 v2, s26, v1")
    A("v_lshl_add_u32 v3, v5, 4, v4")
    A("v_lshlrev_b32 v3, 4, v3")
    A("v_add_u32 v3, 0x10000, v3")
    A("v_add_u32 v3, s26, v3")
    for i in range(16):
        A("v_mov_b32 v%d, 0" % (O + i))
    def vread(p, off):
        A("s_mov_b64 exec, s[20:21]")
        A("ds_read_b128 %s, v3 offset:%d" % (vr(VV[p], 4), off))
        A("ds_read_b128 %s, v3 offset:%d" % (vr(VV[p] + 4, 4), off + 512))
        A("s_mov_b64 exec, -1")
    A("ds_read_b128 %s, v2" % vr(K0, 4))
    vread(0, 0)
    A("s_waitcnt lgkmcnt(0)")
    A("v_mfma_f32_32x32x16_bf16 %s, %s, %s, %s" % (vr(S0, 16), vr(K0, 4), vr(Q, 4), vr(NEG, 16)))
    A("ds_read_b128 %s, v2 offset:1024" % vr(K1, 4))
    vread(1, 1024)
    A("s_nop 7")
    def body():
        for p in range(2):
            S = SS[p]
            A("s_waitcnt lgkmcnt(2)")
            A("v_mfma_f32_32x32x16_bf16 %s, %s, %s, %s" % (vr(SS[1 - p], 16), vr(KK[1 - p], 4), vr(Q, 4), vr(NEG, 16)))
            A("ds_read_b128 %s, v2 offset:%d" % (vr(KK[p], 4), 2048 + 1024 * p))
            for i in range(8):
                A("v_exp_f32 v%d, v%d" % (S + i, S + i))
            for i in range(4):
                A("v_cvt_pk_bf16_f32 v%d, v%d, v%d" % (P + i, S + 2 * i, S + 2 * i + 1))
            for i in range(8, 10):
                A("v_exp_f32 v%d, v%d" % (S + i, S + i))
            A("v_mfma_f32_32x32x16_bf16 %s, %s, %s, %s" % (vr(O, 16), vr(VV[p], 4), vr(P, 4), vr(O, 16)))
            for i in range(10, 16):
                A("v_exp_f32 v%d, v%d" % (S + i, S + i))
            for i in range(4):
                A("v_cvt_pk_bf16_f32 v%d, v%d, v%d" % (P + 4 + i, S + 8 + 2 * i, S + 8 + 2 * i + 1))
            if p == 1:
                A("v_add_u32 v2, 2048, v2")
                A("s_sub_u32 s23, s23, 1")
            else:
                A("s_nop 1")
            if DIAG != 1:
                A("v_mfma_f32_32x32x16_bf16 %s, %s, %s, %s" % (vr(O, 16), vr(VV[p] + 4, 4), vr(P + 4, 4), vr(O, 16)))
            if DIAG != 2:
                vread(p, 2048 + 1024 * p)
            else:
                A("ds_read_b32 v110, v3\nds_read_b32 v111, v3")
        A("v_add_u32 v3, 2048, v3")
        A("s_cmp_lg_u32 s23, 0")
    A("s_cmp_lg_u32 s22, 0")
    A("s_cbranch_scc0 L_attn_phA")
    A("s_mov_b32 s23, 32")
    A("s_branch L_attn_loopB")
    A.label("L_attn_phA")
    if PRIO:
        for p_ in (3, 2, 1):
            A("s_setprio %d" % p_)
            body()
    else:
        A("s_mov_b32 s23, 3")
        A.label("L_attn_loopA")
        body()
        A("s_cbranch_scc1 L_attn_loopA")
    stamp(2)
    A("s_waitcnt vmcnt(0)")
    A("s_barrier")
    stamp(3)
    if PRIO:
        for seg, (p_, n_) in enumerate(((3, 3), (2, 4), (1, 3))):
            A("s_setprio %d" % p_)
            A("s_mov_b32 s23, %d" % n_)
            A.label("L_attn_loopS%d" % seg)
            body()
            A("s_cbranch_scc1 L_attn_loopS%d" % seg)
        A("s_setprio 0")
        A("s_mov_b32 s23, 3")
    else:
        A("s_mov_b32 s23, 13")
    A.label("L_attn_loopB")
    body()
    A("s_cbranch_scc1 L_attn_loopB")
    A("s_waitcnt lgkmcnt(0)")
    A("s_nop 15")
    A("s_nop 3")
    A("s_cmp_lg_u32 s22, 0")
    A("s_cbranch_scc1 L_attn_fin")
    A("s_mul_i32 s27, s24, %d" % (9 * 256))
    A("v_lshrrev_b32 v6, 2, v1")
    A("v_add_u32 v6, s27, v6")
    A("v_add_u32 v6, %d, v6" % SCR)
    A("s_cmp_eq_u32 s25, 0")
    A("s_cbranch_scc1 L_attn_lo")
    for i in range(9):
        A("ds_write_b32 v6, v%d offset:%d" % (O + i, 256 * i))
    A("s_waitcnt lgkmcnt(0)")
    A("s_barrier")
    A("s_branch L_%s_end" % name)
    A.label("L_attn_lo")
    A("s_barrier")
    for i in range(9):
        A("ds_read_b32 v%d, v6 offset:%d" % (S0 + i, 256 * i))
    A("s_waitcnt lgkmcnt(0)")
    for i in range(9):
        A("v_add_f32 v%d, v%d, v%d" % (O + i, O + i, S0 + i))
    A("v_cmp_gt_f32 vcc, 0x5f800000, v%d" % (O + 8))
    A("s_nop 3")
    A("s_cmp_eq_u64 vcc, exec")
    A("s_cbranch_scc1 L_attn_fin")
    A("s_mov_b32 s22, 1")
    A("v_mov_b32 v2, v1")
    A("v_mov_b32 v6, 0xff800000")
    A("s_mov_b32 s23, 64")
    A.label("L_attn_maxp")
    A("ds_read_b128 %s, v2" % vr(K0, 4))
    A("s_waitcnt lgkmcnt(0)")
    A("v_mfma_f32_32x32x16_bf16 %s, %s, %s, 0" % (vr(S0, 16), vr(K0, 4), vr(Q, 4)))
    A("s_nop 15")
    A("s_nop 3")
    max16(6, S0, False)
    A("v_add_u32 v2, 1024, v2")
    A("s_sub_u32 s23, s23, 1")
    A("s_cmp_lg_u32 s23, 0")
    A("s_cbranch_scc1 L_attn_maxp")
    A("s_branch L_attn_setneg")
    A.label("L_attn_fin")
    A("v_rcp_f32 v6, v%d" % (O + 8))
    A("s_nop 0")
    for i in range(8):
        A("v_mul_f32 v%d, v%d, v6" % (O + i, O + i))
    for i in range(4):
        A("v_cvt_pk_bf16_f32 v%d, v%d, v%d" % (O + i, O + 2 * i, O + 2 * i + 1))
    A("s_lshl_b32 s10, s9, 5\ns_add_u32 s10, s10, s8\ns_lshl_b32 s10, s10, 10\ns_add_u32 s10, s10, %d" % OF)
    A("buffer_store_dwordx4 %s, v1, s[4:7], s10 offen" % vr(O, 4))
    kernel_end(name, 112)
    return 256, SCR + 8 * 9 * 256

def main():
    A.raw(".amdgcn_target \"amdgcn-amd-amdhsa--gfx950\"")
    A.raw(".text")
    gen_prep()
    g = {}
    g['qkv'] = gen_qkv0()
    g['attn'] = gen_attn()
    g['chain1'] = gen_chain("chain1_kernel", False)
    g['chain2'] = gen_chain("chain2_kernel", True)
    hdr = []
    hdr.append("; @launch kernel=prep_kernel grid=(112,1,1) block=(256,1,1) lds=512")
    seq = ['qkv', 'attn', 'chain1', 'attn', 'chain2']
    for k in seq:
        nwg, lds = g[k]
        hdr.append("; @launch kernel=%s_kernel grid=(%d,1,1) block=(%d,1,1) lds=%d" % (k, nwg, 1024 if k == 'attn' else 256, lds))
    out = "\n".join(hdr) + "\n" + A.text()
    out += ".section .rodata,\"a\"\n"
    for (name, vgpr, sgpr, agpr) in kernels:
        v = (vgpr + 3) // 4 * 4
        out += ".p2align 6\n.amdhsa_kernel %s\n" % name
        out += "  .amdhsa_next_free_vgpr %d\n  .amdhsa_next_free_sgpr %d\n  .amdhsa_accum_offset %d\n" % (v + agpr, sgpr, v)
        out += "  .amdhsa_group_segment_fixed_size 0\n  .amdhsa_kernarg_size 80\n  .amdhsa_user_sgpr_count 2\n"
        out += "  .amdhsa_user_sgpr_kernarg_segment_ptr 1\n  .amdhsa_system_sgpr_workgroup_id_x 1\n.end_amdhsa_kernel\n"
    path = sys.argv[1] if len(sys.argv) > 1 else "cdna_kernels/%s.s" % NAME
    open(path, "w").write(out)
    print("wrote", path, len(out), "bytes")

if __name__ == "__main__":
    main()
```
